```python
import torch

def _softmax(x, axis=-1):
    return torch.softmax(x, dim=axis)
def _gelu(x):
    return torch.nn.functional.gelu(x, approximate="tanh")
def _silu(x):
    return torch.nn.functional.silu(x)
def _sigmoid(x):
    return torch.sigmoid(x)
def _layernorm(x, axis=-1, eps=1e-5):
    m = x.mean(dim=axis, keepdim=True)
    v = x.var(dim=axis, keepdim=True, unbiased=False)
    return (x - m) / torch.sqrt(v + eps)
def _scatter_add(tgt, idx, src, axis=0):
    return tgt.clone().index_add_(axis, idx, src)
def _segment_sum(src, seg, n):
    out = torch.zeros((n,) + src.shape[1:], dtype=src.dtype)
    return out.index_add_(0, seg, src)
def _pad(x, pw):
    flat = tuple(v for pair in reversed(pw) for v in pair)
    return torch.nn.functional.pad(x, flat)

kernel_name = 'interleave_layers__linear_attn_block__dense_activation_relu__prompt'

def setup_inputs():

    _w = (lambda a: (lambda t: t.to(torch.bfloat16) if t.is_floating_point() else t)(torch.as_tensor(a)))
    def _A_setup():
        B, S, D = 1, 2048, 512
        return {
            "x": _w((lambda *s: torch.randn(*s, dtype=torch.bfloat16) * 0.05)(B, S, D)),
            "wqkv": _w((lambda *s: torch.randn(*s, dtype=torch.bfloat16) * 0.1)(D, 3 * D)),
            "wo": _w((lambda *s: torch.randn(*s, dtype=torch.bfloat16) * 0.05)(D, D)),
        }
    _A_in = _A_setup()

    def _B_setup():
        B, S, D, Dff = 1, 2048, 512, 1376
        return {
            "x": _w((lambda *s: torch.randn(*s, dtype=torch.bfloat16) * 0.05)(B, S, D)),
            "w1": _w((lambda *s: torch.randn(*s, dtype=torch.bfloat16) * 0.05)(D, Dff)),
            "w2": _w((lambda *s: torch.randn(*s, dtype=torch.bfloat16) * 0.05)(Dff, D)),
        }
    _B_in = _B_setup()

    return {
        "A_x": _A_in["x"],
        "A_wqkv": _A_in["wqkv"],
        "A_wo": _A_in["wo"],
        "B_x": _B_in["x"],
        "B_w1": _B_in["w1"],
        "B_w2": _B_in["w2"],
    }

def reference(A_x, A_wqkv, A_wo, B_x, B_w1, B_w2):
    def _A_ref(x, wqkv, wo):
        B, S, D = x.shape
        H = 32; Dh = D // H
        qkv = (lambda x, *d: x.permute(*d))((x @ wqkv).reshape(B, S, 3, H, Dh), 2, 0, 3, 1, 4)
        q, k, v = qkv[0], qkv[1], qkv[2]
        phi = lambda t: torch.where(t > 0, t + 1, torch.exp(t)) + 1e-6
        pq, pk = phi(q), phi(k)
        kv = torch.einsum("bhsd,bhse->bhde", pk, v)
        z = torch.einsum("bhsd->bhd", pk)
        num = torch.einsum("bhqd,bhde->bhqe", pq, kv)
        den = torch.einsum("bhqd,bhd->bhq", pq, z)[..., None] + 1e-6
        o = num / den
        return (lambda x, *d: x.permute(*d))(o, 0, 2, 1, 3).reshape(B, S, D) @ wo

    def _B_ref(x, w1, w2):
        h = torch.einsum("bsd,df->bsf", x, w1)
        zero = torch.zeros_like(h)
        h = torch.maximum(h, zero)
        return torch.einsum("bsf,fd->bsd", h, w2)

    x = A_x
    x = x + _A_ref(_layernorm(x, axis=-1), A_wqkv, A_wo)
    x = x + _B_ref(_layernorm(x, axis=-1), B_w1, B_w2)
    x = x + _A_ref(_layernorm(x, axis=-1), A_wqkv, A_wo)
    x = x + _B_ref(_layernorm(x, axis=-1), B_w1, B_w2)
    return x
```

```python
import re
REG = re.compile(r'\b([vas])\[(\d+):(\d+)\]|\b([vas])(\d+)\b|\b(vcc|exec|m0|scc)\b')
TRANS = ('v_exp_f32','v_log_f32','v_rcp_f32','v_rsq_f32','v_sqrt_f32','v_sin_f32','v_cos_f32')

def regs_of(tok):
    out = []
    for m in REG.finditer(tok):
        if m.group(1):
            out += [(m.group(1), i) for i in range(int(m.group(2)), int(m.group(3)) + 1)]
        elif m.group(4):
            out.append((m.group(4), int(m.group(5))))
        else:
            out.append((m.group(6), 0))
    return out

class Ins:
    __slots__ = ('text','op','kind','defs','uses','opt','srcC','srcAB','wide','ws')
    def __init__(s, text):
        s.text = text; s.opt = (); s.srcC = set(); s.srcAB = set(); s.wide = False; s.ws = 1
        t = text.split(';')[0].strip()
        if t.endswith(':'):
            s.op = 'label'; s.kind = 'label'; s.defs = set(); s.uses = set(); s.ws = 0; return
        if t.startswith('.'):
            s.op = 'dir'; s.kind = 'label'; s.defs = set(); s.uses = set(); s.ws = 0; return
        parts = t.split(None, 1)
        op = s.op = parts[0]
        ops = [o.strip() for o in parts[1].split(',')] if len(parts) > 1 else []
        R = [regs_of(o) for o in ops]
        D = set(); U = set()
        if op.startswith('v_mfma'):
            s.kind = 'mfma'; D |= set(R[0]); s.srcAB = set(R[1]) | set(R[2]); s.srcC = set(R[3]); U |= s.srcAB | s.srcC
        elif op.startswith('ds_read') or op.startswith('ds_bpermute') or op.startswith('ds_swizzle'):
            s.kind = 'ds_r'; D |= set(R[0]); [U.update(r) for r in R[1:]]
        elif op.startswith('ds_write'):
            s.kind = 'ds_w'; [U.update(r) for r in R]
        elif op.startswith('buffer_load') or op.startswith('global_load'):
            if re.search(r'\blds\b', t) or 'load_lds' in op:
                s.kind = 'vm_dma'; [U.update(r) for r in R]; U.add(('m0', 0))
            else:
                s.kind = 'vm_ld'; D |= set(R[0]); [U.update(r) for r in R[1:]]
        elif op.startswith('buffer_store') or op.startswith('global_store') or op.startswith('buffer_atomic'):
            s.kind = 'vm_st'; [U.update(r) for r in R]
            s.wide = op.endswith('x4') or op.endswith('x3')
            s.srcC = set(R[0]) if op.startswith('buffer') else set(R[1])
        elif op in ('buffer_wbl2', 'buffer_inv'):
            s.kind = 'vm_st'
        elif op.startswith('s_load') or op in ('s_memtime', 's_memrealtime'):
            s.kind = 'smem'; D |= set(R[0]); [U.update(r) for r in R[1:]]
        elif op == 's_waitcnt': s.kind = 'wait'
        elif op == 's_nop': s.kind = 'nop'; s.ws = int(ops[0], 0) + 1
        elif op == 's_barrier': s.kind = 'barrier'
        elif op.startswith('s_cbranch') or op in ('s_branch', 's_endpgm', 's_sleep', 's_setprio'):
            s.kind = 'branch'
            if 'vcc' in op: U.add(('vcc', 0))
            if 'scc' in op: U.add(('scc', 0))
            if 'exec' in op: U.add(('exec', 0))
        elif op.startswith('s_cmp') or op.startswith('s_bitcmp'):
            s.kind = 'salu'; [U.update(r) for r in R]; D.add(('scc', 0))
        elif op.startswith('s_'):
            s.kind = 'salu'; D |= set(R[0]); [U.update(r) for r in R[1:]]
        elif op.startswith('v_'):
            base = op.replace('_e32', '').replace('_e64', '').replace('_dpp', '')
            s.kind = 'valu'
            if base in TRANS: s.kind = 'trans'
            if base.startswith('v_dot2'): s.kind = 'dot'
            if base.startswith('v_permlane'): s.kind = 'perm'
            if 'quad_perm' in t or 'row_' in t: s.kind = 'dpp'
            if base.startswith('v_readfirstlane') or base.startswith('v_readlane'): s.kind = 'rdlane'
            D |= set(R[0]); [U.update(r) for r in R[1:]]
            if base.startswith('v_dot2c') or base.startswith('v_fmac'): U |= set(R[0]); s.srcC = set(R[0])
            if base == 'v_dot2_f32_bf16': s.srcC = set(R[3]); s.srcAB = set(R[1]) | set(R[2])
            if base.startswith('v_dot2c'): s.srcAB = set(R[1]) | set(R[2])
            if s.kind == 'perm': D |= set(R[1]); U |= set(R[0])
            if base == 'v_cndmask_b32' and len(ops) == 3: U.add(('vcc', 0))
        else:
            raise ValueError('unknown instr ' + text)
        s.defs = D; s.uses = U

VALUK = ('valu','trans','dot','perm','dpp','rdlane')

class Ent:
    __slots__ = ('defs','opt','done','name','q')
    def __init__(s, defs, opt, q, name=None): s.defs = defs; s.opt = opt; s.done = False; s.name = name; s.q = q

class Asm:
    def __init__(s):
        s.ins = []; s.q = {'vm': [], 'lg': []}; s.opt = (); s.nopt = 0; s.nlab = 0; s.snap = []; s.named = {}
    def label(s, base='L'):
        s.nlab += 1; return f'{base}{s.nlab}'
    def raw(s, text):
        i = Ins(text); i.opt = s.opt; s.ins.append(i); return i
    def _count_younger(s, e):
        q = s.q[e.q]; k = q.index(e); n = 0
        for y in q[k+1:]:
            if y.opt == s.opt[:len(y.opt)] or y.opt == e.opt[:len(y.opt)]: n += 1
        return n
    def _mark(s, e):
        q = s.q[e.q]; k = q.index(e)
        for y in q[:k+1]: y.done = True
    def wait(s, *ents):
        need = {}
        for e in ents:
            if e is None or e.done: continue
            n = s._count_younger(e)
            need[e.q] = min(need.get(e.q, 99), n)
        for e in ents:
            if e is not None and not e.done: s._mark(e)
        if need:
            parts = []
            if 'vm' in need: parts.append(f"vmcnt({min(need['vm'], 63)})")
            if 'lg' in need: parts.append(f"lgkmcnt({min(need['lg'], 15)})")
            s.raw('s_waitcnt ' + ' '.join(parts))
        s._gc()
    def waitall(s, vm=True, lg=True):
        parts = []
        if vm: parts.append('vmcnt(0)'); [setattr(e, 'done', True) for e in s.q['vm']]
        if lg: parts.append('lgkmcnt(0)'); [setattr(e, 'done', True) for e in s.q['lg']]
        s.raw('s_waitcnt ' + ' '.join(parts)); s._gc()
    def _gc(s):
        if s.opt == ():
            for k in s.q: s.q[k] = [e for e in s.q[k] if not e.done]
    def e(s, text, name=None):
        ent = None
        for line in text.split('\n'):
            line = line.strip()
            if not line: continue
            i = Ins(line); i.opt = s.opt
            touched = i.defs | i.uses
            pend = [e for k in s.q for e in s.q[k] if not e.done and (e.defs & touched)]
            if pend: s.wait(*pend)
            s.ins.append(i)
            if i.kind in ('vm_ld', 'vm_st', 'vm_dma'):
                ent = Ent(set(i.defs), s.opt, 'vm', name); s.q['vm'].append(ent)
            elif i.kind in ('ds_r', 'ds_w'):
                ent = Ent(set(i.defs), s.opt, 'lg', name); s.q['lg'].append(ent)
            elif i.kind == 'smem':
                pass
        if name: s.named[name] = ent
        return ent
    def opt_begin(s):
        s.nopt += 1; s.snap.append({id(e): e.done for k in s.q for e in s.q[k]}); s.opt = s.opt + (s.nopt,)
    def opt_end(s):
        snap = s.snap.pop(); s.opt = s.opt[:-1]
        for k in s.q:
            for e in s.q[k]:
                if id(e) in snap: e.done = snap[id(e)]
        s._gc()
    def skip_if(s, cond_text, branch):
        a = s
        class Ctx:
            def __enter__(c):
                if cond_text: a.e(cond_text)
                c.l = a.label('Lskip'); a.raw(f'{branch} {c.l}'); a.opt_begin()
            def __exit__(c, *x):
                a.opt_end(); a.raw(f'{c.l}:')
        return Ctx()
    def need(s, p, c):
        n = 0
        pv = p.kind in VALUK; cv = c.kind in VALUK
        vd = {r for r in p.defs if r[0] in 'va' and r[0] != 'vcc'}
        sd = {r for r in p.defs if r[0] == 's' or r[0] == 'vcc'}
        if pv:
            if c.kind == 'mfma' and vd & c.uses: n = max(n, 2)
            if c.kind in ('perm', 'dpp') and vd & c.uses: n = max(n, 2)
            if c.kind == 'rdlane' and vd & c.uses: n = max(n, 1)
            if p.kind == 'trans' and cv and c.kind != 'trans' and vd & c.uses: n = max(n, 1)
            if p.kind == 'dot':
                if vd & (c.uses | c.defs) and (cv or c.kind in ('mfma','vm_st','ds_w','vm_ld','vm_dma','ds_r')):
                    if c.kind == 'dot' and c.op == p.op and not (vd & c.srcAB): pass
                    else: n = max(n, 3)
            if sd:
                if cv and sd & c.uses: n = max(n, 2 if c.kind != 'rdlane' else 4)
                if c.kind in ('vm_ld','vm_st','vm_dma') and sd & c.uses: n = max(n, 5)
                if c.kind in ('salu','branch','smem') and sd & c.uses: n = max(n, 1)
        if p.kind == 'mfma':
            if c.kind == 'mfma':
                if p.defs & c.srcAB: n = max(n, 8)
                if p.defs & c.srcC and not (p.defs == c.srcC and p.op == c.op): n = max(n, 6)
                if p.defs & c.defs and not (p.defs == c.srcC and p.op == c.op) : n = max(n, 6)
            elif p.defs & (c.uses | c.defs): n = max(n, 8)
            if cv and p.srcC & c.defs: n = max(n, 3)
        if p.kind == 'salu' and ('m0', 0) in p.defs and c.kind == 'vm_dma': n = max(n, 1)
        if p.kind == 'vm_st' and p.wide and (p.srcC & c.defs): n = max(n, 2)
        return n
    def finish(s):
        out = []
        for c in s.ins:
            if c.kind not in ('label',):
                d = 0; pad = 0; k = len(out) - 1
                while k >= 0 and d < 9:
                    p = out[k]
                    n = s.need(p, c)
                    if n > d: pad = max(pad, n - d)
                    if p.opt == c.opt[:len(p.opt)]: d += p.ws
                    k -= 1
                if pad:
                    i = Ins(f's_nop {pad-1}'); i.opt = c.opt; out.append(i)
            out.append(c)
        return out
    def text(s):
        return '\n'.join((i.text if i.kind == 'label' else '    ' + i.text) for i in s.finish()) + '\n'

def weave(a, mfmas, fill):
    def run(fs):
        for f in fs:
            if callable(f): f()
            else: a.e(f)
    run(fill.get(-1, []))
    for i, m in enumerate(mfmas):
        if callable(m): m()
        else: a.e(m)
        run(fill.get(i, []))

def spread(fill, items, start, per=2, step=1):
    k = start; n = 0
    for it in items:
        fill.setdefault(k, []).append(it); n += 1
        if n == per: n = 0; k += step
    return k + (1 if n else 0)
```

```python
import sys, math
sys.path.insert(0, 'dev')
from asmlib import *
KNAME = "interleave_layers__linear_attn_block__dense_activation_relu__prompt_kernel"

EPOCH=0x0; XF=0x1000; PF=0x2000
KV1=0x200000; KV2=0x400000
WQF=0x500000; WOF=0x580000; W1F=0x600000; W2F=0x800000
W2S=43*4096
GA0=0x1000000; GAS=0x100000
A_O=0x00000; A_X1=0x20000; A_X2=0x40000; A_H=0x50000; A_HL=0x30000; A_ST=0xB0000; A_FL=0xB8000; A_JUNK=0xC0000
HRT=43*1024
PROF=0x4000000
LA=0; LB=0x10000; LC=0x20000; MISC=0x27000; LDSZ=0x28000
ST_RSTD=0; ST_NB=256; ST_RL=512; ST_NM=768
CSW1=2048
SWS='s[4:7]'; SOUT='s[8:11]'; SX='s[12:15]'; SQ='s[16:19]'; SP='s[20:23]'
sW,sM,sG,sXC,sJ,sT,sL = 's24','s25','s26','s27','s28','s29','s30'
sT0,sT1,sT2,sT3 = 's31','s3','s0','s1'
sGA='s32'; sFL='s33'; sFLme='s34'; sO='s35'; sX1='s36'; sH='s37'; sST='s38'; sKV1='s39'; sKV2='s40'
sW4='s41'
sOW='s42'
sXme='s43'
sSTme='s44'
sOnes='s45'; sLo='s46'; sHi='s47'; sDelta='s48'; sLn2='s49'; sLog2e='s50'
sOdd='s[52:53]'; sAcc='s[54:55]'; sCm='s[56:57]'
sHst='s58'; sHst2='s59'
sHe='s60'; sHl='s61'
sW2e='s62'; sW2l='s63'
sA0='s64'; sA1='s65'
sSpin='s66'; sOme='s67'; sP2k='s68'; sEe='s69'; sOutO='s70'; sWQ='s71'; sW1='s72'; sHx='s73'
sPR=76
vL16,vG16,vR4,vFl,vFlagOff,vTag,vStatLd,vStatSt,vStatW,vO8 = [f'v{i}' for i in range(0,10)]
vCsk,vCsv='v10','v11'
RES=12
vS0,vS1,vS2,vS3='v20','v21','v22','v23'
WV=192
WK=192
def vr(b,n=4): return f'v[{b}:{b+n-1}]'
def ar(b,n=4): return f'a[{b}:{b+n-1}]'
MF='v_mfma_f32_16x16x32_bf16'; MF16='v_mfma_f32_16x16x16_bf16'
def f2u(x):
    import struct; return struct.unpack('<I', struct.pack('<f', x))[0]

class G:
    def __init__(s, prof=False, stop=None, force=None, **kw):
        s.kw = kw
        s.a = Asm(); s.prof = prof; s.stop = stop; s.force = force; s.npr = 0
    def stamp(s, idx):
        if not s.prof: return
        a = s.a
        a.raw(f's_memrealtime s[74:75]'); a.waitall(vm=False)
        if idx < 2: a.e(f's_mov_b32 s{sPR+idx}, s74')
        else:
            a.e(f's_cmp_eq_u32 {sL}, 0')
            a.e(f's_cselect_b32 s{sPR+idx}, s74, s{sPR+idx}')
            a.e(f's_cselect_b32 s{sPR+idx+12}, s{sPR+idx+12}, s74')
    def layer0(s): return s.a.skip_if(f's_cmp_lg_u32 {sL}, 0', 's_cbranch_scc1')
    def layer1(s): return s.a.skip_if(f's_cmp_eq_u32 {sL}, 0', 's_cbranch_scc1')
    def spin_guard(s):
        a = s.a
        a.e(f's_sub_u32 {sSpin}, {sSpin}, 1'); a.raw('s_cbranch_scc1 Lbail')
    def poll_issue(s, hop, half, vp):
        return s.a.e(f'buffer_load_dword {vp}, {vFl}, {SWS}, {sFL} offen offset:{hop*256+half*128} sc1')
    def poll_check(s, hop, half, vp):
        a = s.a
        a.e(f'v_cmp_ne_u32 vcc, {sT}, {vp}')
        with a.skip_if(None, 's_cbranch_vccz'):
            l = a.label('Lpoll'); a.raw(f'{l}:')
            s.spin_guard()
            s.poll_issue(hop, half, vp)
            a.waitall(lg=False)
            a.e(f'v_cmp_ne_u32 vcc, {sT}, {vp}')
            a.raw(f's_cbranch_vccnz {l}')
    def flag_post(s, hop, half):
        return s.a.e(f'buffer_store_dword {vTag}, {vFlagOff}, {SWS}, {sFLme} offen offset:{hop*256+half*128}{s.sc}')
    def stats_finalize(s, u, t0, t1, vaddr, off):
        a = s.a
        a.e(f'v_mov_b32 {t0}, {u}')
        a.e(f'v_permlane32_swap_b32 {u}, {t0}')
        a.e(f'v_mul_f32 {u}, 0x{f2u(-1/512):x}, {u}')
        a.e(f'v_mul_f32 {t0}, 0x{f2u(1/512):x}, {t0}')
        a.e(f'v_fma_f32 {t0}, -{u}, {u}, {t0}')
        a.e(f'v_max_f32 {t0}, 0, {t0}')
        a.e(f'v_add_f32 {t0}, 0x{f2u(1e-5):x}, {t0}')
        a.e(f'v_rsq_f32 {t0}, {t0}')
        a.e(f'ds_write_b32 {vaddr}, {u} offset:{off+ST_NM}')
        a.e(f'v_mul_f32 {t1}, {u}, {t0}')
        a.e(f'ds_write_b32 {vaddr}, {t0} offset:{off+ST_RSTD}')
        a.e(f'v_mul_f32 {t0}, {sLog2e}, {t0}')
        a.e(f'ds_write_b32 {vaddr}, {t1} offset:{off+ST_NB}')
        return a.e(f'ds_write_b32 {vaddr}, {t0} offset:{off+ST_RL}')
    def stats_issue(s, kind, hf, b):
        a = s.a
        a.e(f's_add_u32 {sT0}, {sST}, {kind*8192+hf*4096}')
        return a.e(f'buffer_load_dwordx4 {vr(b)}, {vStatLd}, {SWS}, {sT0} offen sc1')
    def stats_consume(s, kind, hf, b):
        a = s.a
        x, y, t = f'v{b}', f'v{b+1}', f'v{b+2}'
        a.e(f'v_add_f32 {x}, v{b}, v{b+2}\n v_add_f32 {y}, v{b+1}, v{b+3}')
        a.e(f'v_permlane32_swap_b32 {x}, {y}')
        a.e(f'v_add_f32 {x}, {x}, {y}')
        a.e(f'v_mov_b32 {y}, {x}')
        a.e(f'v_permlane16_swap_b32 {x}, {y}')
        a.e(f'v_add_f32 {x}, {x}, {y}')
        a.e(f'v_add_f32_dpp {x}, {x}, {x} row_ror:8 row_mask:0xf bank_mask:0xf')
        return s.stats_finalize(x, y, t, vStatW, (1-kind)*1024 + hf*128)
    def tile_dma(s, sbase, rt):
        a = s.a
        a.e(f's_add_u32 m0, {sW4}, {rt*16384}')
        a.e(f's_add_u32 {sT0}, {sbase}, m0')
        e = None
        for i in range(4):
            e = a.e(f'buffer_load_dwordx4 {vL16}, {SWS}, {sT0} offen offset:{i*1024} sc1 lds')
        return e
    def x_epilogue(s, acc, hf, kind, outmode=False):
        a = s.a; r = RES + 4*hf
        L = []
        for i in range(4): L.append(f'v_cvt_pk_bf16_f32 v{r+i}, v{acc+2*i}, v{acc+2*i+1}')
        return L
    def x_publish(s, hf, kind):
        a = s.a; r = RES + 4*hf
        base = sX1 if kind == 0 else sGA
        a.e(f's_add_u32 {sT0}, {base}, {sXme}')
        a.e(f's_add_u32 {sT0}, {sT0}, {hf*32768 + (A_X2 if kind else 0)}')
        a.e(f'buffer_store_dwordx4 {vr(r)}, {vL16}, {SWS}, {sT0} offen{s.sc}')
        a.e(f'v_dot2_f32_bf16 {vS0}, v{r}, {sOnes}, 0')
        a.e(f'v_dot2_f32_bf16 {vS1}, v{r}, v{r}, 0')
        for i in range(1,4):
            a.e(f'v_dot2_f32_bf16 {vS0}, v{r+i}, {sOnes}, {vS0}')
            a.e(f'v_dot2_f32_bf16 {vS1}, v{r+i}, v{r+i}, {vS1}')
        a.e(f's_add_u32 {sT0}, {sST}, {sSTme}')
        a.e(f's_add_u32 {sT0}, {sT0}, {kind*8192+hf*4096}')
        a.e(f'v_permlane32_swap_b32 {vS0}, {vS1}')
        a.e(f'v_add_f32 {vS0}, {vS0}, {vS1}')
        a.e(f'v_mov_b32 {vS1}, {vS0}')
        a.e(f'v_permlane16_swap_b32 {vS0}, {vS1}')
        a.e(f'v_add_f32 {vS0}, {vS0}, {vS1}')
        return a.e(f'buffer_store_dword {vS0}, {vStatSt}, {SWS}, {sT0} offen{s.sc}')

    def startup(s):
        a = s.a
        a.e('s_cmp_ge_u32 s2, 256'); a.raw('s_cbranch_scc1 Lend')
        a.raw('s_load_dwordx16 s[80:95], s[0:1], 0'); a.raw('s_load_dwordx2 s[96:97], s[0:1], 64')
        if s.prof: a.raw(f's_memrealtime s[74:75]')
        a.e(f'''v_lshrrev_b32 v24, 6, v0
            v_and_b32 v25, 63, v0
            v_readfirstlane_b32 {sW}, v24
            s_and_b32 {sXC}, s2, 7
            s_lshr_b32 {sT1}, s2, 3
            s_lshr_b32 {sJ}, {sT1}, 3
            s_and_b32 {sM}, {sT1}, 7
            s_lshl_b32 {sG}, {sXC}, 2
            s_add_u32 {sG}, {sG}, {sJ}
            v_lshlrev_b32 {vL16}, 4, v25
            v_lshrrev_b32 v26, 4, v25
            v_and_b32 v27, 15, v25
            v_lshlrev_b32 v28, 10, v27
            v_lshl_add_u32 v28, v26, 4, v28
            v_lshrrev_b32 v29, 3, v25
            v_and_b32 v30, 7, v25
            s_lshl_b32 {sW4}, {sW}, 12''')
        a.e(f'''s_lshl_b32 s51, s2, 2
            s_add_u32 s51, s51, {sW}
            s_and_b32 s50, s51, 7
            s_lshr_b32 s51, s51, 3
            s_lshl_b32 s52, s50, 7''')
        a.e(f'''v_bfe_u32 v31, v29, 1, 1
            s_and_b32 {sT1}, {sW}, 1
            s_lshl_b32 {sT1}, {sT1}, 1
            v_or_b32 v31, {sT1}, v31
            v_lshlrev_b32 v31, 1, v31
            v_xor_b32 v31, v31, v30
            v_lshlrev_b32 v31, 4, v31
            s_movk_i32 {sT1}, 3072
            v_mad_u32_u24 v31, v29, {sT1}, v31''')
        a.raw('s_waitcnt lgkmcnt(0)')
        if s.prof: a.e(f's_mov_b32 s{sPR}, s74')
        a.e('''s_mov_b32 s4, s96
            s_mov_b32 s5, s97
            s_mov_b32 s6, 0x10000000
            s_mov_b32 s7, 0x20000
            s_mov_b32 s12, s80
            s_mov_b32 s13, s81
            s_mov_b32 s14, 0x200000
            s_mov_b32 s15, 0x20000
            s_mov_b32 s16, s82
            s_mov_b32 s17, s83
            s_mov_b32 s18, 0x180000
            s_mov_b32 s19, 0x20000
            v_mov_b32 v32, 0''')
        eE = a.e(f'buffer_load_dword v33, v32, {SWS}, 0 offen sc1')
        a.e('s_mov_b32 s23, 0x20000')
        la = [a.label('Lpp') for _ in range(5)]
        a.e('s_cmp_lt_u32 s51, 16'); a.raw(f's_cbranch_scc0 {la[0]}')
        a.e(f'''s_mov_b32 s20, s84
            s_mov_b32 s21, s85
            s_mov_b32 s22, 0x80000
            s_movk_i32 s53, 1024
            s_mov_b32 s54, s51
            s_lshl_b32 s55, s50, 16
            s_lshl_b32 s56, s51, 12
            s_add_u32 s55, s55, s56
            s_add_u32 s55, s55, {WOF}
            s_movk_i32 s56, 1024
            s_mov_b32 s57, 1''')
        a.raw(f's_branch {la[4]}'); a.raw(f'{la[0]}:')
        a.e('s_cmp_lt_u32 s51, 32'); a.raw(f's_cbranch_scc0 {la[1]}')
        a.e(f'''s_mov_b32 s20, s82
            s_mov_b32 s21, s83
            s_mov_b32 s22, 0x180000
            s_movk_i32 s53, 3072
            s_sub_u32 s54, s51, 16
            s_lshl_b32 s55, s50, 16
            s_lshl_b32 s56, s54, 10
            s_add_u32 s55, s55, s56
            s_add_u32 s55, s55, {WQF}
            s_movk_i32 s56, 16384
            s_mov_b32 s57, 0''')
        a.raw(f's_branch {la[4]}'); a.raw(f'{la[1]}:')
        a.e('s_cmp_lt_u32 s51, 80'); a.raw(f's_cbranch_scc0 {la[2]}')
        a.e(f'''s_mov_b32 s20, s88
            s_mov_b32 s21, s89
            s_mov_b32 s22, {512*1376*2}
            s_movk_i32 s53, 2752
            s_sub_u32 s56, s51, 32
            s_and_b32 s54, s56, 15
            s_lshr_b32 s56, s56, 4
            s_min_u32 s52, s50, 3
            s_mul_i32 s55, s50, 5
            s_add_u32 s52, s52, s55
            s_lshl_b32 s52, s52, 6
            s_lshl_b32 s55, s56, 7
            s_add_u32 s52, s52, s55
            s_mul_i32 s55, s50, {12*16384}
            s_lshl_b32 s56, s56, 16
            s_add_u32 s55, s55, s56
            s_lshl_b32 s56, s54, 10
            s_add_u32 s55, s55, s56
            s_add_u32 s55, s55, {W1F}
            s_movk_i32 s56, 16384
            s_mov_b32 s57, 0''')
        a.raw(f's_branch {la[4]}'); a.raw(f'{la[2]}:')
        a.e(f'''s_mov_b32 s20, s90
            s_mov_b32 s21, s91
            s_mov_b32 s22, {512*1376*2}
            s_movk_i32 s53, 1024
            s_sub_u32 s54, s51, 80
            s_mul_i32 s55, s50, {W2S}
            s_lshl_b32 s56, s54, 12
            s_add_u32 s55, s55, s56
            s_add_u32 s55, s55, {W2F}
            s_movk_i32 s56, 1024
            s_mov_b32 s57, 1''')
        a.raw(f'{la[4]}:')
        a.e(f'''v_mul_u32_u24 v34, s53, v29
            v_lshl_add_u32 v34, v30, 4, v34
            s_lshl_b32 s54, s54, 5
            s_mul_i32 s54, s54, s53
            s_add_u32 s54, s54, s52
            s_lshl_b32 s58, s53, 3
            s_add_u32 m0, {sW4}, {LC}''')
        for i in range(4):
            eP = a.e(f'buffer_load_dwordx4 v34, {SP}, s54 offen lds')
            if i < 3: a.e('s_add_u32 m0, m0, 1024\n s_add_u32 s54, s54, s58')
        a.e(f'''s_lshl_b32 {sT0}, {sG}, 16
            s_lshl_b32 {sT1}, {sW}, 14
            s_add_u32 {sT0}, {sT0}, {sT1}
            s_mov_b32 m0, {sT1}''')
        for ks in range(16):
            eX = a.e(f'buffer_load_dwordx4 v28, {SX}, {sT0} offen lds')
            if ks < 15: a.e(f's_add_u32 m0, m0, 1024\n s_add_u32 {sT0}, {sT0}, 64')
        a.e(f'''s_mul_i32 s98, {sW}, {8*3072}
            s_lshl_b32 {sT1}, {sM}, 7
            s_add_u32 s98, s98, {sT1}
            s_add_u32 s98, s98, 1024
            s_lshl_b32 s99, {sW}, 10
            s_add_u32 s99, s99, {LB}''')
        def chunk_dma(c):
            e = None
            for t in range(4):
                a.e(f's_add_u32 m0, s99, {(c%4)*16384 + t*4096}')
                a.e(f's_add_u32 {sT0}, s98, {c*64*3072 + (t%2)*32*3072 + (t//2)*1024}')
                e = a.e(f'buffer_load_dwordx4 v31, {SQ}, {sT0} offen lds')
            return e
        eC = [chunk_dma(c) for c in range(4)]
        a.e(f'''s_getpc_b64 s[62:63]''')
        a.raw('Lpc0:')
        a.e(f'''s_lshr_b32 {sT1}, s2, 3
            s_lshl_b32 {sT1}, {sT1}, 2
            s_add_u32 {sT1}, {sT1}, {sW}
            s_lshl_b32 {sT1}, {sT1}, 10
            s_cmp_lt_u32 {sT1}, Lcode_end-Lpc0-1024''')
        with a.skip_if(None, 's_cbranch_scc0'):
            a.e(f's_add_u32 s62, s62, {sT1}\n s_addc_u32 s63, s63, 0\n s_and_b32 s62, s62, -16')
            a.e(f'global_load_dwordx4 v[140:143], {vL16}, s[62:63]')
        a.e(f'''s_mov_b32 s8, s92
            s_mov_b32 s9, s93
            s_mov_b32 s10, 0x200000
            s_mov_b32 s11, 0x20000
            v_lshlrev_b32 {vG16}, 4, v26
            v_add_u32 {vG16}, {MISC}, {vG16}
            v_lshlrev_b32 {vR4}, 2, v27
            v_add_u32 {vR4}, {MISC}, {vR4}
            v_and_b32 {vFl}, 31, v25
            v_lshlrev_b32 {vFl}, 2, {vFl}
            v_cmp_eq_u32 vcc, 0, v25
            v_mov_b32 v35, 0x40000000
            v_cndmask_b32 {vFlagOff}, v35, v32, vcc
            s_lshl_b32 {sT1}, {sW}, 3
            v_add_u32 {vStatW}, {sT1}, v30
            v_lshlrev_b32 {vStatLd}, 7, {vStatW}
            v_lshl_add_u32 {vStatLd}, v29, 4, {vStatLd}
            v_lshlrev_b32 {vStatW}, 2, {vStatW}
            v_add_u32 {vStatW}, {MISC}, {vStatW}
            v_lshrrev_b32 v35, 5, v25
            v_lshlrev_b32 v35, 2, v35
            v_lshl_add_u32 {vStatSt}, v27, 7, v35
            s_and_b32 {sT1}, {sW}, 1
            s_lshl_b32 {sT2}, {sT1}, 3
            v_add_u32 {vO8}, {sT2}, {vL16}''')
        a.e(f'''v_lshrrev_b32 v40, 2, v27
            v_and_b32 v41, 3, v25
            v_lshl_add_u32 v42, v26, 3, v40
            v_lshlrev_b32 v42, 7, v42
            v_lshl_add_u32 v43, v41, 3, v42
            v_lshl_add_u32 v44, v26, 2, v40
            v_lshlrev_b32 v44, 7, v44
            v_lshl_add_u32 v44, v41, 4, v44
            s_add_u32 {sT2}, {sW4}, {LC}
            v_add_u32 v45, {sT2}, v43
            v_add_u32 v44, {sT2}, v44
            v_lshrrev_b32 v46, 1, v40
            v_and_b32 v47, 1, v26
            v_lshl_or_b32 v46, v47, 1, v46
            v_xor_b32 v46, {sW}, v46
            v_lshl_add_u32 v43, v46, 5, v43
            v_add_u32 v43, {LB}, v43''')
        a.e(f'v_readfirstlane_b32 {sT}, v33')
        a.e(f'''s_add_u32 {sT}, {sT}, 0x9E3779B0
            s_and_b32 {sT}, {sT}, -16
            s_getreg_b32 s100, hwreg(HW_REG_XCC_ID, 0, 4)
            s_add_u32 s100, s100, {sT}
            v_mov_b32 {vTag}, {sT}
            v_mov_b32 v35, s100
            s_lshl_b32 {sT0}, {sXC}, 7
            s_lshr_b32 {sT1}, s2, 3
            s_lshl_b32 {sT1}, {sT1}, 2
            s_add_u32 {sT0}, {sT0}, {sT1}
            s_add_u32 {sT0}, {sT0}, {XF}''')
        with a.skip_if(f's_cmp_lg_u32 {sW}, 0', 's_cbranch_scc1'):
            a.e(f'buffer_store_dword v35, {vFlagOff}, {SWS}, {sT0} offen sc1')
        a.wait(eP)
        lsp = a.label('Lsplit'); ljn = a.label('Ljoin')
        a.e('s_cmp_eq_u32 s57, 1')
        with a.skip_if(None, 's_cbranch_scc1'):
            for c in range(4):
                for hh in range(2):
                    a.e(f'ds_read_b64_tr_b16 {vr(48+4*c+2*hh,2)}, v45 offset:{hh*512+c*32}')
            a.waitall(vm=False)
        a.e('s_cmp_eq_u32 s57, 1')
        with a.skip_if(None, 's_cbranch_scc0'):
            for c in range(4):
                for hh in range(2):
                    a.e(f'ds_read_b64_tr_b16 {vr(48+4*c+2*hh,2)}, v44 offset:{hh*2048+(c//2)*64+(c%2)*8}')
            a.waitall(vm=False)
        with a.skip_if('s_cmp_ge_u32 s51, 123', 's_cbranch_scc1'):
            for c in range(4):
                ePS = a.e(f'buffer_store_dwordx4 {vr(48+4*c)}, {vL16}, {SWS}, s55 offen sc1')
                if c < 3: a.e('s_add_u32 s55, s55, s56')
        a.e(f'''s_lshl_b32 {sGA}, {sG}, 20
            s_add_u32 {sGA}, {sGA}, {GA0}
            s_lshr_b32 {sT0}, {sW}, 1
            s_and_b32 {sT1}, {sW}, 1
            s_lshl_b32 {sOW}, {sT0}, 14
            s_lshl_b32 {sP2k}, {sT1}, 11
            s_lshl_b32 {sT2}, {sM}, 1
            s_add_u32 {sT2}, {sT2}, {sT1}
            s_lshl_b32 {sXme}, {sT2}, 10
            s_add_u32 {sXme}, {sXme}, {sOW}
            s_lshl_b32 {sSTme}, {sT0}, 11
            s_lshl_b32 {sT3}, {sT2}, 3
            s_add_u32 {sSTme}, {sSTme}, {sT3}
            s_lshl_b32 {sOutO}, {sG}, 16
            s_add_u32 {sOutO}, {sOutO}, {sOW}
            s_lshl_b32 {sT3}, {sT2}, 6
            s_add_u32 {sOutO}, {sOutO}, {sT3}
            s_lshl_b32 {sT3}, {sT1}, 12
            s_add_u32 {sOW}, {sOW}, {sT3}
            s_lshl_b32 {sOme}, {sM}, 1
            s_add_u32 {sOme}, {sOme}, {sT0}
            s_lshl_b32 {sOme}, {sOme}, 10''')
        a.e(f'''s_lshl_b32 s101, s50, 9
            s_lshl_b32 s78, s51, 2
            s_add_u32 s101, s101, s78
            s_add_u32 s101, s101, {PF}
            s_mov_b32 s78, s51
            s_mov_b32 {sOnes}, 0x3F803F80
            s_mov_b32 {sLo}, 0x00003F80
            s_mov_b32 {sHi}, 0x3F800000
            s_mov_b32 {sDelta}, 0x{f2u(1e-6*math.log2(math.e)):x}
            s_mov_b32 {sLn2}, 0x{f2u(math.log(2)):x}
            s_mov_b32 {sLog2e}, 0x{f2u(math.log2(math.e)):x}
            s_mov_b32 s52, 0xAAAAAAAA
            s_mov_b32 s53, 0xAAAAAAAA
            s_mov_b32 {sSpin}, 0x40000
            s_mov_b32 {sL}, 0''')
        a.e(f'''s_min_u32 {sT0}, {sM}, 3
            s_mul_i32 {sT1}, {sM}, 5
            s_add_u32 {sT0}, {sT0}, {sT1}
            s_add_u32 {sHst}, {sT0}, {sW}
            s_lshl_b32 {sHst}, {sHst}, 10
            s_lshr_b32 {sT1}, {sW}, 1
            s_add_u32 {sHst2}, {sT0}, {sT1}
            s_add_u32 {sHst2}, {sHst2}, 4
            s_lshl_b32 {sHst2}, {sHst2}, 10
            s_cmp_ge_u32 {sM}, 3
            s_cselect_b32 {sT2}, {sT1}, 0
            s_cmp_lg_u32 {sT2}, 0
            s_cselect_b32 {sHx}, 1, 0
            s_mul_i32 {sT0}, {sW}, 11
            s_cmp_eq_u32 {sW}, 3
            s_cselect_b32 {sT2}, 6, 7
            s_add_u32 {sT2}, {sT2}, {sT0}
            s_mul_i32 {sT1}, {sT1}, {HRT}
            s_lshl_b32 {sHe}, {sT0}, 10
            s_add_u32 {sHe}, {sHe}, {sT1}
            s_lshl_b32 {sHl}, {sT2}, 10
            s_add_u32 {sHl}, {sHl}, {sT1}
            s_mul_i32 {sT1}, {sM}, {W2S}
            s_add_u32 {sT1}, {sT1}, {W2F}
            s_lshl_b32 {sW2e}, {sT0}, 12
            s_add_u32 {sW2e}, {sW2e}, {sT1}
            s_lshl_b32 {sW2l}, {sT2}, 12
            s_add_u32 {sW2l}, {sW2l}, {sT1}
            s_mul_i32 {sEe}, {sW}, {6*4096}
            s_add_u32 {sEe}, {sEe}, {LB}
            s_lshl_b32 {sWQ}, {sM}, 16
            s_lshl_b32 {sT1}, {sW}, 14
            s_add_u32 {sWQ}, {sWQ}, {sT1}
            s_mul_i32 {sW1}, {sM}, {12*16384}
            s_add_u32 {sW1}, {sW1}, {W1F}''')
        a.wait(eX)
        a.e(f's_lshl_b32 {sT1}, {sW}, 14\n v_add_u32 v36, {sT1}, {vL16}')
        for ks in range(16): a.e(f'ds_read_b128 {vr(64+4*ks)}, v36 offset:{ks*1024}')
        for ks in range(16):
            for i in range(4):
                r = 64+4*ks+i
                if ks == 0 and i == 0:
                    a.e(f'v_dot2_f32_bf16 v37, v{r}, {sOnes}, 0\n v_dot2_f32_bf16 v38, v{r}, v{r}, 0\n s_nop 2')
                else:
                    a.e(f'v_dot2c_f32_bf16 v37, {sOnes}, v{r}\n v_dot2c_f32_bf16 v38, v{r}, v{r}')
        a.e('''v_permlane32_swap_b32 v37, v38
            v_add_f32 v37, v37, v38
            v_mov_b32 v38, v37
            v_permlane16_swap_b32 v37, v38
            v_add_f32 v37, v37, v38''')
        a.e(f's_lshl_b32 {sT1}, {sW}, 6\n v_add_u32 v36, {sT1}, {vR4}')
        s.stats_finalize('v37', 'v38', 'v39', 'v36', 0)
        for i in range(4): a.e(f'v_mov_b32 v{108+i}, {sOnes}')
        for c in range(8):
            a.wait(eC[c]); a.waitall(vm=False); a.raw('s_barrier')
            if c >= 1 and c+3 < 8: eC.append(chunk_dma(c+3))
            if c == 4:
                with a.skip_if('s_cmp_ge_u32 s78, 123', 's_cbranch_scc1'):
                    a.wait(ePS)
                    a.e(f'buffer_store_dword {vTag}, {vFlagOff}, {SWS}, s101 offen sc1')
            for t in range(2):
                ks = 2*c+t
                for hh in range(2):
                    a.e(f'ds_read_b64_tr_b16 {ar(WK+4*ks+2*hh,2)}, v43 offset:{(c%4)*16384+t*4096+hh*512}')
                    a.e(f'ds_read_b64_tr_b16 {vr(WV+4*ks+2*hh,2)}, v43 offset:{(c%4)*16384+8192+t*4096+hh*512}')
            if c == 0:
                a.e(f'v_add_u32 v36, {sXme}, {vL16}')
                a.e(f'ds_read_b128 {vr(RES)}, v36\n ds_read_b128 {vr(RES+4)}, v36 offset:32768')
            if c >= 1:
                for ks in (2*c-2, 2*c-1):
                    a.e(f'{MF} v[48:51], v[108:111], {ar(WK+4*ks)}, {"0" if ks==0 else "v[48:51]"}')
                    a.e(f'{MF} v[52:55], v[108:111], {vr(WV+4*ks)}, {"0" if ks==0 else "v[52:55]"}')
            if c == 5:
                a.e(f's_lshl_b32 {sT0}, {sXC}, 7\n s_add_u32 {sT0}, {sT0}, {XF}')
                a.e(f'buffer_load_dword v56, {vFl}, {SWS}, {sT0} offen sc1')
        for ks in (14, 15):
            a.e(f'{MF} v[48:51], v[108:111], {ar(WK+4*ks)}, v[48:51]')
            a.e(f'{MF} v[52:55], v[108:111], {vr(WV+4*ks)}, v[52:55]')
        a.e(f'v_subrev_u32 v57, {sT}, v56\n v_cmp_le_u32 vcc, 16, v57')
        with a.skip_if(None, 's_cbranch_vccz'):
            l = a.label('Lxf'); a.raw(f'{l}:'); s.spin_guard()
            a.e(f's_lshl_b32 {sT0}, {sXC}, 7\n s_add_u32 {sT0}, {sT0}, {XF}')
            a.e(f'buffer_load_dword v56, {vFl}, {SWS}, {sT0} offen sc1'); a.waitall(lg=False)
            a.e(f'v_subrev_u32 v57, {sT}, v56\n v_cmp_le_u32 vcc, 16, v57'); a.raw(f's_cbranch_vccnz {l}')
        a.e(f'v_mul_f32 {vCsk}, {sLog2e}, v48\n v_mov_b32 {vCsv}, v52')
        a.e('v_cmp_ne_u32 vcc, s100, v56')
        a.waitall(); a.raw('s_barrier')
        s.stamp(1)
        if s.force == 'slow': a.raw('s_branch Lslow')
        elif s.force != 'fast': a.raw('s_cbranch_vccnz Lslow')

    def layer_consts(s):
        a = s.a
        a.e(f'''s_lshl_b32 {sT0}, {sL}, 16
            s_add_u32 {sO}, {sGA}, {sT0}
            s_add_u32 {sX1}, {sO}, {A_X1}
            s_mul_i32 {sH}, {sL}, {A_HL}
            s_add_u32 {sH}, {sH}, {sGA}
            s_add_u32 {sH}, {sH}, {A_H}
            s_lshl_b32 {sT0}, {sL}, 10
            s_add_u32 {sFL}, {sGA}, {sT0}
            s_add_u32 {sFL}, {sFL}, {A_FL}
            s_lshl_b32 {sT0}, {sM}, 2
            s_add_u32 {sT0}, {sT0}, {sW}
            s_lshl_b32 {sT1}, {sT0}, 2
            s_add_u32 {sFLme}, {sFL}, {sT1}
            s_lshl_b32 {sKV1}, {sL}, 20
            s_lshl_b32 {sT1}, {sXC}, 17
            s_add_u32 {sKV1}, {sKV1}, {sT1}
            s_lshl_b32 {sT1}, {sT0}, 12
            s_add_u32 {sKV1}, {sKV1}, {sT1}
            s_add_u32 {sKV1}, {sKV1}, {KV1}
            s_lshl_b32 {sKV2}, {sL}, 18
            s_lshl_b32 {sT1}, {sT0}, 13
            s_add_u32 {sKV2}, {sKV2}, {sT1}
            s_add_u32 {sKV2}, {sKV2}, {KV2}
            s_lshl_b32 {sST}, {sL}, 14
            s_add_u32 {sST}, {sST}, {sGA}
            s_add_u32 {sST}, {sST}, {A_ST}''')

    def pf_check(s, vp):
        a = s.a
        l = a.label('Lpf'); a.raw(f'{l}:'); s.spin_guard()
        a.e(f'v_lshrrev_b32 {vS0}, 2, {vL16}\n s_lshl_b32 {sT0}, {sM}, 9\n s_add_u32 {sT0}, {sT0}, {PF}')
        a.e(f'buffer_load_dword v{vp}, {vS0}, {SWS}, {sT0} offen sc1')
        a.e(f'buffer_load_dword v{vp+1}, {vS0}, {SWS}, {sT0} offen offset:256 sc1')
        a.waitall(lg=False)
        a.e(f'v_cmp_ne_u32 vcc, {sT}, v{vp}\n v_cmp_ne_u32 {sCm}, {sT}, v{vp+1}')
        a.e(f's_and_b32 s57, s57, 0x07ffffff\n s_or_b64 vcc, vcc, {sCm}')
        a.raw(f's_cbranch_vccnz {l}')

    def wq_loads(s, lo, hi):
        a = s.a
        for ks in range(lo, hi):
            if ks % 4 == 0: a.e(f's_add_u32 {sT0}, {sWQ}, {WQF+ks*1024}')
            a.e(f'buffer_load_dwordx4 {vr(128+4*ks)}, {vL16}, {SWS}, {sT0} offen offset:{(ks%4)*1024} sc1')
    def wo_dma(s):
        a = s.a; e = None
        for i in range(4):
            a.e(f's_lshl_b32 {sT0}, {sW4}, 2\n s_add_u32 m0, {sT0}, {LB+i*4096}\n s_add_u32 {sT0}, {sWQ}, {WOF+i*4096}')
            for k in range(4): e = a.e(f'buffer_load_dwordx4 {vL16}, {SWS}, {sT0} offen offset:{k*1024} sc1 lds')
        return e
    def w1_loads(s, slot):
        a = s.a; e = None
        if slot < 2: a.e(f's_lshl_b32 {sT1}, {sW4}, 3\n s_add_u32 {sT1}, {sT1}, {slot*16384}')
        else: a.e(f's_lshl_b32 {sT1}, {sW4}, 2\n s_add_u32 {sT1}, {sT1}, {8*16384}')
        a.e(f's_add_u32 {sT1}, {sT1}, {sW1}')
        for ks in range(16):
            if ks % 4 == 0 and ks: a.e(f's_add_u32 {sT1}, {sT1}, 4096')
            e = a.e(f'buffer_load_dwordx4 {ar(64*slot+4*ks)}, {vL16}, {SWS}, {sT1} offen offset:{(ks%4)*1024} sc1')
        return e
    def w2_slot_dma(s, i):
        a = s.a
        if i <= 6:
            lds = (sEe, (i-1)*4096); src = (sW2e, i*4096)
        else:
            lds = (sW4, (i-7)*16384); src = (sW2l, (i-7)*4096)
        a.e(f's_add_u32 m0, {lds[0]}, {lds[1]}')
        a.e(f's_add_u32 {sT0}, {src[0]}, {sP2k}')
        a.e(f's_add_u32 {sT0}, {sT0}, {src[1]}')
        a.e(f'buffer_load_dwordx4 {vL16}, {SWS}, {sT0} offen sc1 lds')
        a.e(f'buffer_load_dwordx4 {vL16}, {SWS}, {sT0} offen offset:1024 sc1 lds')
        a.e(f's_lshl_b32 {sT1}, {sP2k}, 1\n s_sub_u32 {sT0}, {sT0}, {sT1}')
        a.e(f'buffer_load_dwordx4 {vL16}, {SWS}, {sT0} offen offset:2048 sc1 lds')
        return a.e(f'buffer_load_dwordx4 {vL16}, {SWS}, {sT0} offen offset:3072 sc1 lds')
    def w2p1(s):
        a = s.a; es = {}
        for i in range(1, 6): es[i] = s.w2_slot_dma(i)
        with a.skip_if(f's_cmp_eq_u32 {sW}, 3', 's_cbranch_scc1'): es[6] = s.w2_slot_dma(6)
        return es

    def P1(s, prev):
        a = s.a
        RING=24; NR=6; ACC=[48,56]; STR=64; TMP=76; PK=92; VP=96; KVA=100; ZA=104; ONES=108
        st = {}
        def rd(n): return f'ds_read_b128 {vr(RING+4*(n%NR))}, {vL16} offset:{n*1024}'
        mf = []; fill = {}
        for n in range(64):
            sb, ks = divmod(n, 16); ac = ACC[sb%2]
            mf.append(f'{MF} {vr(ac)}, {vr(RING+4*(n%NR))}, {ar(WK+4*ks)}, {"0" if ks==0 else vr(ac)}')
            mf.append(f'{MF} {vr(ac+4)}, {vr(RING+4*(n%NR))}, {vr(WV+4*ks)}, {"0" if ks==0 else vr(ac+4)}')
        def epi(sb):
            ac = ACC[sb%2]; L = []
            RL, R, NB = STR, STR+4, STR+8
            L.append(f'ds_read_b128 {vr(NB)}, {vG16} offset:{ST_NB+sb*64}')
            L.append(f'ds_read_b128 {vr(RL)}, {vG16} offset:{ST_RL+sb*64}')
            L.append(f'ds_read_b128 {vr(R)}, {vG16} offset:{ST_RSTD+sb*64}')
            body = []
            for r in range(4): body.append(f'v_fma_f32 v{TMP+r}, v{NB+r}, {vCsk}, {sDelta}')
            for r in range(4): body.append(f'v_fma_f32 v{TMP+r}, v{ac+r}, v{RL+r}, v{TMP+r}')
            for r in range(4): body.append(f'v_exp_f32 v{TMP+4+r}, v{TMP+r} clamp')
            for r in range(4): body.append(f'v_mul_f32 v{TMP+8+r}, v{NB+r}, {vCsv}')
            for r in range(4): body.append(f'v_max_f32 v{TMP+r}, {sDelta}, v{TMP+r}')
            for r in range(4): body.append(f'v_fma_f32 v{TMP+8+r}, v{ac+4+r}, v{R+r}, v{TMP+8+r}')
            for r in range(4): body.append(f'v_fma_f32 v{TMP+r}, v{TMP+r}, {sLn2}, v{TMP+4+r}')
            o = 2*(sb%2)
            body += [f'v_cvt_pk_bf16_f32 v{VP+o}, v{TMP+8}, v{TMP+9}', f'v_cvt_pk_bf16_f32 v{VP+o+1}, v{TMP+10}, v{TMP+11}',
                     f'v_cvt_pk_bf16_f32 v{PK+o}, v{TMP}, v{TMP+1}', f'v_cvt_pk_bf16_f32 v{PK+o+1}, v{TMP+2}, v{TMP+3}']
            tail = []
            if sb % 2 == 1:
                c = "0" if sb == 1 else None
                tail = [f'{MF} {vr(KVA)}, {vr(PK)}, {vr(VP)}, {c or vr(KVA)}', f'{MF} {vr(ZA)}, {vr(PK)}, {vr(ONES)}, {c or vr(ZA)}']
            return L, body, tail
        def arrive(rt):
            def f():
                with s.layer1():
                    a.wait(st.get(('dma', rt)) or prev.get(('dma', rt)))
                    if rt in (1, 3): a.waitall(vm=False)
                    a.raw('s_barrier')
            return f
        def h1_fetch():
            with s.layer1():
                s.poll_check_prev(3, 1, 'v116')
                st['st1'] = s.stats_issue_prev(1, 112)
                a.e(f's_add_u32 {sT1}, {sGA}, {A_X2}')
                st[('dma', 2)] = s.tile_dma(sT1, 2); st[('dma', 3)] = s.tile_dma(sT1, 3)
        def h1_poll():
            with s.layer1(): s.poll_issue_prev(3, 1, 'v116')
        def h1_stats():
            with s.layer1(): s.stats_consume(1, 1, 112)
        def x2_flag():
            with s.layer1():
                a.wait(prev.get('x2st')); s.flag_post_prev(3, 1)
        def bulk():
            with s.layer0(): s.pf_check(112)
            s.wq_loads(0, 16)
            st['wo'] = s.wo_dma()
        for i in range(4): a.e(f'v_mov_b32 v{ONES+i}, {sOnes}')
        with s.layer1():
            a.wait(prev.get(('dma', 0))); a.raw('s_barrier')
        for n in range(NR-1): a.e(rd(n))
        with s.layer1(): s.stats_consume(1, 0, 112)
        for n in range(64):
            if n + NR - 1 < 64: fill.setdefault(2*n+1, []).append(rd(n+NR-1))
        for sb in range(1, 4):
            n = sb*16 - (NR-1)
            fill.setdefault(2*n-1+0, []).insert(0, arrive(sb))
        fill.setdefault(12, []).append(x2_flag)
        fill.setdefault(34, []).append(h1_poll)
        fill.setdefault(44, []).append(h1_fetch)
        fill.setdefault(70, []).append(h1_stats)
        fill.setdefault(66, []).append(bulk)
        for sb in range(3):
            L, body, tail = epi(sb)
            b0 = 32*(sb+1)
            spread(fill, L, b0+0, per=1, step=2)
            k = b0 + 6
            idx = 0
            while idx < len(body):
                cnt = 2 if k % 2 == 0 else 1
                for it in body[idx:idx+cnt]: fill.setdefault(k, []).append(it)
                idx += cnt; k += 1
            for t in tail: fill.setdefault(k+1, []).append(t)
        weave(a, mf, fill)
        L, body, tail = epi(3)
        for x in L + body + tail: a.e(x)
        G0 = 76
        a.e(f'''v_cvt_pk_bf16_f32 v{G0}, v{KVA}, v{KVA+1}
            v_cvt_pk_bf16_f32 v{G0+1}, v{KVA+2}, v{KVA+3}
            v_cvt_pk_bf16_f32 v{G0+4}, v{ZA}, v{ZA+1}
            v_cvt_pk_bf16_f32 v{G0+5}, v{ZA+2}, v{ZA+3}
            v_mov_b32 v{G0+3}, {vTag}
            v_cndmask_b32 v{G0+2}, v{G0+4}, v{G0+5}, {sOdd}
            s_lshl_b32 {sT0}, {sJ}, 10
            s_add_u32 {sT0}, {sT0}, {sKV1}''')
        a.e(f'buffer_store_dwordx4 {vr(G0)}, {vL16}, {SWS}, {sT0} offen{s.sc}')
        return st

    def poll_issue_prev(s, hop, half, vp):
        a = s.a; a.e(f's_sub_u32 {sT0}, {sFL}, 1024')
        return a.e(f'buffer_load_dword {vp}, {vFl}, {SWS}, {sT0} offen offset:{hop*256+half*128} sc1')
    def poll_check_prev(s, hop, half, vp):
        a = s.a
        a.e(f'v_cmp_ne_u32 vcc, {sT}, {vp}')
        with a.skip_if(None, 's_cbranch_vccz'):
            l = a.label('Lpoll'); a.raw(f'{l}:'); s.spin_guard()
            s.poll_issue_prev(hop, half, vp); a.waitall(lg=False)
            a.e(f'v_cmp_ne_u32 vcc, {sT}, {vp}'); a.raw(f's_cbranch_vccnz {l}')
    def flag_post_prev(s, hop, half):
        a = s.a; a.e(f's_sub_u32 {sT0}, {sFLme}, 1024')
        return a.e(f'buffer_store_dword {vTag}, {vFlagOff}, {SWS}, {sT0} offen offset:{hop*256+half*128}{s.sc}')
    def stats_issue_prev(s, hf, b):
        a = s.a
        a.e(f's_sub_u32 {sT0}, {sST}, {16384-8192-hf*4096}')
        return a.e(f'buffer_load_dwordx4 {vr(b)}, {vStatLd}, {SWS}, {sT0} offen sc1')

    def kv_sum(s, base, n, acc):
        a = s.a
        for i in range(n):
            g = base + 4*i
            for k, (src, sel) in enumerate([(0,sLo),(0,sHi),(1,sLo),(1,sHi),(2,sLo),(2,sHi)]):
                if i == 0: a.e(f'v_dot2_f32_bf16 v{acc+k}, v{g+src}, {sel}, 0')
                else: a.e(f'v_dot2_f32_bf16 v{acc+k}, v{g+src}, {sel}, v{acc+k}')
            if i == 0: a.e(f'v_cmp_ne_u32 {sAcc}, {sT}, v{g+3}')
            else: a.e(f'v_cmp_ne_u32 {sCm}, {sT}, v{g+3}\n s_or_b64 {sAcc}, {sAcc}, {sCm}')

    def Q(s, st):
        a = s.a
        RING=24; NR=8; QA=112; CS=64; PQ=56; TMP=76; ONES=108
        for ks in range(16): a.e(f'{MF} {vr(CS)}, {vr(128+4*ks)}, {vr(ONES)}, {"0" if ks==0 else vr(CS)}')
        order = [(rt0+i, ks) for rt0 in (0,2) for ks in range(16) for i in range(2)]
        def rd(n): rt, ks = order[n]; return f'ds_read_b128 {vr(RING+4*(n%NR))}, {vL16} offset:{(rt*16+ks)*1024}'
        mf = [f'{MF} {vr(QA+4*rt)}, {vr(128+4*ks)}, {vr(RING+4*(n%NR))}, {"0" if ks==0 else vr(QA+4*rt)}' for n,(rt,ks) in enumerate(order)]
        fill = {}
        for n in range(NR-1): a.e(rd(n))
        for n in range(64):
            if n+NR-1 < 64: fill.setdefault(n, []).append(rd(n+NR-1))
        fill.setdefault(2, []).append('\n'.join(f'v_mul_f32 v{CS+r}, {sLog2e}, v{CS+r}' for r in range(4)))
        def reducer():
            with a.skip_if(f's_cmp_lg_u32 {sW}, {sJ}', 's_cbranch_scc1'):
                l = a.label('Lred'); a.raw(f'{l}:'); s.spin_guard()
                for i in range(4): a.e(f'buffer_load_dwordx4 {vr(76+4*i)}, {vL16}, {SWS}, {sKV1} offen offset:{i*1024} sc1')
                s.kv_sum(76, 4, 92)
                a.e(f's_cmp_lg_u64 {sAcc}, 0'); a.raw(f's_cbranch_scc1 {l}')
                a.e(f'''v_cvt_pk_bf16_f32 v76, v92, v93
                    v_cvt_pk_bf16_f32 v77, v94, v95
                    v_cvt_pk_bf16_f32 v78, v96, v97
                    s_lshl_b32 {sT0}, {sXC}, 10
                    s_add_u32 {sT0}, {sT0}, {sKV2}''')
                a.e(f'buffer_store_dwordx4 v[76:79], {vL16}, {SWS}, {sT0} offen sc1')
        def epi(rt):
            L = [f'ds_read_b32 v68, {vR4} offset:{ST_NB+rt*64}', f'ds_read_b32 v69, {vR4} offset:{ST_RL+rt*64}']
            T = 100
            for r in range(4): L.append(f'v_fma_f32 v{T+r}, v68, v{CS+r}, {sDelta}')
            for r in range(4): L.append(f'v_fma_f32 v{T+r}, v{QA+4*rt+r}, v69, v{T+r}')
            for r in range(4): L.append(f'v_exp_f32 v{T+4+r}, v{T+r} clamp')
            for r in range(4): L.append(f'v_max_f32 v{T+r}, {sDelta}, v{T+r}')
            for r in range(4): L.append(f'v_fma_f32 v{T+r}, v{T+r}, {sLn2}, v{T+4+r}')
            L += [f'v_cvt_pk_bf16_f32 v{PQ+2*rt}, v{T}, v{T+1}', f'v_cvt_pk_bf16_f32 v{PQ+2*rt+1}, v{T+2}, v{T+3}']
            return L
        fill.setdefault(20, []).append(reducer)
        spread(fill, epi(0)+epi(1), 36, per=2)
        weave(a, mf, fill)
        l2 = a.label('Lst2'); lok = a.label('Lst2ok')
        def st2_loads():
            for i in range(8):
                if i % 4 == 0: a.e(f's_add_u32 {sT0}, {sKV2}, {i*1024}')
                a.e(f'buffer_load_dwordx4 {vr(24+4*i)}, {vL16}, {SWS}, {sT0} offen offset:{(i%4)*1024} sc1')
        for x in epi(2)+epi(3): a.e(x)
        a.wait(st['wo']); a.raw('s_barrier')
        a.e(f's_add_u32 {sT0}, {sP2k}, {LB}\n v_add_u32 {vS2}, {sT0}, {vL16}')
        st2_loads()
        def wo_rd(f): ks, sl = divmod(f, 2); return f'ds_read_b128 {vr(64+4*f)}, {vS2} offset:{ks*4096+sl*1024}'
        for f in range(8, 32): a.e(wo_rd(f))
        s.stamp(3)
        s.kv_sum(24, 8, 64)
        a.e(f's_cmp_lg_u64 {sAcc}, 0')
        with a.skip_if(None, 's_cbranch_scc0'):
            lo = a.label('Lst2o'); a.raw(f'{lo}:')
            l = a.label('Lst2p'); a.raw(f'{l}:'); s.spin_guard()
            a.e(f'v_lshlrev_b32 {vS0}, 8, {vFl}\n v_and_b32 {vS0}, 0x1c00, {vS0}')
            a.e(f'buffer_load_dword {vS1}, {vS0}, {SWS}, {sKV2} offen offset:1020 sc1'); a.waitall(lg=False)
            a.e(f'v_cmp_ne_u32 vcc, {sT}, {vS1}'); a.raw(f's_cbranch_vccnz {l}')
            st2_loads(); s.kv_sum(24, 8, 64)
            a.e(f's_cmp_lg_u64 {sAcc}, 0'); a.raw(f's_cbranch_scc1 {lo}')
        s.stamp(4)
        a.e('''v_cvt_pk_bf16_f32 v70, v64, v65
            v_cvt_pk_bf16_f32 v71, v66, v67
            v_cvt_pk_bf16_f32 v74, v68, v69
            v_mov_b32_dpp v72, v74 quad_perm:[0,0,2,2] row_mask:0xf bank_mask:0xf
            v_mov_b32_dpp v73, v74 quad_perm:[1,1,3,3] row_mask:0xf bank_mask:0xf''')
        for rt in range(4): a.e(f'{MF16} {vr(24+4*rt)}, v[72:73], {vr(PQ+2*rt,2)}, 0')
        for rt in range(4): a.e(f'{MF16} {vr(40+4*rt)}, v[70:71], {vr(PQ+2*rt,2)}, 0')
        for rt in range(4): a.e(f'v_add_f32 v{24+4*rt}, 0x{f2u(1e-6):x}, v{24+4*rt}')
        for rt in range(4): a.e(f'v_rcp_f32 v{24+4*rt}, v{24+4*rt}')
        a.e(f's_add_u32 {sT0}, {sO}, {sOme}')
        for rt in range(4):
            for r in range(4): a.e(f'v_mul_f32 v{40+4*rt+r}, v{40+4*rt+r}, v{24+4*rt}')
            a.e(f'v_cvt_pk_bf16_f32 v{76+2*rt}, v{40+4*rt}, v{41+4*rt}\n v_cvt_pk_bf16_f32 v{77+2*rt}, v{42+4*rt}, v{43+4*rt}')
            e = a.e(f'buffer_store_dwordx2 {vr(76+2*rt,2)}, {vO8}, {SWS}, {sT0} offen{s.sc}')
            if rt < 3: a.e(f's_add_u32 {sT0}, {sT0}, 16384')
        a.wait(e)
        s.flag_post(0, 0)
        for f in range(0, 8): a.e(wo_rd(f))
        s.stamp(5)

    def P2(s):
        a = s.a; st = {}
        RING=24; NR=6; ACC=[48,56]
        with s.layer0(): s.w1_loads(0)
        s.poll_issue(0, 0, vS3); s.poll_check(0, 0, vS3)
        ch = []
        for hf in range(2):
            for kh in range(2):
                a.e(f's_add_u32 m0, {sOW}, {hf*32768+kh*8192}\n s_add_u32 {sT0}, {sO}, m0')
                for i in range(4): e = a.e(f'buffer_load_dwordx4 {vL16}, {SWS}, {sT0} offen offset:{i*1024} sc1 lds')
                ch.append(e)
        with s.layer0(): s.w1_loads(1)
        s.stamp(6)
        a.e(f's_and_b32 {sT0}, {sOW}, 0x4000\n v_add_u32 {vS2}, {sT0}, {vL16}')
        def rd(n): hf, ks = divmod(n, 16); return f'ds_read_b128 {vr(RING+4*(n%NR))}, {vS2} offset:{hf*32768+ks*1024}'
        mf = []; fill = {}
        for n in range(32):
            hf, ks = divmod(n, 16)
            for sl in range(2):
                ac = ACC[hf]+4*sl
                mf.append(f'{MF} {vr(ac)}, {vr(64+4*(2*ks+sl))}, {vr(RING+4*(n%NR))}, {"0" if ks==0 else vr(ac)}')
        def arrive(c, lg=False):
            def f():
                a.wait(ch[c])
                if lg: a.waitall(vm=False)
                a.raw('s_barrier')
            return f
        arrive(0, True)()
        for n in range(NR-1): a.e(rd(n))
        for n in range(32):
            if n+NR-1 < 32: fill.setdefault(2*n+1, []).append(rd(n+NR-1))
        for c in range(1, 4):
            n = c*8 - (NR-1)
            fill.setdefault(2*n, []).append(arrive(c))
        def resid_add(hf):
            L = []
            for i in range(4):
                L.append(f'v_dot2c_f32_bf16 v{ACC[hf]+2*i}, {sLo}, v{RES+4*hf+i}')
                L.append(f'v_dot2c_f32_bf16 v{ACC[hf]+2*i+1}, {sHi}, v{RES+4*hf+i}')
            return L + s.x_epilogue(ACC[hf], hf, 0)
        k = spread(fill, resid_add(0), 36, per=2)
        def pub0(): st['p0'] = s.x_publish(0, 0)
        fill.setdefault(k+1, []).append(pub0)
        def w2():
            with s.layer1(): st['w2'] = s.w2p1()
        weave(a, mf, fill)
        for x in resid_add(1): a.e(x)
        a.wait(st['p0']); s.flag_post(1, 0)
        e = s.x_publish(1, 0)
        a.raw('s_barrier')
        a.wait(e); s.flag_post(1, 1)
        w2()
        with s.layer0(): s.w1_loads(2)
        s.stamp(7)
        return st

    def P3(s, st2):
        a = s.a; st = dict(w2={})
        RING=24; NR=6; ACC=[48,60]; CS=72; NM=84; PKD=[86,92]; HELD=176; SL=100
        s.poll_issue(1, 0, vS3); s.poll_check(1, 0, vS3)
        s.stats_issue(0, 0, SL)
        st[0] = s.tile_dma(sX1, 0); st[1] = s.tile_dma(sX1, 1)
        s.poll_issue(1, 1, vS3)
        with s.layer0():
            for i in range(4): a.e(f'v_mov_b32 v{108+i}, {sOnes}')
            for ks in range(16):
                for sl in range(3): a.e(f'{MF} {vr(CS+4*sl)}, {ar(64*sl+4*ks)}, v[108:111], {"0" if ks==0 else vr(CS+4*sl)}')
            a.e(f's_mul_i32 {sT0}, {sW}, 192\n v_add_u32 {vS2}, {sT0}, {vG16}')
            for sl in range(3): a.e(f'ds_write_b128 {vS2}, {vr(CS+4*sl)} offset:{CSW1+sl*64}')
        with s.layer1():
            a.e(f's_mul_i32 {sT0}, {sW}, 192\n v_add_u32 {vS2}, {sT0}, {vG16}')
            for sl in range(3): a.e(f'ds_read_b128 {vr(CS+4*sl)}, {vS2} offset:{CSW1+sl*64}')
        s.stats_consume(0, 0, SL)
        s.stamp(8)
        def rd(n): return f'ds_read_b128 {vr(RING+4*(n%NR))}, {vL16} offset:{n*1024}'
        mf = []; fill = {}
        for n in range(64):
            sb, ks = divmod(n, 16)
            for sl in range(3):
                ac = ACC[sb%2]+4*sl
                mf.append(f'{MF} {vr(ac)}, {ar(64*sl+4*ks)}, {vr(RING+4*(n%NR))}, {"0" if ks==0 else vr(ac)}')
        def arrive(rt, lg=False):
            def f():
                a.wait(st[rt])
                if lg: a.waitall(vm=False)
                a.raw('s_barrier')
            return f
        arrive(0)()
        for n in range(NR-1): a.e(rd(n))
        for n in range(64):
            if n+NR-1 < 64: fill.setdefault(3*n+2, []).append(rd(n+NR-1))
        for sb in range(1, 4):
            n = sb*16 - (NR-1)
            fill.setdefault(3*n, []).append(arrive(sb, sb in (1,3)))
        def h1_fetch():
            s.poll_check(1, 1, vS3)
            s.stats_issue(0, 1, SL)
            st[2] = s.tile_dma(sX1, 2); st[3] = s.tile_dma(sX1, 3)
        fill.setdefault(6, []).append(h1_fetch)
        fill.setdefault(60, []).append(lambda: s.stats_consume(0, 1, SL))
        def w2a():
            with s.layer0(): st['w2_0'] = s.w2p1()
        fill.setdefault(40, []).append(w2a)
        def held():
            a.e(f's_add_u32 {sT0}, {sW2e}, {sP2k}')
            a.e(f'buffer_load_dwordx4 {vr(HELD)}, {vL16}, {SWS}, {sT0} offen sc1')
            a.e(f'buffer_load_dwordx4 {vr(HELD+4)}, {vL16}, {SWS}, {sT0} offen offset:1024 sc1')
            a.e(f's_lshl_b32 {sT1}, {sP2k}, 1\n s_sub_u32 {sT0}, {sT0}, {sT1}')
            a.e(f'buffer_load_dwordx4 {vr(HELD+8)}, {vL16}, {SWS}, {sT0} offen offset:2048 sc1')
            a.e(f'buffer_load_dwordx4 {vr(HELD+12)}, {vL16}, {SWS}, {sT0} offen offset:3072 sc1')
        fill.setdefault(50, []).append(held)
        def late(i):
            def f(): st['w2'][i] = s.w2_slot_dma(i)
            return f
        fill.setdefault(3*(32-NR+1)+1, []).append(late(7))
        fill.setdefault(3*(48-NR+1)+1, []).append(late(8))
        def epi(sb):
            ac = ACC[sb%2]; p = PKD[sb%2]; L = [f'ds_read_b32 v{NM+sb%2}, {vR4} offset:{1024+ST_NM+sb*64}']
            B = []
            for i in range(12): B.append(f'v_fma_f32 v{ac+i}, v{NM+sb%2}, v{CS+i}, v{ac+i}')
            for i in range(6): B.append(f'v_cvt_pk_bf16_f32 v{p+i}, v{ac+2*i}, v{ac+2*i+1}')
            for i in range(6): B.append(f'v_pk_max_i16 v{p+i}, v{p+i}, 0')
            def stores():
                a.e(f's_add_u32 {sT0}, {sH}, {sHst}\n s_add_u32 {sT0}, {sT0}, {sb*HRT}')
                a.e(f'buffer_store_dwordx4 {vr(p)}, {vL16}, {SWS}, {sT0} offen{s.sc}')
                a.e(f's_add_u32 {sT0}, {sH}, {sHst2}\n s_add_u32 {sT1}, {sGA}, {A_JUNK}\n s_cmp_lg_u32 {sHx}, 0\n s_cselect_b32 {sT0}, {sT1}, {sT0}\n s_add_u32 {sT0}, {sT0}, {sb*HRT}')
                st[('hs', sb)] = a.e(f'buffer_store_dwordx2 {vr(p+4,2)}, {vO8}, {SWS}, {sT0} offen{s.sc}')
            return L, B, stores
        for sb in range(3):
            L, B, stores = epi(sb); b0 = 48*(sb+1)
            fill.setdefault(b0, []).extend(L)
            k = b0+6; idx = 0
            while idx < len(B):
                cnt = 1 if k % 3 == 2 else 2
                for it in B[idx:idx+cnt]: fill.setdefault(k, []).append(it)
                idx += cnt; k += 1
            fill.setdefault(k, []).append(stores)
        def hflag0():
            a.wait(st[('hs', 1)]); s.flag_post(2, 0)
        fill.setdefault(48*3+3, []).append(hflag0)
        fill.setdefault(48*3+30, []).append(lambda: s.poll_issue(2, 0, vS3))
        weave(a, mf, fill)
        L, B, stores = epi(3)
        a.raw('s_barrier')
        for x in L + B: a.e(x)
        stores()
        st['w2p1'] = st2.get('w2')
        s.stamp(9)
        return st

    def P4(s, st):
        a = s.a; out = {}
        ACC=[24,56]; AR=88; NA=7; BR=[144,160]; HELD=176
        def aload(n):
            ps, i = divmod(n, 11); r = AR + 8*(n % NA)
            base, j = (sHe, i) if i <= 6 else (sHl, i-7)
            if j % 4 == 0:
                a.e(f's_add_u32 {sA0}, {sH}, {base}\n s_add_u32 {sA0}, {sA0}, {ps*2*HRT + j*1024}')
                a.e(f's_and_b32 {sT0}, {sW}, 2\n s_mul_i32 {sT0}, {sT0}, {HRT}\n s_sub_u32 {sA1}, {sA0}, {sT0}\n s_add_u32 {sA1}, {sA1}, {HRT}')
            a.e(f'buffer_load_dwordx4 {vr(r)}, {vL16}, {SWS}, {sA0} offen offset:{(j%4)*1024} sc1')
            a.e(f'buffer_load_dwordx4 {vr(r+4)}, {vL16}, {SWS}, {sA1} offen offset:{(j%4)*1024} sc1')
        def breg(n):
            ps, i = divmod(n, 11)
            return HELD if i == 0 else BR[(ps*10+i) % 2]
        def bread(n):
            ps, i = divmod(n, 11)
            if i == 0: return []
            L = []
            def w():
                if ps == 0:
                    for d in (st['w2'], st.get('w2p1') or {}, st.get('w2_0') or {}):
                        if i in d: a.wait(d[i])
            L.append(w)
            for c in range(4):
                if i <= 6: L.append(f'ds_read_b128 {vr(breg(n)+4*c)}, {vS0} offset:{(i-1)*4096+c*1024}')
                else: L.append(f'ds_read_b128 {vr(breg(n)+4*c)}, {vS1} offset:{(i-7)*16384+c*1024}')
            return L
        a.e(f'v_add_u32 {vS0}, {sEe}, {vL16}\n v_add_u32 {vS1}, {sW4}, {vL16}')
        s.poll_check(2, 0, vS3)
        for n in range(NA-1): aload(n)
        st['w2'][9] = s.w2_slot_dma(9); st['w2'][10] = s.w2_slot_dma(10)
        a.wait(st[('hs', 3)]); s.flag_post(2, 1)
        s.stamp(10)
        def xwrite(ps):
            L = []
            for t in range(1, 4):
                for sl in range(2):
                    L.append(f'ds_write_b128 {vS0}, {vr(ACC[ps]+16*(t//2)+8*(t%2)+4*sl)} offset:{ps*8192+t*2048+sl*1024}')
            return L
        def xread(ps):
            L = []
            for t in range(1, 4):
                L.append(f's_xor_b32 {sT0}, {sW}, {t}\n s_mul_i32 {sT0}, {sT0}, {6*4096}\n s_add_u32 {sT0}, {sT0}, {LB}\n v_add_u32 {vS2}, {sT0}, {vL16}')
                for sl in range(2):
                    L.append(f'ds_read_b128 {vr(ACC[ps]+8*t+4*sl)}, {vS2} offset:{ps*8192+t*2048+sl*1024}')
            L.append(f's_and_b32 {sT0}, {sW}, 2\n s_lshl_b32 {sT0}, {sT0}, 5\n v_add_u32 {vS2}, {sT0}, {vR4}')
            L.append(f'ds_read_b32 {vS2}, {vS2} offset:{1024+ST_RSTD+ps*128}')
            return L
        def xsum(ps):
            ac = ACC[ps]; L = []
            for t in range(1, 4):
                for i in range(8): L.append(f'v_add_f32 v{ac+i}, v{ac+i}, v{ac+8*t+i}')
            for i in range(8): L.append(f'v_mul_f32 v{ac+i}, v{ac+i}, {vS2}')
            for i in range(4):
                L.append(f'v_dot2c_f32_bf16 v{ac+2*i}, {sLo}, v{RES+4*ps+i}')
                L.append(f'v_dot2c_f32_bf16 v{ac+2*i+1}, {sHi}, v{RES+4*ps+i}')
            return L + s.x_epilogue(ac, ps, 1)
        def publish(ps):
            with s.layer0(): out[('pub', ps)] = publish_x2(ps)
            with s.layer1():
                a.e(f'v_lshrrev_b32 {vS2}, 4, {vL16}\n v_and_b32 {vS2}, 15, {vS2}\n v_lshlrev_b32 {vS2}, 10, {vS2}\n v_lshrrev_b32 v{ACC[ps]+8}, 8, {vL16}\n v_lshl_add_u32 {vS2}, v{ACC[ps]+8}, 4, {vS2}')
                a.e(f's_add_u32 {sT0}, {sOutO}, {ps*32768}')
                a.e(f'buffer_store_dwordx4 {vr(RES+4*ps)}, {vS2}, {SOUT}, {sT0} offen')
        def publish_x2(ps):
            global vS0, vS1
            o0, o1 = vS0, vS1
            vS0, vS1 = f'v{ACC[ps]+8}', f'v{ACC[ps]+9}'
            e = s.x_publish(ps, 1)
            vS0, vS1 = o0, o1
            return e
        mf = []; fill = {}
        for n in range(22):
            ps, i = divmod(n, 11); r = AR + 8*(n % NA); grp = []
            for c in range(4):
                for t2 in range(2):
                    ac = ACC[ps] + 16*t2 + 4*c
                    grp.append(f'{MF} {vr(ac)}, {vr(breg(n)+4*c)}, {vr(r+4*t2)}, {"0" if i==0 else vr(ac)}')
            if i == 6:
                def mk(grp=grp, r=r, n=n):
                    def f():
                        pend = [e for k in a.q for e in a.q[k] if not e.done and (e.defs & (set(regs_of(vr(r,8))) | set(regs_of(vr(breg(n),16)))))]
                        a.wait(*pend)
                        with a.skip_if(f's_cmp_eq_u32 {sW}, 3', 's_cbranch_scc1'):
                            for g in grp: a.e(g)
                    return f
                mf.append(mk()); mf += [lambda: None]*7
            else: mf += grp
            b = 8*n
            if n+1 < 22: spread(fill, bread(n+1), b+1, per=1)
            if n+NA-1 < 22:
                if n+NA-1 == 11: fill.setdefault(b+6, []).append(lambda: s.poll_check(2, 1, vS3))
                fill.setdefault(b+6, []).append(lambda n=n: aload(n+NA-1))
        fill.setdefault(8*2+7, []).append(lambda: s.poll_issue(2, 1, vS3))
        k0 = 8*14
        spread(fill, xwrite(0), k0, per=1)
        fill.setdefault(8*15+2, []).append(lambda: (a.waitall(vm=False), a.raw('s_barrier')))
        spread(fill, xread(0), 8*15+3, per=2)
        k = spread(fill, xsum(0), 8*18, per=2)
        fill.setdefault(k, []).append(lambda: publish(0))
        weave(a, mf, fill)
        s.stamp(11)
        for x in xwrite(1): a.e(x)
        with s.layer0():
            a.wait(out[('pub', 0)]); s.flag_post(3, 0)
            s.poll_issue(3, 0, vS3)
        a.waitall(vm=False); a.raw('s_barrier')
        for x in xread(1): a.e(x)
        nxt = {}
        for x in xsum(1): a.e(x)
        publish(1)
        with s.layer0():
            s.poll_check(3, 0, vS3)
            s.stats_issue(1, 0, 112)
            a.e(f's_add_u32 {sT1}, {sGA}, {A_X2}')
            nxt[('dma', 0)] = s.tile_dma(sT1, 0); nxt[('dma', 1)] = s.tile_dma(sT1, 1)
        nxt['x2st'] = out[('pub', 1)]
        return nxt

    def main(s, fast):
        a = s.a; s.sc = '' if fast else ' sc1'
        tag = 'F' if fast else 'S'
        save_ins = len(a.ins); q0 = {k: list(v) for k, v in a.q.items()}
        prev = {}
        for it in range(2):
            del a.ins[save_ins:]
            a.q = {k: list(v) for k, v in q0.items()}
            if it == 1:
                a.nopt += 1; oid = (a.nopt,)
                for k in a.q:
                    for e in carried[k]:
                        e.opt = oid + e.opt; e.done = False
                        a.q[k].append(e)
            a.raw(f'Lloop{tag}:')
            s.layer_consts()
            st = s.P1(prev); s.stamp(2)
            if s.stop == 'P1': break
            s.Q(st)
            if s.stop == 'Q': break
            st2 = s.P2()
            if s.stop == 'P2': break
            st3 = s.P3(st2)
            if s.stop == 'P3': break
            prev = s.P4(st3)
            s.stamp(12)
            carried = {k: [e for e in a.q[k] if not e.done] for k in a.q}
            if s.stop == 'P4': break
            a.e(f's_add_u32 {sL}, {sL}, 1\n s_cmp_lt_u32 {sL}, 2\n s_nop 4')
            a.raw(f's_cbranch_scc1 Lloop{tag}')
        a.q = {'vm': [], 'lg': []}
        a.raw('s_branch Lfin')

    def build(s):
        a = s.a
        s.startup()
        s.main(True)
        a.raw('Lslow:')
        s.main(False)
        a.raw('Lfin:')
        a.e(f's_or_b32 {sT0}, s2, {sW}')
        with a.skip_if(f's_cmp_lg_u32 {sT0}, 0', 's_cbranch_scc1'):
            a.e(f'buffer_store_dword {vTag}, {vFlagOff}, {SWS}, 0 offen sc1')
        if s.prof:
            a.raw(f's_memrealtime s[74:75]'); a.raw('s_waitcnt lgkmcnt(0)')
            a.e(f's_mov_b32 s{sPR+25}, s74')
            a.e(f's_lshl_b32 {sT0}, s2, 2\n s_add_u32 {sT0}, {sT0}, {sW}\n s_lshl_b32 {sT0}, {sT0}, 7\n s_add_u32 {sT0}, {sT0}, {PROF}')
            for i in range(26):
                a.e(f'v_mov_b32 v24, s{sPR+i}')
                a.e(f'buffer_store_dword v24, {vFlagOff}, {SWS}, {sT0} offen offset:{4*i}')
        a.raw('Lbail:'); a.raw('Lend:'); a.raw('s_endpgm'); a.raw('Lcode_end:')
        hdr = open('interleave_layers__linear_attn_block__dense_activation_relu__prompt.s.ref').read().split('\n')
        top = [l for l in hdr if l.startswith(';') and '@launch' not in l]
        txt = '\n'.join(top) + f'\n; @launch grid=(256,1,1) block=(256,1,1) lds={LDSZ}\n'
        txt += f'.amdgcn_target "amdgcn-amd-amdhsa--gfx950"\n.text\n.globl {KNAME}\n.p2align 8\n.type {KNAME},@function\n{KNAME}:\n'
        txt += a.text()
        txt += f'''.section .rodata,"a"
.p2align 6
.amdhsa_kernel {KNAME}
  .amdhsa_next_free_vgpr 512
  .amdhsa_next_free_sgpr 102
  .amdhsa_accum_offset 256
  .amdhsa_group_segment_fixed_size 0
  .amdhsa_kernarg_size 72
  .amdhsa_user_sgpr_count 2
  .amdhsa_user_sgpr_kernarg_segment_ptr 1
  .amdhsa_system_sgpr_workgroup_id_x 1
.end_amdhsa_kernel
'''
        return txt

if __name__ == '__main__':
    import argparse
    p = argparse.ArgumentParser(); p.add_argument('-o', default='k.s'); p.add_argument('--prof', action='store_true'); p.add_argument('--stop'); p.add_argument('--force')
    x = p.parse_args()
    open(x.o, 'w').write(G(x.prof, x.stop, x.force).build())
```

```python
import re
REG = re.compile(r'\b([vas])\[(\d+):(\d+)\]|\b([vas])(\d+)\b|\b(vcc|exec|m0|scc)\b')
TRANS = ('v_exp_f32','v_log_f32','v_rcp_f32','v_rsq_f32','v_sqrt_f32','v_sin_f32','v_cos_f32')

def regs_of(tok):
    out = []
    for m in REG.finditer(tok):
        if m.group(1):
            out += [(m.group(1), i) for i in range(int(m.group(2)), int(m.group(3)) + 1)]
        elif m.group(4):
            out.append((m.group(4), int(m.group(5))))
        else:
            out.append((m.group(6), 0))
    return out

class Ins:
    __slots__ = ('text','op','kind','defs','uses','opt','srcC','srcAB','wide','ws')
    def __init__(s, text):
        s.text = text; s.opt = (); s.srcC = set(); s.srcAB = set(); s.wide = False; s.ws = 1
        t = text.split(';')[0].strip()
        if t.endswith(':'):
            s.op = 'label'; s.kind = 'label'; s.defs = set(); s.uses = set(); s.ws = 0; return
        if t.startswith('.'):
            s.op = 'dir'; s.kind = 'label'; s.defs = set(); s.uses = set(); s.ws = 0; return
        parts = t.split(None, 1)
        op = s.op = parts[0]
        ops = [o.strip() for o in parts[1].split(',')] if len(parts) > 1 else []
        R = [regs_of(o) for o in ops]
        D = set(); U = set()
        if op.startswith('v_mfma'):
            s.kind = 'mfma'; D |= set(R[0]); s.srcAB = set(R[1]) | set(R[2]); s.srcC = set(R[3]); U |= s.srcAB | s.srcC
        elif op.startswith('ds_read') or op.startswith('ds_bpermute') or op.startswith('ds_swizzle'):
            s.kind = 'ds_r'; D |= set(R[0]); [U.update(r) for r in R[1:]]
        elif op.startswith('ds_write'):
            s.kind = 'ds_w'; [U.update(r) for r in R]
        elif op.startswith('buffer_load') or op.startswith('global_load'):
            if re.search(r'\blds\b', t) or 'load_lds' in op:
                s.kind = 'vm_dma'; [U.update(r) for r in R]; U.add(('m0', 0))
            else:
                s.kind = 'vm_ld'; D |= set(R[0]); [U.update(r) for r in R[1:]]
        elif op.startswith('buffer_store') or op.startswith('global_store') or op.startswith('buffer_atomic'):
            s.kind = 'vm_st'; [U.update(r) for r in R]
            s.wide = op.endswith('x4') or op.endswith('x3')
            s.srcC = set(R[0]) if op.startswith('buffer') else set(R[1])
        elif op in ('buffer_wbl2', 'buffer_inv'):
            s.kind = 'vm_st'
        elif op.startswith('s_load') or op in ('s_memtime', 's_memrealtime'):
            s.kind = 'smem'; D |= set(R[0]); [U.update(r) for r in R[1:]]
        elif op == 's_waitcnt': s.kind = 'wait'
        elif op == 's_nop': s.kind = 'nop'; s.ws = int(ops[0], 0) + 1
        elif op == 's_barrier': s.kind = 'barrier'
        elif op.startswith('s_cbranch') or op in ('s_branch', 's_endpgm', 's_sleep', 's_setprio'):
            s.kind = 'branch'
            if 'vcc' in op: U.add(('vcc', 0))
            if 'scc' in op: U.add(('scc', 0))
            if 'exec' in op: U.add(('exec', 0))
        elif op.startswith('s_cmp') or op.startswith('s_bitcmp'):
            s.kind = 'salu'; [U.update(r) for r in R]; D.add(('scc', 0))
        elif op.startswith('s_'):
            s.kind = 'salu'; D |= set(R[0]); [U.update(r) for r in R[1:]]
        elif op.startswith('v_'):
            base = op.replace('_e32', '').replace('_e64', '').replace('_dpp', '')
            s.kind = 'valu'
            if base in TRANS: s.kind = 'trans'
            if base.startswith('v_dot2'): s.kind = 'dot'
            if base.startswith('v_permlane'): s.kind = 'perm'
            if 'quad_perm' in t or 'row_' in t: s.kind = 'dpp'
            if base.startswith('v_readfirstlane') or base.startswith('v_readlane'): s.kind = 'rdlane'
            D |= set(R[0]); [U.update(r) for r in R[1:]]
            if base.startswith('v_dot2c') or base.startswith('v_fmac'): U |= set(R[0]); s.srcC = set(R[0])
            if base == 'v_dot2_f32_bf16': s.srcC = set(R[3]); s.srcAB = set(R[1]) | set(R[2])
            if base.startswith('v_dot2c'): s.srcAB = set(R[1]) | set(R[2])
            if s.kind == 'perm': D |= set(R[1]); U |= set(R[0])
            if base == 'v_cndmask_b32' and len(ops) == 3: U.add(('vcc', 0))
        else:
            raise ValueError('unknown instr ' + text)
        s.defs = D; s.uses = U

VALUK = ('valu','trans','dot','perm','dpp','rdlane')

class Ent:
    __slots__ = ('defs','opt','done','name','q')
    def __init__(s, defs, opt, q, name=None): s.defs = defs; s.opt = opt; s.done = False; s.name = name; s.q = q

class Asm:
    def __init__(s):
        s.ins = []; s.cold = []; s.tags = {}; s.notags = False; s.q = {'vm': [], 'lg': []}; s.opt = (); s.nopt = 0; s.nlab = 0; s.snap = []; s.named = {}
    def label(s, base='L'):
        s.nlab += 1; return f'{base}{s.nlab}'
    def raw(s, text):
        i = Ins(text); i.opt = s.opt; s.ins.append(i); return i
    def _count_younger(s, e):
        q = s.q[e.q]; k = q.index(e); n = 0
        for y in q[k+1:]:
            if y.opt == s.opt[:len(y.opt)] or y.opt == e.opt[:len(y.opt)]: n += 1
        return n
    def _mark(s, e):
        q = s.q[e.q]; k = q.index(e)
        for y in q[:k+1]: y.done = True
    def wait(s, *ents):
        need = {}
        for e in ents:
            if e is None or e.done: continue
            n = s._count_younger(e)
            need[e.q] = min(need.get(e.q, 99), n)
        for e in ents:
            if e is not None and not e.done: s._mark(e)
        if need:
            parts = []
            if 'vm' in need: parts.append(f"vmcnt({min(need['vm'], 63)})")
            if 'lg' in need: parts.append(f"lgkmcnt({min(need['lg'], 15)})")
            s.raw('s_waitcnt ' + ' '.join(parts))
        s._gc()
    def waitall(s, vm=True, lg=True):
        parts = []
        if vm: parts.append('vmcnt(0)'); [setattr(e, 'done', True) for e in s.q['vm']]
        if lg: parts.append('lgkmcnt(0)'); [setattr(e, 'done', True) for e in s.q['lg']]
        s.raw('s_waitcnt ' + ' '.join(parts)); s._gc()
    def _gc(s):
        if s.opt == ():
            for k in s.q: s.q[k] = [e for e in s.q[k] if not e.done]
    def e(s, text, name=None):
        ent = None
        for line in text.split('\n'):
            line = line.strip()
            if not line: continue
            i = Ins(line); i.opt = s.opt
            if ';' in line:
                cm = line.split(';', 1)[1].strip()
                for tok in cm.split():
                    if tok.startswith('?'):
                        r, t = tok[1:].split('=')
                        assert s.notags or s.tags.get((r[0], int(r[1:]))) == t, ('stale operand', line, s.tags.get((r[0], int(r[1:]))))
                tg = [tok[1:] for tok in cm.split() if tok.startswith('@')]
                i.text = line.split(';', 1)[0].rstrip()
            else: tg = []
            for r in i.defs: s.tags[r] = tg[0] if tg else None
            touched = i.defs | i.uses
            pend = [e for k in s.q for e in s.q[k] if not e.done and (e.defs & touched)]
            if pend: s.wait(*pend)
            s.ins.append(i)
            if i.kind in ('vm_ld', 'vm_st', 'vm_dma'):
                ent = Ent(set(i.defs), s.opt, 'vm', name); s.q['vm'].append(ent)
            elif i.kind in ('ds_r', 'ds_w'):
                ent = Ent(set(i.defs), s.opt, 'lg', name); s.q['lg'].append(ent)
            elif i.kind == 'smem':
                pass
        if name: s.named[name] = ent
        return ent
    def opt_begin(s):
        s.nopt += 1; s.snap.append({id(e): e.done for k in s.q for e in s.q[k]}); s.opt = s.opt + (s.nopt,)
    def opt_end(s):
        snap = s.snap.pop(); s.opt = s.opt[:-1]
        for k in s.q:
            for e in s.q[k]:
                if id(e) in snap: e.done = snap[id(e)]
        s._gc()
    def skip_if(s, cond_text, branch):
        a = s
        class Ctx:
            def __enter__(c):
                if cond_text: a.e(cond_text)
                c.l = a.label('Lskip'); a.raw(f'{branch} {c.l}'); a.opt_begin()
            def __exit__(c, *x):
                a.opt_end(); a.raw(f'{c.l}:')
        return Ctx()
    def rare(s, cond_text, branch):
        a = s
        class Ctx:
            def __enter__(c):
                if cond_text: a.e(cond_text)
                c.l = a.label('Lrare'); a.raw(f'{branch} {c.l}'); a.opt_begin()
                c.main = a.ins; a.ins = a.cold
                a.raw(f'{c.l}:'); a.raw('s_nop 7')
            def __exit__(c, *x):
                a.raw('s_nop 3'); a.raw(f's_branch {c.l}b')
                a.ins = c.main; a.opt_end(); a.raw(f'{c.l}b:')
        return Ctx()
    def need(s, p, c):
        n = 0
        pv = p.kind in VALUK; cv = c.kind in VALUK
        vd = {r for r in p.defs if r[0] in 'va' and r[0] != 'vcc'}
        sd = {r for r in p.defs if r[0] == 's' or r[0] == 'vcc'}
        if pv:
            if c.kind == 'mfma' and vd & c.uses: n = max(n, 2)
            if c.kind in ('perm', 'dpp') and vd & c.uses: n = max(n, 2)
            if c.kind == 'rdlane' and vd & c.uses: n = max(n, 1)
            if p.kind == 'trans' and cv and c.kind != 'trans' and vd & c.uses: n = max(n, 1)
            if p.kind == 'dot':
                if vd & (c.uses | c.defs) and (cv or c.kind in ('mfma','vm_st','ds_w','vm_ld','vm_dma','ds_r')):
                    if c.kind == 'dot' and c.op == p.op and not (vd & c.srcAB): pass
                    else: n = max(n, 3)
            if sd:
                if cv and sd & c.uses: n = max(n, 2 if c.kind != 'rdlane' else 4)
                if c.kind in ('vm_ld','vm_st','vm_dma') and sd & c.uses: n = max(n, 5)
                if c.kind in ('salu','smem') and sd & c.uses: n = max(n, 1)
        if p.kind == 'mfma':
            if c.kind == 'mfma':
                if p.defs & c.srcAB: n = max(n, 8)
                if p.defs & c.srcC and not (p.defs == c.srcC and p.op == c.op): n = max(n, 6)
                if p.defs & c.defs and not (p.defs == c.srcC and p.op == c.op) : n = max(n, 6)
            elif p.defs & (c.uses | c.defs): n = max(n, 8)
            if cv and p.srcC & c.defs: n = max(n, 3)
        if p.kind == 'salu' and ('m0', 0) in p.defs and c.kind == 'vm_dma': n = max(n, 1)
        if p.kind == 'vm_st' and p.wide and (p.srcC & c.defs): n = max(n, 2)
        return n
    def finish(s):
        out = []
        for c in s.ins:
            if c.kind not in ('label',):
                d = 0; pad = 0; k = len(out) - 1
                while k >= 0 and d < 9:
                    p = out[k]
                    n = s.need(p, c)
                    if n > d: pad = max(pad, n - d)
                    if p.opt == c.opt[:len(p.opt)]: d += p.ws
                    k -= 1
                if pad:
                    i = Ins(f's_nop {pad-1}'); i.opt = c.opt; out.append(i)
            out.append(c)
        return out
    def text(s):
        return '\n'.join((i.text if i.kind == 'label' else '    ' + i.text) for i in s.finish()) + '\n'

def weave(a, mfmas, fill):
    def run(fs):
        for f in fs:
            if callable(f): f()
            else: a.e(f)
    run(fill.get(-1, []))
    for i, m in enumerate(mfmas):
        if callable(m): m()
        else: a.e(m)
        run(fill.get(i, []))

def spread(fill, items, start, per=2, step=1):
    k = start; n = 0
    for it in items:
        fill.setdefault(k, []).append(it); n += 1
        if n == per: n = 0; k += step
    return k + (1 if n else 0)

def icost(i):
    if i.kind in ('salu','wait','nop','branch','barrier','smem','label'): return (True, 1)
    if i.kind in ('vm_ld','vm_dma','vm_st','trans'): return (False, 2)
    if i.kind == 'ds_w': return (False, 2)
    return (False, 1)

class Stream:
    def __init__(s, items, start=0, pace=0, deadline=None, one=False):
        s.deadline = deadline; s.one = one
        s.items = []
        for it in items:
            if isinstance(it, str): s.items += [l.strip() for l in it.split('\n') if l.strip()]
            else: s.items.append(it)
        s.start = start; s.pace = pace; s.last = -99; s.k = 0

class At:
    def __init__(s, g): s.g = g
class By:
    def __init__(s, g): s.g = g
class Nm:
    def __init__(s, text, d, key): s.text = text; s.d = d; s.key = key

def sched(a, mfmas, pinned, mem, valu, keep=(), over=False):
    def pend(text):
        i = Ins(text); t = i.defs | i.uses
        return [e for k in a.q for e in a.q[k] if not e.done and (e.defs & t)]
    def emit(it):
        if isinstance(it, Nm): it.d[it.key] = a.e(it.text)
        elif callable(it): it()
        else: a.e(it)
    def head(st, g):
        while st.k < len(st.items) and isinstance(st.items[st.k], (At, By)):
            if isinstance(st.items[st.k], At) and st.items[st.k].g > g: return None
            st.k += 1
        if st.k >= len(st.items) or g < st.start: return None
        return st.items[st.k]
    n = len(mfmas)
    for it in pinned.get(-1, []): emit(it)
    for g in range(n):
        for st in mem + valu:
            end = len(st.items) if st.deadline == g else max([k for k in range(st.k, len(st.items)) if isinstance(st.items[k], By) and st.items[k].g <= g], default=0)
            if True:
                while st.k < end:
                    it = st.items[st.k]; st.k += 1
                    assert not (isinstance(it, At) and it.g > g), 'forced past an At marker'
                    if not isinstance(it, (At, By)): emit(it); a.forced = getattr(a, 'forced', 0) + 1; a.flog = getattr(a, 'flog', []) + [(n, g)]
        m = mfmas[g]
        if callable(m): m()
        else: a.e(m)
        pos = 0
        used = 0; vec = 0; valu_seen = False
        n0 = len(a.ins)
        P = pinned.get(g, [])
        for it in [p for p in P if getattr(p, 'pre', False)]: emit(it)
        if g + 1 < n and isinstance(mfmas[g+1], str):
            p = pend(mfmas[g+1])
            if p: a.wait(*p)
        P = [p for p in P if not getattr(p, 'pre', False)]
        if len(a.ins) == n0 and not any(callable(p) and not isinstance(p, Nm) for p in P) and not any(pend(p.text if isinstance(p, Nm) else p) for p in P):
            for st in mem + valu:
                it = head(st, g)
                if isinstance(it, str) and Ins(it).kind == 'salu':
                    emit(it); st.k += 1; break
        for it in P: emit(it)
        def account():
            nonlocal used, vec, valu_seen, n0
            for i in a.ins[n0:]:
                sc, c = icost(i)
                if i.kind == 'label': continue
                if sc: used += 1
                else:
                    used = max(used, 1) + c
                    if i.kind not in ('ds_r','ds_w','vm_ld','vm_dma','vm_st'): valu_seen = True
            n0 = len(a.ins)
        account()
        def fits(text):
            i = Ins(text); sc, c = icost(i)
            extra = 1 if pend(text) else 0
            u = used + extra
            if sc: return u + 1 <= 3
            if i.kind in ('ds_r','ds_w','vm_ld','vm_dma','vm_st') and valu_seen: return False
            return max(u, 1) + c <= (4 if i.kind == 'trans' and over else 3)
        for st in mem:
            while True:
                it = head(st, g)
                if it is None: break
                if callable(it) and not isinstance(it, Nm):
                    emit(it); st.k += 1; account(); continue
                text = it.text if isinstance(it, Nm) else it
                isvm = Ins(text).kind in ('vm_ld','vm_dma','vm_st')
                if isvm and g - st.last < st.pace: break
                if not fits(text): break
                emit(it); st.k += 1; account()
                if isvm: st.last = g
                if st.one and 'b128' in text: break
        for st in valu:
            while True:
                it = head(st, g)
                if it is None: break
                if callable(it) and not isinstance(it, Nm):
                    emit(it); st.k += 1; account(); continue
                text = it.text if isinstance(it, Nm) else it
                if not fits(text): break
                emit(it); st.k += 1; account()
    left = 0
    for st in mem + valu:
        if st in keep: continue
        while st.k < len(st.items):
            it = st.items[st.k]; st.k += 1
            if isinstance(it, (At, By)): continue
            emit(it); left += 1
    return left
```

```python
import sys, math, struct
sys.path.insert(0, 'dev')
from asmlib import *
KNAME = "interleave_layers__linear_attn_block__dense_activation_relu__prompt_kernel"
EPOCH=0x0; XF=0x1000; PF=0x2000
KV1=0x200000; KV2=0x400000
WQF=0x500000; WOF=0x510000; W1F=0x600000; W2F=0x800000
W2S=43*4096
GA0=0x1000000; GAS=0x100000
A_O=0x00000; A_X1=0x20000; A_X2=0x40000; A_H=0x50000; A_HL=0x30000; A_ST=0xB0000; A_FL=0xB8000; A_JUNK=0xC0000
HRT=43*1024
PROF=0x4000000
LA=0; LB=0x10000; LC=0x20000; MISC=0x27000; LDSZ=0x28000
ST_RSTD=0; ST_NB=256; ST_RL=512; ST_NM=768
CSW1=2048; CSQ=2816
SWS='s[4:7]'; SOUT='s[8:11]'; SX='s[12:15]'; SQ='s[16:19]'; SP='s[20:23]'
sW,sM,sG,sXC,sJ,sT = 's24','s25','s26','s27','s28','s29'
sT0,sT1,sT2,sT3 = 's31','s3','s0','s1'
sU0,sU1 = 's30','s51'
sV0,sV1 = 's35','s36'
sGA='s32'; sFL='s33'; sFLme='s34'; sGW='s37'; sGO='s38'; sKV1='s39'; sKV2='s40'
sW4='s41'; sOW='s42'; sXme='s43'; sSTme='s44'
sOnes='s45'; sLo='s46'; sHi='s47'; sDelta='s48'; sLn2='s49'; sLog2e='s50'
sOdd='s[52:53]'; sAcc='s[54:55]'; sCm='s[56:57]'
sHst='s58'; sHst2='s59'; sHe='s60'; sHl='s61'; sW2e='s62'; sW2l='s63'
sA0='s64'; sA1='s65'; sSpin='s66'; sOme='s67'; sW2e2='s68'; sW2l2='s69'; sOutO='s70'; sWQ='s71'; sW1='s72'; sHd='s73'
sTch='s12'; sWQm='s13'; sW2m='s14'; sH5='s15'; sH6='s20'; sW26='s21'; sW262='s22'; sCb='s16'
sNeg='s17'; sM5='s18'; sSTw='s19'
sPdst='s94'; sPstr='s95'; sPmode='s86'; sPi='s87'; sPF='s101'; sCs='s98'; sCl='s99'; sXt='s100'; sR='s79'; sXFa='s78'
def RX(l): return LA if l == 0 else LB
def RW(l): return LB if l == 0 else LA
sPR=76
vL16,vG16,vR4,vFl,vFlagOff,vTag,vStatLd,vStatSt,vStatW,vO8 = [f'v{i}' for i in range(0,10)]
vCsk,vCsv='v10','v11'; vT32='v6'; JUNK=MISC+3584
RES=12
vS0,vS1,vS2,vP='v28','v29','v30','v31'
WV=192; WK=192
XA=116
def vr(b,n=4): return f'v[{b}:{b+n-1}]'
def ar(b,n=4): return f'a[{b}:{b+n-1}]'
MF='v_mfma_f32_16x16x32_bf16'; MF16='v_mfma_f32_16x16x16_bf16'
def f2u(x): return struct.unpack('<I', struct.pack('<f', x))[0]
DPPF='row_mask:0xf bank_mask:0xf'

class G:
    def __init__(s, prof=False, stop=None, force=None, **kw):
        s.a = Asm(); s.prof = prof; s.stop = stop; s.force = force; s.kw = kw; s.nfs = 0; s.l = 0; s.lefts = []
        s.a.notags = bool(s.o('x_nold', 0))
        s.nt1 = ' nt' if s.o('nt1', 0) else ''; s.nt0 = ' nt' if s.o('nt0', 0) else ''
    def o(s, k, d): return int(s.kw.get(k, d))
    def bO(s, l): return A_O + (0 if s.o('alias', 1) else l*0x10000)
    def bX1(s, l): return A_X1 + (0 if s.o('alias', 1) else l*0x10000)
    def bX2(s): return A_X1 if s.o('alias', 1) else A_X2
    def bH(s, l): return A_H + (0 if s.o('alias', 1) else l*A_HL)
    def bST(s, l, kind): return A_ST + (0 if s.o('alias', 1) else kind*8192 + l*16384)
    def bKV1(s, l): return l*0x100000
    def fs(s, ph):
        if s.kw.get('fine') != ph or (ph != 'S' and s.l != s.o('fl', 1)): return
        k = s.nfs; s.nfs += 1
        assert k < 13
        if ph == 'S':
            s.a.raw('s_memtime s[74:75]'); s.a.waitall(vm=False); s.a.e(f'v_writelane_b32 v31, s74, {2*k}'); return
        s.a.raw(f's_memtime s[{sPR+2*k}:{sPR+2*k+1}]')
    def F(s, ph): return lambda: s.fs(ph)
    def stamp(s, idx):
        if not s.prof or s.kw.get('fine'): return
        a = s.a
        if s.o('spins', 0):
            a.e(f's_mov_b32 s{sPR+idx+(12*s.l if idx >= 2 else 0)}, {sSpin}'); return
        a.raw(f's_memrealtime s[74:75]'); a.waitall(vm=False)
        if idx < 2:
            a.e(f's_mov_b32 s{sPR+idx}, s74')
            a.raw(f's_memtime s[74:75]'); a.waitall(vm=False); a.e('s_mov_b32 s23, s74')
        else: a.e(f's_mov_b32 s{sPR+idx+12*s.l}, s74')
    def spin_guard(s):
        s.a.e(f's_sub_u32 {sSpin}, {sSpin}, 1'); s.a.raw('s_cbranch_scc1 Lbail')
    def floff(s, l, hop, half): return l*1024 + hop*256 + half*128
    def poll_ld(s, l, hop, half): return Nm(f'buffer_load_dword {vP}, {vFl}, {SWS}, {sFL} offen offset:{s.floff(l,hop,half)} sc1', s.pl, (l,hop,half))
    def poll_check(s, l, hop, half):
        a = s.a
        assert list(s.pl)[-1] == (l,hop,half), (list(s.pl), l, hop, half)
        a.e(f'v_cmp_ne_u32 vcc, {sT}, {vP}')
        with a.rare(None, 's_cbranch_vccnz'):
            lb = a.label('Lpoll'); a.raw(f'{lb}:'); s.spin_guard()
            a.e(s.poll_ld(l, hop, half).text); a.waitall(lg=False)
            a.e(f'v_cmp_ne_u32 vcc, {sT}, {vP}'); a.raw(f's_cbranch_vccnz {lb}')
    def flag_st(s, l, hop, half): return f'buffer_store_dword {vTag}, {vFlagOff}, {SWS}, {sFLme} offen offset:{s.floff(l,hop,half)}{s.sc}'
    def stats_fin(s, u, t0, t1, vaddr, off, d=None, key=None):
        last = f'ds_write_b32 {vaddr}, {t0} offset:{off+ST_RL}'
        return [f'v_mul_f32 {u}, 0x{f2u(-1/512):x}, {u}', f'v_mul_f32 {t0}, 0x{f2u(1/512):x}, {t0}',
                f'v_fma_f32 {t0}, -{u}, {u}, {t0}', f'ds_write_b32 {vaddr}, {u} offset:{off+ST_NM}', f'v_max_f32 {t0}, 0, {t0}', f'v_add_f32 {t0}, 0x{f2u(1e-5):x}, {t0}',
                f'v_rsq_f32 {t0}, {t0}', f'v_mul_f32 {t1}, {u}, {t0}',
                f'ds_write_b32 {vaddr}, {t0} offset:{off+ST_RSTD}', f'v_mul_f32 {t0}, {sLog2e}, {t0}',
                f'ds_write_b32 {vaddr}, {t1} offset:{off+ST_NB}', Nm(last, d, key) if d is not None else last]
    def stats_ld(s, l, kind, hf, b, st):
        return [f's_add_u32 {st}, {sSTw}, {s.bST(l,kind)+hf*4096}', f'buffer_load_dwordx4 {vr(b)}, {vL16}, {SWS}, {st} offen sc1']
    def stats_use(s, kind, hf, b, d, key):
        x, y, t = f'v{b}', f'v{b+1}', f'v{b+2}'
        L = [f'v_add_f32 {x}, v{b}, v{b+2}', f'v_add_f32 {y}, v{b+1}, v{b+3}', 's_nop 0']
        for m in ('quad_perm:[1,0,3,2]', 'quad_perm:[2,3,0,1]', 'row_half_mirror'):
            L += [f'v_add_f32_dpp {x}, {x}, {x} {m} {DPPF}', f'v_add_f32_dpp {y}, {y}, {y} {m} {DPPF}']
        return L + s.stats_fin(x, y, t, vStatW, (1-kind)*1024 + hf*128, d, key)
    def tile_dma(s, off, rt, d, st, reg):
        L = [f's_add_u32 m0, {sW4}, {reg+rt*16384}', f's_add_u32 {st}, {sGW}, {off+rt*16384}']
        L += [f'buffer_load_dwordx4 {vL16}, {SWS}, {st} offen offset:{i*1024}{s.lc} lds' for i in range(3)]
        L.append(Nm(f'buffer_load_dwordx4 {vL16}, {SWS}, {st} offen offset:3072{s.lc} lds', d, ('dma', rt)))
        return L
    def x_pub(s, l, kind, hf, pk, t0, t1, d, key, usedot, st):
        r = RES + 8*hf
        L = [f'v_cvt_pk_bf16_f32 v{pk+i}, v{r+2*i}, v{r+2*i+1}' for i in range(4)]
        b = 1 - kind
        tag = lambda v: f'v_or_b32 {v}, 1, {v}' if b else f'v_and_b32 {v}, -2, {v}'
        L += [tag(f'v{pk}'), tag(f'v{pk+2}')]
        L.append(f's_add_u32 {st}, {sXme}, {(s.bX2() if kind else s.bX1(l)) + hf*32768}')
        L.append(f'buffer_store_dwordx4 {vr(pk)}, {vL16}, {SWS}, {st} offen{s.sc}')
        if usedot:
            L += [f'v_dot2_f32_bf16 {t0}, v{pk}, {sOnes}, 0', f'v_dot2_f32_bf16 {t1}, v{pk}, v{pk}, 0']
            for i in range(1,4): L += [f'v_dot2_f32_bf16 {t0}, v{pk+i}, {sOnes}, {t0}', f'v_dot2_f32_bf16 {t1}, v{pk+i}, v{pk+i}, {t1}']
        else:
            L += [f'v_add_f32 {t0}, v{r}, v{r+1}', f'v_mul_f32 {t1}, v{r}, v{r}', f'v_fmac_f32 {t1}, v{r+1}, v{r+1}']
            for i in range(2,8): L += [f'v_add_f32 {t0}, {t0}, v{r+i}', f'v_fmac_f32 {t1}, v{r+i}, v{r+i}']
        L.append(f's_add_u32 {st}, {sSTme}, {s.bST(l,kind)+hf*4096}')
        L += [f'v_permlane16_swap_b32 {t0}, {t1}', f'v_add_f32 {t0}, {t0}, {t1}', f'v_mov_b32 {t1}, {t0}',
              f'v_permlane32_swap_b32 {t0}, {t1}', f'v_add_f32 {t0}, {t0}, {t1}', tag(t0),
              Nm(f'buffer_store_dword {t0}, {vStatSt}, {SWS}, {st} offen{s.sc}', d, key)]
        return L
    def comb8(s, R, t, b):
        op = '0x80' if b else '0xfe'
        return [f'v_bitop3_b32 {R[0]}, {R[0]}, {R[1]}, {R[2]} bitop3:{op}', f'v_bitop3_b32 {R[3]}, {R[3]}, {R[4]}, {R[5]} bitop3:{op}',
                f'v_bitop3_b32 {R[0]}, {R[0]}, {R[3]}, {R[6]} bitop3:{op}', f'v_bitop3_b32 {R[0]}, {R[0]}, {R[7]}, 1 bitop3:{"0x80" if b else "0xa8"}',
                f'v_cmp_ne_u32 {sCm}, {b}, {R[0]}']
    def ver(s, mode, VB, off, b):
        if mode == 'b128':
            rd = [f'ds_read_b128 {vr(VB+4*i)}, {vS0} offset:{off+i*1024}' for i in range(4)]
            R = [f'v{VB+4*i+k}' for i in range(4) for k in (0, 2)]
        else:
            o = off // 256
            rd = [f'ds_read2st64_b32 {vr(VB+2*i,2)}, {(vS0,vS1)[i%2]} offset0:{o+8*(i//2)} offset1:{o+8*(i//2)+4}' for i in range(4)]
            R = [f'v{VB+i}' for i in range(8)]
        return rd, s.comb8(R, None, b)
    def ver_branch(s, dma, mode, VB, off, b):
        a = s.a
        with a.rare(f's_cmp_lg_u64 {sCm}, 0', 's_cbranch_scc1'):
            a.e(f's_mov_b32 {sT3}, m0')
            lb = a.label('Lver'); a.raw(f'{lb}:'); s.spin_guard()
            for it in dma: a.e(it.text if isinstance(it, Nm) else it)
            a.waitall(lg=False)
            rd, va = s.ver(mode, VB, off, b)
            s.run(rd + va)
            a.e(f's_nop 1\n s_cmp_lg_u64 {sCm}, 0'); a.raw(f's_cbranch_scc1 {lb}')
            a.e(f's_mov_b32 m0, {sT3}')
    def stats_chk(s, l, kind, hf, b):
        a = s.a; t = 1 - kind; x = vP
        chk = [f'v_bitop3_b32 {x}, v{b}, v{b+1}, v{b+2} bitop3:{"0x80" if t else "0xfe"}', f'v_bitop3_b32 {x}, {x}, v{b+3}, 1 bitop3:{"0x80" if t else "0xa8"}']
        def br():
            a.e(f'v_cmp_ne_u32 vcc, {t}, {x}')
            with a.rare(None, 's_cbranch_vccnz'):
                lb = a.label('Lstc'); a.raw(f'{lb}:'); s.spin_guard()
                s.run(s.stats_ld(l, kind, hf, b, sT0)); a.waitall(lg=False); s.run(chk)
                a.e(f'v_cmp_ne_u32 vcc, {t}, {x}'); a.raw(f's_cbranch_vccnz {lb}')
        return chk + [br]
    def poison(s, z, sc, part=3, t0=sT0, t1=sT1):
        x = f'buffer_store_dwordx4 {vr(z)}, {vL16}, {SWS}, {t0} offen{sc}'
        L = []
        if part & 1:
            L += [f's_and_b32 {t1}, {sW}, 1', f's_lshl_b32 {t1}, {t1}, 15', f's_add_u32 {t0}, {sOme}, {t1}', x, f's_add_u32 {t0}, {t0}, 16384', x,
                  f's_add_u32 {t0}, {sXme}, {A_X1}', x, f's_add_u32 {t0}, {t0}, 32768', x]
            for hf in range(2): L += [f's_add_u32 {t0}, {sSTme}, {A_ST+hf*4096}', f'buffer_store_dword v{z}, {vStatSt}, {SWS}, {t0} offen{sc}']
        if part & 2:
            for rt in range(4): L += [f's_add_u32 {t0}, {sHst}, {A_H+rt*HRT}', x]
            L += [f's_and_b32 {t1}, {sW}, 1', f's_mul_i32 {t1}, {t1}, {2*HRT}', f's_add_u32 {t0}, {sHst2}, {t1}', f's_add_u32 {t0}, {t0}, {A_H}', x, f's_add_u32 {t0}, {t0}, {HRT}', x]
        return L
    def run(s, L):
        for it in L:
            if isinstance(it, Nm): it.d[it.key] = s.a.e(it.text)
            elif isinstance(it, (At, By)): pass
            elif callable(it): it()
            else: s.a.e(it)
    def wq_loads(s, lo=0, hi=16):
        L = []
        for ks in range(lo, hi):
            if ks % 4 == 0 or ks == lo: L.append(f's_add_u32 {sU0}, {sWQ}, {WQF+(ks//4)*4096}')
            L.append(f'buffer_load_dwordx4 {vr(128+4*ks)}, {vL16}, {SWS}, {sU0} offen offset:{(ks%4)*1024}{s.wc} ; @wq{s.wql}')
        return L
    def wo_dma(s, d, lo=0, hi=4):
        if s.l == 1 and s.o('x_nowo', 0): return [Nm('ds_read_b32 v31, v0', d, 'wo')]
        L = []
        for i in range(lo, hi):
            L += [f's_lshl_b32 {sU0}, {sW4}, 2', f's_add_u32 m0, {sU0}, {RW(s.wql)+i*4096}', f's_add_u32 {sU0}, {sWQ}, {WOF+i*4096}']
            L += [f'buffer_load_dwordx4 {vL16}, {SWS}, {sU0} offen offset:{k*1024}{s.wc} lds' for k in range(4)]
        if L: L[-1] = Nm(L[-1], d, 'wo')
        return L
    def w1_loads(s, lo, hi):
        L = []
        for n in range(lo, hi):
            slot, ks = divmod(n, 16)
            if ks % 4 == 0 or n == lo:
                L += [f's_lshl_b32 {sU0}, {sW4}, {3 if slot < 2 else 2}', f's_add_u32 {sU0}, {sU0}, {sW1}',
                      f's_add_u32 {sU0}, {sU0}, {(slot if slot < 2 else 8)*16384 + (ks//4)*4096}']
            L.append(f'buffer_load_dwordx4 {ar(64*slot+4*ks)}, {vL16}, {SWS}, {sU0} offen offset:{(ks%4)*1024}{s.wc}{s.nt1} ; @w1')
        return L
    def w2_dma(s, i, d):
        if s.l == 1 and s.o('x_now2', 0): return [Nm('ds_read_b32 v31, v0', d, i)]
        if i <= 4:   m = [f's_lshl_b32 {sU0}, {sW4}, 2', f's_add_u32 m0, {sU0}, {RX(s.l)+(i-1)*4096}']
        elif i <= 6: m = [f's_add_u32 m0, {sCb}, {(i-5)*4096}']
        else:        m = [f's_add_u32 m0, {sW4}, {RW(s.l)+(i-7)*16384}']
        b1, b2, o = (sW2e, sW2e2, i*4096) if i <= 5 else ((sW26, sW262, 0) if i == 6 else (sW2l, sW2l2, (i-7)*4096))
        x = f'buffer_load_dwordx4 {vL16}, {SWS}, '
        return m + [f's_add_u32 {sU0}, {b1}, {o}', f's_add_u32 {sU1}, {b2}, {o}', x+f'{sU0} offen{s.wc} lds', x+f'{sU0} offen offset:1024{s.wc} lds',
                    x+f'{sU1} offen offset:2048{s.wc} lds', Nm(x+f'{sU1} offen offset:3072{s.wc} lds', d, i)]
    def touch(s, base_s, off, junk, lim=None, nt=''):
        L = [f's_add_u32 {sU0}, {sTch}, {base_s}', f's_add_u32 {sU0}, {sU0}, {off}']
        if lim is not None: L.append(f's_cmp_ge_u32 {sTch}, {lim*8192}\ns_cselect_b32 {sU0}, 0x40000000, {sU0}')
        L = [lambda L=L: s.run(L)]
        return L + [f'v_lshlrev_b32 v{junk}, 3, {vL16}', f'buffer_load_dword v{junk}, v{junk}, {SWS}, {sU0} offen{s.wc}{nt}']
    def t4(s, base_s, off, k, npieces):
        L = [f's_add_u32 {sU0}, {sTch}, {base_s}', f's_add_u32 {sU0}, {sU0}, {off + k*65536}', f's_mov_b32 m0, {JUNK}']
        if 16*k + 16 > npieces:
            L = [lambda L=L: s.run(L + [f's_cmp_ge_u32 {sTch}, {(npieces-16*k)*4096}', f's_cselect_b32 {sU0}, 0x40000000, {sU0}'])]
        return L + [f'buffer_load_dword {vT32}, {SWS}, {sU0} offen lds']
    def tq(s, k): return s.t4(sWQm, WQF, k, 32)
    def t1(s, k): return s.t4(sW1, 0, k, 48)
    def t2(s, k): return s.t4(sW2m, 0, k, 43)
    def touch_s(s, setup, junk):
        return [lambda: s.run(setup + [f's_mov_b32 m0, {JUNK}']), f'v_lshlrev_b32 {vP}, 3, {vL16}', f'buffer_load_dword {vP}, {SWS}, {sU0} offen lds']
    def touch_oxs(s, junk):
        return s.touch_s([f's_lshl_b32 {sU0}, {sM}, 13', f's_add_u32 {sU0}, {sU0}, {sGA}', f's_cmp_eq_u32 {sW}, 1', f's_cselect_b32 {sU1}, {A_X1}, 0',
                          f's_cmp_eq_u32 {sW}, 2', f's_cselect_b32 {sU1}, {A_ST}, {sU1}', f's_add_u32 {sU0}, {sU0}, {sU1}',
                          f's_cmp_ge_u32 {sM}, 2', f's_cselect_b32 {sU1}, 2, 9', f's_cmp_eq_u32 {sW}, {sU1}', f's_cselect_b32 {sU0}, 0x40000000, {sU0}',
                          f's_cmp_eq_u32 {sW}, 3', f's_cselect_b32 {sU0}, 0x40000000, {sU0}'], junk)
    def touch_h(s, junk):
        return s.touch_s([f's_lshl_b32 {sU0}, {sW}, 3', f's_add_u32 {sU0}, {sU0}, {sM}', f's_cmp_ge_u32 {sU0}, 22', f's_cselect_b32 {sU1}, 0x40000000, {sGA}',
                          f's_lshl_b32 {sU0}, {sU0}, 13', f's_add_u32 {sU0}, {sU0}, {sU1}', f's_add_u32 {sU0}, {sU0}, {A_H}'], junk)
    def touch_small(s, junk):
        return [f'v_lshlrev_b32 v{junk}, 5, {vFl}', f'v_cmp_gt_u32 vcc, 64, {vFl}', f's_lshl_b32 {sU0}, {sW}, 11', f's_add_u32 {sU0}, {sU0}, {A_ST-2048}',
                f'v_mov_b32 v{junk+1}, {sU0}', f'v_mov_b32 v{junk+2}, {A_FL}', f'v_cndmask_b32 v{junk+1}, v{junk+1}, v{junk+2}, vcc', f'v_add_u32 v{junk}, v{junk}, v{junk+1}',
                f'buffer_load_dword v{junk}, v{junk}, {SWS}, {sGA} offen sc1']
    def touch_kv2(s, l, junk):
        return s.touch_s([f's_add_u32 {sU0}, {sKV2}, {l*0x40000}'], junk)
    def touch_kv1(s, l, junk):
        return [lambda: s.run([f's_add_u32 {sU0}, {sKV1}, {l*0x100000}', f's_cmp_lg_u32 {sW}, {sJ}', f's_cselect_b32 {sU0}, 0x40000000, {sU0}']),
                f'v_lshlrev_b32 v{junk}, 5, {vFl}', f'buffer_load_dword v{junk}, v{junk}, {SWS}, {sU0} offen sc1']
    def held(s, HELD=176):
        return [f'buffer_load_dwordx4 {vr(HELD)}, {vL16}, {SWS}, {sW2e} offen{s.wc} ; @held{s.l}', f'buffer_load_dwordx4 {vr(HELD+4)}, {vL16}, {SWS}, {sW2e} offen offset:1024{s.wc} ; @held{s.l}',
                f'buffer_load_dwordx4 {vr(HELD+8)}, {vL16}, {SWS}, {sW2e2} offen offset:2048{s.wc} ; @held{s.l}', f'buffer_load_dwordx4 {vr(HELD+12)}, {vL16}, {SWS}, {sW2e2} offen offset:3072{s.wc} ; @held{s.l}']
    def colsum_w1(s, slot, CS, ONES):
        return [f'{MF} {vr(CS+4*slot)}, {ar(64*slot+4*ks)}, {vr(ONES)}, {"0" if ks==0 else vr(CS+4*slot)}' for ks in range(16)]

    def startup(s):
        a = s.a
        a.e('s_cmp_ge_u32 s2, 256'); a.raw('s_cbranch_scc1 Lend')
        s.fs('S')
        a.raw('s_load_dwordx16 s[80:95], s[0:1], 0'); a.raw('s_load_dwordx2 s[96:97], s[0:1], 64')
        if s.prof: a.raw(f's_memrealtime s[74:75]')
        a.e(f'''v_lshrrev_b32 v32, 6, v0
            v_and_b32 v33, 63, v0
            v_readfirstlane_b32 {sW}, v32
            s_and_b32 {sXC}, s2, 7
            s_lshr_b32 {sR}, s2, 3
            s_lshr_b32 {sJ}, {sR}, 3
            s_and_b32 {sM}, {sR}, 7
            s_lshl_b32 {sG}, {sXC}, 2
            s_add_u32 {sG}, {sG}, {sJ}
            v_lshlrev_b32 {vL16}, 4, v33
            v_lshrrev_b32 v34, 4, v33
            v_and_b32 v35, 15, v33
            v_lshrrev_b32 v36, 3, v33
            v_and_b32 v37, 7, v33
            s_lshl_b32 {sW4}, {sW}, 12
            s_mul_i32 s64, s2, 3
            s_add_u32 s64, s64, {sW}
            s_add_u32 s64, s64, 255
            s_cmp_eq_u32 {sW}, 0
            s_cselect_b32 s64, s2, s64
            s_and_b32 s65, s64, 7
            s_lshr_b32 s64, s64, 3
            s_lshl_b32 s52, s65, 7
            s_movk_i32 {sT1}, 3072
            v_lshlrev_b32 v38, 7, v35
            v_mad_u32_u24 v38, v34, {sT1}, v38
            s_lshl_b32 s58, {sR}, 2
            s_add_u32 s58, s58, {sW}
            s_mul_i32 s59, s58, {4*3072}
            s_add_u32 s59, s59, 1024
            v_lshlrev_b32 v39, 7, v33
            s_lshl_b32 s60, {sXC}, 18
            s_lshl_b32 s61, {sR}, 13
            s_add_u32 s60, s60, s61
            v_bfe_u32 v40, v36, 1, 1
            s_and_b32 s61, {sW}, 1
            s_lshl_b32 s61, s61, 1
            v_or_b32 v40, s61, v40
            v_lshlrev_b32 v40, 1, v40
            v_xor_b32 v40, v40, v37
            v_lshlrev_b32 v40, 4, v40
            v_mad_u32_u24 v40, v36, {sT1}, v40
            v_xor_b32 v41, v35, v34
            v_lshlrev_b32 v41, 4, v41
            v_lshl_add_u32 v41, v34, 10, v41
            v_mov_b32 v42, 0''')
        a.raw('s_waitcnt lgkmcnt(0)')
        if s.prof: a.e(f's_mov_b32 s{sPR}, s74')
        s.fs('S')
        a.e(f's_mov_b32 {sPi}, s64')
        a.e('''s_mov_b32 s16, s82
            s_mov_b32 s17, s83
            s_mov_b32 s18, 0x180000
            s_mov_b32 s19, 0x20000
            s_mov_b32 s12, s80
            s_mov_b32 s13, s81
            s_mov_b32 s14, 0x200000
            s_mov_b32 s15, 0x20000''')
        a.e(f'buffer_load_dword v140, v38, {SQ}, s59 offen{s.nt0}')
        with a.skip_if(f's_cmp_lg_u32 {sW}, 0', 's_cbranch_scc1'):
            a.e(f'buffer_load_dword v141, v39, {SX}, s60 offen{s.nt0}')
        a.e('''s_mov_b32 s4, s96
            s_mov_b32 s5, s97
            s_mov_b32 s6, 0x10000000
            s_mov_b32 s7, 0x20000
            s_mov_b32 s23, 0x20000''')
        eE = a.e(f'buffer_load_dword v43, v42, {SWS}, 0 offen sc1')
        a.e(f's_getpc_b64 s[62:63]'); a.raw('Lpc0:')
        a.e(f's_lshl_b32 {sT1}, s58, 10\n s_cmp_lt_u32 {sT1}, Lslow-Lpc0')
        with a.skip_if(None, 's_cbranch_scc0'):
            a.e(f's_add_u32 s62, s62, {sT1}\n s_addc_u32 s63, s63, 0\n s_and_b32 s62, s62, -16')
            a.e(f'global_load_dwordx4 v[144:147], {vL16}, s[62:63]')
        la = [a.label('Lpp') for _ in range(5)]
        a.e(f's_cmp_lt_u32 {sPi}, 16'); a.raw(f's_cbranch_scc0 {la[0]}')
        a.e(f'''s_mov_b32 s20, s84
            s_mov_b32 s21, s85
            s_mov_b32 s22, 0x80000
            s_movk_i32 s53, 1024
            s_mov_b32 s54, {sPi}
            s_lshl_b32 {sPdst}, s65, 17
            s_lshl_b32 s56, {sPi}, 12
            s_add_u32 {sPdst}, {sPdst}, s56
            s_add_u32 {sPdst}, {sPdst}, {WOF}
            s_movk_i32 {sPstr}, 1024
            s_mov_b32 {sPmode}, 1''')
        a.raw(f's_branch {la[4]}'); a.raw(f'{la[0]}:')
        a.e(f's_cmp_lt_u32 {sPi}, 32'); a.raw(f's_cbranch_scc0 {la[1]}')
        a.e(f'''s_mov_b32 s20, s82
            s_mov_b32 s21, s83
            s_mov_b32 s22, 0x180000
            s_movk_i32 s53, 3072
            s_sub_u32 s54, {sPi}, 16
            s_lshl_b32 {sPdst}, s65, 17
            s_lshl_b32 s56, s54, 10
            s_add_u32 {sPdst}, {sPdst}, s56
            s_add_u32 {sPdst}, {sPdst}, {WQF}
            s_movk_i32 {sPstr}, 16384
            s_mov_b32 {sPmode}, 0''')
        a.raw(f's_branch {la[4]}'); a.raw(f'{la[1]}:')
        a.e(f's_cmp_lt_u32 {sPi}, 80'); a.raw(f's_cbranch_scc0 {la[2]}')
        a.e(f'''s_mov_b32 s20, s88
            s_mov_b32 s21, s89
            s_mov_b32 s22, {512*1376*2}
            s_movk_i32 s53, 2752
            s_sub_u32 s56, {sPi}, 32
            s_and_b32 s54, s56, 15
            s_lshr_b32 s56, s56, 4
            s_min_u32 s52, s65, 3
            s_mul_i32 {sPdst}, s65, 5
            s_add_u32 s52, s52, {sPdst}
            s_lshl_b32 s52, s52, 6
            s_lshl_b32 {sPdst}, s56, 7
            s_add_u32 s52, s52, {sPdst}
            s_mul_i32 {sPdst}, s65, {12*16384}
            s_lshl_b32 s56, s56, 16
            s_add_u32 {sPdst}, {sPdst}, s56
            s_lshl_b32 s56, s54, 10
            s_add_u32 {sPdst}, {sPdst}, s56
            s_add_u32 {sPdst}, {sPdst}, {W1F}
            s_movk_i32 {sPstr}, 16384
            s_mov_b32 {sPmode}, 0''')
        a.raw(f's_branch {la[4]}'); a.raw(f'{la[2]}:')
        a.e(f'''s_mov_b32 s20, s90
            s_mov_b32 s21, s91
            s_mov_b32 s22, {512*1376*2}
            s_movk_i32 s53, 1024
            s_sub_u32 s54, {sPi}, 80
            s_mul_i32 {sPdst}, s65, {W2S}
            s_lshl_b32 s56, s54, 12
            s_add_u32 {sPdst}, {sPdst}, s56
            s_add_u32 {sPdst}, {sPdst}, {W2F}
            s_movk_i32 {sPstr}, 1024
            s_mov_b32 {sPmode}, 1''')
        a.raw(f'{la[4]}:')
        a.e(f'''v_mul_u32_u24 v44, s53, v36
            v_lshl_add_u32 v44, v37, 4, v44
            s_lshl_b32 s54, s54, 5
            s_mul_i32 s54, s54, s53
            s_add_u32 s54, s54, s52
            s_lshl_b32 s64, s53, 3
            s_lshl_b32 {sPF}, s65, 9
            s_lshl_b32 {sT1}, {sPi}, 2
            s_add_u32 {sPF}, {sPF}, {sT1}
            s_add_u32 {sPF}, {sPF}, {PF}
            s_add_u32 m0, {sW4}, {LC}''')
        for i in range(4):
            eP = a.e(f'buffer_load_dwordx4 v44, {SP}, s54 offen nt lds')
            if i < 3: a.e('s_add_u32 m0, m0, 1024\n s_add_u32 s54, s54, s64')
        s.fs('S')
        a.e(f'''s_lshl_b32 s64, {sG}, 16
            s_lshl_b32 s65, {sW}, 14
            s_add_u32 s64, s64, s65
            v_xor_b32 v45, 64, v41
            v_xor_b32 v46, 128, v41
            v_xor_b32 v47, 192, v41
            s_mul_i32 {sCs}, {sW}, {8*3072}
            s_lshl_b32 {sT1}, {sM}, 7
            s_add_u32 {sCs}, {sCs}, {sT1}
            s_add_u32 {sCs}, {sCs}, 1024
            s_lshl_b32 {sCl}, {sW}, 10
            s_add_u32 {sCl}, {sCl}, {LB}''')
        D = {}
        xd = []
        for rq in range(4):
            for kq in range(4):
                xd.append([f's_add_u32 m0, s65, {kq*4096+rq*1024}', f's_add_u32 {sU0}, s64, {rq*4096+kq*256}',
                           Nm(f'buffer_load_dwordx4 {["v41","v45","v46","v47"][rq]}, {SX}, {sU0} offen lds', D, 'x')])
        def chunk_dma(c):
            return [[f's_add_u32 m0, {sCl}, {(c%4)*16384 + t*4096}', f's_add_u32 {sU0}, {sCs}, {c*64*3072 + (t%2)*32*3072 + (t//2)*1024}',
                     Nm(f'buffer_load_dwordx4 v40, {SQ}, {sU0} offen lds', D, ('c', c))] for t in range(4)]
        def mix(work, groups, first=0):
            n = len(groups); k = 0
            for idx, it in enumerate(work):
                while k < n and idx >= first + (len(work)-first)*k//n and not it.startswith('s_cselect'): s.run(groups[k]); k += 1
                s.run([it])
            while k < n: s.run(groups[k]); k += 1
        save = a.ins; a.ins = []
        a.e(f'''s_mov_b32 s8, s92
            s_mov_b32 s9, s93
            s_mov_b32 s10, 0x200000
            s_mov_b32 s11, 0x20000
            v_lshlrev_b32 {vG16}, 4, v34
            v_add_u32 {vG16}, {MISC}, {vG16}
            v_lshlrev_b32 {vR4}, 2, v35
            v_add_u32 {vR4}, {MISC}, {vR4}
            v_and_b32 {vFl}, 31, v33
            v_lshlrev_b32 {vFl}, 2, {vFl}
            v_cmp_eq_u32 vcc, 0, v33
            v_mov_b32 v48, 0x40000000
            s_lshl_b32 {sT1}, {sW}, 3
            v_cndmask_b32 {vFlagOff}, v48, v42, vcc
            v_add_u32 {vStatW}, {sT1}, v36
            v_lshlrev_b32 {vStatW}, 2, {vStatW}
            v_add_u32 {vStatW}, {MISC}, {vStatW}
            v_lshlrev_b32 v49, 2, v34
            v_lshl_add_u32 {vStatSt}, v35, 7, v49
            v_cmp_gt_u32 vcc, 32, v33
            v_lshlrev_b32 v49, 7, v33
            s_nop 0
            v_cndmask_b32 {vStatSt}, v48, {vStatSt}, vcc
            v_cndmask_b32 {vT32}, v48, v49, vcc
            s_and_b32 {sT1}, {sW}, 1
            s_lshl_b32 {sT2}, {sT1}, 3
            v_add_u32 {vO8}, {sT2}, {vL16}''')
        a.e(f'''v_lshrrev_b32 v48, 2, v35
            v_and_b32 v49, 3, v33
            v_lshl_add_u32 v50, v34, 3, v48
            v_lshlrev_b32 v50, 7, v50
            v_lshl_add_u32 v51, v49, 3, v50
            v_lshl_add_u32 v52, v34, 2, v48
            v_lshlrev_b32 v52, 7, v52
            v_lshl_add_u32 v52, v49, 4, v52
            s_add_u32 {sT2}, {sW4}, {LC}
            v_add_u32 v53, {sT2}, v51
            v_add_u32 v52, {sT2}, v52
            v_lshrrev_b32 v54, 1, v48
            v_and_b32 v55, 1, v34
            v_lshl_or_b32 v54, v55, 1, v54
            v_xor_b32 v54, {sW}, v54
            v_lshl_add_u32 v51, v54, 5, v51
            v_add_u32 v51, {LB}, v51
            v_xor_b32 v54, v34, v35
            v_lshlrev_b32 v54, 4, v54
            v_lshl_add_u32 v{XA}, v35, 8, v54
            v_xor_b32 v{XA+1}, 64, v{XA}
            v_xor_b32 v{XA+2}, 128, v{XA}
            v_xor_b32 v{XA+3}, 192, v{XA}''')
        a.e(f'''s_lshl_b32 {sGA}, {sG}, 20
            s_add_u32 {sGA}, {sGA}, {GA0}
            s_add_u32 {sGW}, {sGA}, {sW4}
            s_add_u32 {sFL}, {sGA}, {A_FL}
            s_lshl_b32 {sT0}, {sM}, 2
            s_add_u32 {sT0}, {sT0}, {sW}
            s_lshl_b32 {sT1}, {sT0}, 2
            s_add_u32 {sFLme}, {sFL}, {sT1}
            s_lshl_b32 {sKV1}, {sXC}, 17
            s_lshl_b32 {sT1}, {sT0}, 12
            s_add_u32 {sKV1}, {sKV1}, {sT1}
            s_add_u32 {sKV1}, {sKV1}, {KV1}
            s_lshl_b32 {sKV2}, {sT0}, 13
            s_add_u32 {sKV2}, {sKV2}, {KV2}
            s_lshr_b32 {sT0}, {sW}, 1
            s_and_b32 {sT1}, {sW}, 1
            s_lshl_b32 {sOW}, {sT0}, 14
            s_lshl_b32 {sT2}, {sM}, 1
            s_add_u32 {sT2}, {sT2}, {sT1}
            s_lshl_b32 {sXme}, {sT2}, 10
            s_add_u32 {sXme}, {sXme}, {sOW}
            s_add_u32 {sXme}, {sXme}, {sGA}
            s_lshl_b32 {sSTme}, {sT0}, 11
            s_lshl_b32 {sT3}, {sT2}, 3
            s_add_u32 {sSTme}, {sSTme}, {sT3}
            s_add_u32 {sSTme}, {sSTme}, {sGA}
            s_lshl_b32 {sOutO}, {sG}, 16
            s_add_u32 {sOutO}, {sOutO}, {sOW}
            s_lshl_b32 {sT3}, {sT2}, 6
            s_add_u32 {sOutO}, {sOutO}, {sT3}
            s_and_b32 {sT3}, {sT2}, 3
            s_lshl_b32 {sT3}, {sT3}, 6
            v_xor_b32 v55, {sT3}, v{XA}
            s_lshr_b32 {sT3}, {sT2}, 2
            s_lshl_b32 {sT3}, {sT3}, 12
            s_add_u32 {sT3}, {sT3}, {sOW}
            v_add_u32 v55, {sT3}, v55
            s_lshl_b32 {sT3}, {sT1}, 12
            s_add_u32 {sOW}, {sOW}, {sT3}
            s_add_u32 {sGO}, {sGA}, {sOW}
            s_lshl_b32 {sOme}, {sM}, 1
            s_add_u32 {sOme}, {sOme}, {sT0}
            s_lshl_b32 {sOme}, {sOme}, 10
            s_add_u32 {sOme}, {sOme}, {sGA}''')
        a.e(f'''s_min_u32 {sT0}, {sM}, 3
            s_mul_i32 {sT1}, {sM}, 5
            s_add_u32 {sT0}, {sT0}, {sT1}
            s_add_u32 {sHst}, {sT0}, {sW}
            s_lshl_b32 {sHst}, {sHst}, 10
            s_add_u32 {sHst}, {sHst}, {sGA}
            s_lshr_b32 {sT1}, {sW}, 1
            s_add_u32 {sHst2}, {sT0}, {sT1}
            s_add_u32 {sHst2}, {sHst2}, 4
            s_lshl_b32 {sHst2}, {sHst2}, 10
            s_cmp_ge_u32 {sM}, 3
            s_cselect_b32 {sT2}, {sT1}, 0
            s_cmp_lg_u32 {sT2}, 0
            s_cselect_b32 {sHst2}, 0x40000000, {sHst2}
            s_add_u32 {sHst2}, {sHst2}, {sGA}''')
        cw = [i.text for i in a.ins]; a.ins = save
        mix(cw, xd)
        s.fs('S')
        a.e(f'''s_mov_b32 {sOnes}, 0x3F803F80
            s_mov_b32 {sLo}, 0x00003F80
            s_mov_b32 {sHi}, 0x3F800000
            s_mov_b32 {sDelta}, 0x{f2u(1e-6*math.log2(math.e)):x}
            s_mov_b32 {sLn2}, 0x{f2u(math.log(2)):x}
            s_mov_b32 {sLog2e}, 0x{f2u(math.log2(math.e)):x}
            s_mov_b32 s52, 0xAAAAAAAA
            s_mov_b32 s53, 0xAAAAAAAA
            s_mov_b32 {sSpin}, 0x40000
            s_lshr_b32 {sT1}, {sW}, 1
            s_mul_i32 {sT0}, {sW}, 11
            s_cmp_eq_u32 {sW}, 3
            s_cselect_b32 {sT2}, 6, 7
            s_add_u32 {sT2}, {sT2}, {sT0}
            s_mul_i32 {sHd}, {sT1}, {2*HRT}
            s_sub_u32 {sHd}, {HRT}, {sHd}
            s_mul_i32 {sT1}, {sT1}, {HRT}
            s_add_u32 {sT1}, {sT1}, {sGA}
            s_lshl_b32 {sHe}, {sT0}, 10
            s_add_u32 {sHe}, {sHe}, {sT1}
            s_lshl_b32 {sHl}, {sT2}, 10
            s_add_u32 {sHl}, {sHl}, {sT1}
            s_mul_i32 {sT1}, {sM}, {W2S}
            s_add_u32 {sT1}, {sT1}, {W2F}
            s_lshl_b32 {sW2e}, {sT0}, 12
            s_add_u32 {sW2e}, {sW2e}, {sT1}
            s_lshl_b32 {sW2l}, {sT2}, 12
            s_add_u32 {sW2l}, {sW2l}, {sT1}
            s_mov_b32 {sW2m}, {sT1}
            s_sub_u32 {sW26}, {sW2l}, 4096
            s_sub_u32 {sH6}, {sHl}, 1024
            s_add_u32 {sH5}, {sHe}, 5120
            s_cmp_eq_u32 {sW}, 3
            s_cselect_b32 {sH5}, 0x40000000, {sH5}
            s_and_b32 {sT0}, {sW}, 1
            s_lshl_b32 {sT0}, {sT0}, 11
            s_sub_u32 {sW2e2}, {sW2e}, {sT0}
            s_add_u32 {sW2e}, {sW2e}, {sT0}
            s_sub_u32 {sW2l2}, {sW2l}, {sT0}
            s_add_u32 {sW2l}, {sW2l}, {sT0}
            s_sub_u32 {sW262}, {sW26}, {sT0}
            s_add_u32 {sW26}, {sW26}, {sT0}
            s_lshl_b32 {sWQm}, {sM}, 17
            s_lshl_b32 {sT1}, {sW}, 14
            s_add_u32 {sWQ}, {sWQm}, {sT1}
            s_lshl_b32 {sTch}, {sJ}, 2
            s_add_u32 {sTch}, {sTch}, {sW}
            s_lshl_b32 {sTch}, {sTch}, 12
            s_mul_i32 {sW1}, {sM}, {12*16384}
            s_add_u32 {sW1}, {sW1}, {W1F}''')
        s.run(chunk_dma(0)[0] + chunk_dma(0)[1])
        a.e(f'v_readfirstlane_b32 {sT}, v43')
        a.e(f'''s_add_u32 {sT}, {sT}, 0x9E3779B0
            s_and_b32 {sT}, {sT}, -16
            s_getreg_b32 {sXt}, hwreg(HW_REG_XCC_ID, 0, 4)
            s_add_u32 {sXt}, {sXt}, {sT}
            v_mov_b32 {vTag}, {sT}
            v_mov_b32 v48, {sXt}
            s_lshl_b32 {sXFa}, {sXC}, 7
            s_add_u32 {sXFa}, {sXFa}, {XF}
            s_lshl_b32 {sT1}, {sR}, 2
            s_add_u32 {sT0}, {sXFa}, {sT1}''')
        def prep(PB, stores=True):
            with a.skip_if(f's_cmp_eq_u32 {sPmode}, 1', 's_cbranch_scc1'):
                for c in range(4):
                    for hh in range(2): a.e(f'ds_read_b64_tr_b16 {vr(PB+4*c+2*hh,2)}, v53 offset:{hh*512+c*32}')
                a.waitall(vm=False)
            with a.skip_if(f's_cmp_eq_u32 {sPmode}, 1', 's_cbranch_scc0'):
                for c in range(4):
                    for hh in range(2): a.e(f'ds_read_b64_tr_b16 {vr(PB+4*c+2*hh,2)}, v52 offset:{hh*2048+(c//2)*64+(c%2)*8}')
                a.waitall(vm=False)
            if not stores: return
            for c in range(4):
                e = a.e(f'buffer_store_dwordx4 {vr(PB+4*c)}, {vL16}, {SWS}, {sPdst} offen sc1')
                if c < 3: a.e(f's_add_u32 {sPdst}, {sPdst}, {sPstr}')
            return e
        with a.skip_if(f's_cmp_lg_u32 {sW}, 0', 's_cbranch_scc1'):
            a.e(f'buffer_store_dword v48, {vFlagOff}, {SWS}, {sT0} offen sc1')
            a.wait(eP); ePS = prep(56)
        s.run(chunk_dma(0)[2] + chunk_dma(0)[3])
        s.fs('S')
        a.e(f's_lshl_b32 {sT1}, {sW}, 14')
        for q in range(4): a.e(f'v_add_u32 v{72+q}, {sT1}, v{XA+q}')
        for i in range(4): a.e(f'v_mov_b32 v{112+i}, {sOnes}')
        for g_ in chunk_dma(1): s.run(g_)
        a.wait(D['x'])
        w = [f'ds_read_b128 {vr(128+4*ks)}, v{72+ks%4} offset:{(ks//4)*4096}' for ks in range(16)]
        for r in range(128, 192):
            if r == 128: w += [f'v_dot2_f32_bf16 v48, v{r}, {sOnes}, 0', f'v_dot2_f32_bf16 v49, v{r}, v{r}, 0']
            else: w += [f'v_dot2c_f32_bf16 v48, {sOnes}, v{r}', f'v_dot2c_f32_bf16 v49, v{r}, v{r}']
        mix(w, chunk_dma(2) + chunk_dma(3), 8)
        a.e('''v_permlane32_swap_b32 v48, v49
            v_add_f32 v48, v48, v49
            v_mov_b32 v49, v48
            v_permlane16_swap_b32 v48, v49
            v_add_f32 v48, v48, v49
            v_mov_b32 v49, v48
            v_permlane32_swap_b32 v48, v49''')
        a.e(f's_lshl_b32 {sT1}, {sW}, 6\n v_add_u32 v54, {sT1}, {vR4}')
        s.run(s.stats_fin('v48', 'v49', 'v50', 'v54', 0))
        with a.skip_if(f's_cmp_lg_u32 {sW}, 0', 's_cbranch_scc1'):
            a.wait(ePS); a.e(f'buffer_store_dword {vTag}, {vFlagOff}, {SWS}, {sPF} offen sc1')
        s.fs('S')
        AK = 56; XB = [128, 160]
        def reads(c):
            L = []
            for t in range(2):
                ks = 2*c+t
                for hh in range(2):
                    L.append(f'ds_read_b64_tr_b16 {ar(WK+4*ks+2*hh,2)}, v51 offset:{(c%4)*16384+t*4096+hh*512}')
                    L.append(f'ds_read_b64_tr_b16 {vr(WV+4*ks+2*hh,2)}, v51 offset:{(c%4)*16384+8192+t*4096+hh*512}')
                L += [f'ds_read_b128 {vr(XB[c%2]+16*t+4*rt)}, v{XA+ks%4} offset:{rt*16384+(ks//4)*4096}' for rt in range(4)]
            return L
        def mfs(c):
            L = []
            for t in range(2):
                ks = 2*c+t; z = ks == 0
                for rt in range(4):
                    x = vr(XB[c%2]+16*t+4*rt)
                    L += [f'{MF} {vr(AK+8*rt)}, {x}, {ar(WK+4*ks)}, {"0" if z else vr(AK+8*rt)}', f'{MF} {vr(AK+8*rt+4)}, {x}, {vr(WV+4*ks)}, {"0" if z else vr(AK+8*rt+4)}']
                L += [f'{MF} v[88:91], v[112:115], {ar(WK+4*ks)}, {"0" if z else "v[88:91]"}', f'{MF} v[92:95], v[112:115], {vr(WV+4*ks)}, {"0" if z else "v[92:95]"}']
            return L
        for c in range(9):
            if c < 8:
                a.wait(D[('c', c)]); a.waitall(vm=False); a.raw('s_barrier')
            if c in (0, 4, 8): s.fs('S')
            rd = reads(c) if c < 8 else []
            if c == 0:
                s.run(rd + ['ds_read_b128 v[32:35], v55', 'ds_read_b128 v[36:39], v55 offset:32768'])
                continue
            vm = []; va = []; pin = {}
            if c+3 < 8: vm = sum(chunk_dma(c+3), [])
            if c == 1: va = sum([[f'v_lshlrev_b32 v{RES+2*i}, 16, v{32+i}', f'v_and_b32 v{RES+2*i+1}, 0xffff0000, v{32+i}'] for i in range(8)], [])
            if c == 5:
                a.e(f'''s_lshl_b32 {sCb}, {sW4}, 1
                    s_cmp_eq_u32 {sW}, 3
                    s_cselect_b32 {sT0}, {LC-4096}, 0
                    s_cselect_b32 {sT1}, 0, {LC}
                    s_add_u32 {sCb}, {sCb}, {sT0}
                    s_add_u32 {sCb}, {sCb}, {sT1}
                    s_mov_b32 {sNeg}, 0x80008000
                    s_cmp_eq_u32 {sW}, 3
                    s_cselect_b32 {sM5}, {sNeg}, 0
                    s_lshr_b32 {sSTw}, {sW4}, 2
                    s_add_u32 {sSTw}, {sSTw}, {sGA}''')
                a.e(f's_sub_u32 {sT0}, {sPi}, 32\n s_cmp_ge_u32 {sT0}, 91\n s_cselect_b32 {sPdst}, 0x40000000, {sPdst}\n s_cselect_b32 {sPF}, 0x40000000, {sPF}')
                prep(32, False)
                pst = sum([[f'buffer_store_dwordx4 {vr(32+4*k)}, {vL16}, {SWS}, {sPdst} offen sc1', f's_add_u32 {sPdst}, {sPdst}, {sPstr}'] for k in range(4)], [])
                pst[-2] = Nm(pst[-2], D, 'pl')
                vm = [At(8)] + pst[:4]
            if c == 6: vm = [At(8)] + pst[4:]
            if c == 7: vm = [f'buffer_load_dword v104, {vFl}, {SWS}, {sXFa} offen sc1'] + s.touch_kv1(0, 108) + (s.touch_kv2(0, 109) if s.o('tkv2', 0) else [])
            if c == 8:
                vm = [f'ds_read_b128 {vr(32+4*i)}, {vG16} offset:{o}' for i, o in enumerate((ST_RL, ST_RSTD, ST_NB))]
                def pfl():
                    a.wait(D['pl']); a.e(f'buffer_store_dword {vTag}, {vFlagOff}, {SWS}, {sPF} offen sc1')
                pin[2] = [pfl]
                pin[8] = [lambda: s.pf_check(44, False)]
                vm += [At(9)] + s.tq(0)
            sched(a, mfs(c-1), pin, [Stream(rd, 0), Stream(vm, 0, pace=(s.o('pace0', 3) if c < 5 else 6))], [Stream(va, 4)])
        s.fs('S')
        a.e(f'v_subrev_u32 v105, {sT}, v104\n v_cmp_le_u32 vcc, 16, v105')
        with a.rare(None, 's_cbranch_vccnz'):
            l = a.label('Lxf'); a.raw(f'{l}:'); s.spin_guard()
            a.e(f'buffer_load_dword v104, {vFl}, {SWS}, {sXFa} offen sc1'); a.waitall(lg=False)
            a.e(f'v_subrev_u32 v105, {sT}, v104\n v_cmp_le_u32 vcc, 16, v105'); a.raw(f's_cbranch_vccnz {l}')
        a.e(f'v_cmp_ne_u32 vcc, {sXt}, v104\n v_mul_f32 {vCsk}, {sLog2e}, v88\n v_mov_b32 {vCsv}, v92')
        a.raw('s_barrier')
        TMP=96; PK=120; VP=124; KVA=88; ZA=92; W = []
        for sb in range(4):
            ac = AK+8*sb; S = 32+12*(sb%2); RL, R, NB = S, S+4, S+8; o = 2*(sb%2)
            if sb < 3:
                S2 = 32+12*((sb+1)%2)
                W += [f'ds_read_b128 {vr(S2+4*i)}, {vG16} offset:{oo+(sb+1)*64}' for i, oo in enumerate((ST_RL, ST_RSTD, ST_NB))]
            W += [f'v_fma_f32 v{TMP+r}, v{NB+r}, {vCsk}, {sDelta}' for r in range(4)]
            W += [f'v_fma_f32 v{TMP+r}, v{ac+r}, v{RL+r}, v{TMP+r}' for r in range(4)]
            W += [f'v_mul_f32 v{TMP+8+r}, v{NB+r}, {vCsv}' for r in range(4)]
            for r in range(4): W += [f'v_exp_f32 v{TMP+4+r}, v{TMP+r} clamp', f'v_max_f32 v{TMP+r}, {sDelta}, v{TMP+r}']
            W += [f'v_fma_f32 v{TMP+8+r}, v{ac+4+r}, v{R+r}, v{TMP+8+r}' for r in range(4)]
            W += [f'v_fma_f32 v{TMP+r}, v{TMP+r}, {sLn2}, v{TMP+4+r}' for r in range(4)]
            W += [f'v_cvt_pk_bf16_f32 v{VP+o}, v{TMP+8}, v{TMP+9}', f'v_cvt_pk_bf16_f32 v{VP+o+1}, v{TMP+10}, v{TMP+11}',
                  f'v_cvt_pk_bf16_f32 v{PK+o}, v{TMP}, v{TMP+1}', f'v_cvt_pk_bf16_f32 v{PK+o+1}, v{TMP+2}, v{TMP+3}']
            if sb % 2 == 1:
                c = "0" if sb == 1 else None
                W += [f'{MF} {vr(ZA)}, {vr(PK)}, v[112:115], {c or vr(ZA)}', f'{MF} {vr(KVA)}, {vr(PK)}, {vr(VP)}, {c or vr(KVA)}']
        s.wql = 0; nwq = s.o('wq0', 8)
        it = Stream(s.wq_loads(0, nwq)).items; G = []; cur = []
        for x in it:
            cur.append(x)
            if x.startswith('buffer'): G.append(cur); cur = []
        mix(W, G, 30)
        s.st0 = {'nwq': nwq, 'won': 0}
        s.fs('S')
        if s.kw.get('fine') == 'S':
            a.waitall()
            for k in range(13): a.e(f'v_readlane_b32 s{sPR+2*k}, v31, {2*k}')
            a.raw('s_nop 4'); a.raw('s_branch Lfin')
        s.stamp(1)
        if s.force == 'slow': a.raw('s_branch Lslow')
        elif s.force != 'fast': a.raw('s_cbranch_vccnz Lslow')

    def pf_check(s, vp, late):
        a = s.a
        l = a.label('Lpf'); a.raw(f'{l}:'); s.spin_guard()
        a.e(f'v_lshrrev_b32 v{vp+2}, 2, {vL16}\n s_lshl_b32 {sT0}, {sM}, 9\n s_add_u32 {sT0}, {sT0}, {PF}')
        if late:
            a.e(f'buffer_load_dword v{vp}, v{vp+2}, {SWS}, {sT0} offen offset:128 sc1')
            a.e(f'buffer_load_dword v{vp+1}, {vFl}, {SWS}, {sT0} offen offset:364 sc1')
            a.waitall(lg=False)
            a.e(f'v_cmp_ne_u32 vcc, {sT}, v{vp}\n v_cmp_ne_u32 {sCm}, {sT}, v{vp+1}\n s_or_b64 vcc, vcc, {sCm}')
        else:
            a.e(f'buffer_load_dword v{vp}, {vFl}, {SWS}, {sT0} offen sc1'); a.waitall(lg=False)
            a.e(f'v_cmp_ne_u32 vcc, {sT}, v{vp}')
        a.raw(f's_cbranch_vccnz {l}')

    def barrier(s, *ents):
        def f():
            s.a.wait(*[e() if callable(e) else e for e in ents]); s.a.raw('s_barrier')
        return f

    def arrivals(s, st, pin, mem, valu, buf, b, VB, reg, L):
        a = s.a
        for rt, gv, G, extra in L:
            rdv, vv = s.ver('b128', VB, rt*16384, b)
            mem.insert(0, Stream([lambda rt=rt: a.wait(st[('dma', rt)])] + rdv, gv, deadline=G-4))
            valu.insert(0, Stream(vv, gv+8, deadline=G-1))
            def f(rt=rt, extra=extra):
                s.ver_branch(s.tile_dma(buf, rt, {}, sT0, reg), 'b128', VB, rt*16384, b)
                s.barrier(*[st[k] for k in extra])()
            pin.setdefault(G, []).insert(0, f)
    def P1(s, l, prev):
        a = s.a; st = prev; s.wql = l
        RING=32; NR=6; ACC=[56,64]; STR=72; TMP=84; PK=96; VP=100; KVA=104; ZA=108; ONES=112; SL=120; VB=176
        def rd(n): return f'ds_read_b128 {vr(RING+4*(n%NR))}, v{XA+n%4} offset:{(n//16)*16384+((n%16)//4)*4096}'
        mf = []; pin = {}
        for n in range(64):
            sb, ks = divmod(n, 16); ac = ACC[sb%2]
            mf.append(f'{MF} {vr(ac)}, {vr(RING+4*(n%NR))}, {ar(WK+4*ks)}, {"0" if ks==0 else vr(ac)}')
            mf.append(f'{MF} {vr(ac+4)}, {vr(RING+4*(n%NR))}, {vr(WV+4*ks)}, {"0" if ks==0 else vr(ac+4)}')
        def epi(sb):
            ac = ACC[sb%2]; RL, R, NB = STR, STR+4, STR+8
            L = [f'ds_read_b128 {vr(NB)}, {vG16} offset:{ST_NB+sb*64}', f'ds_read_b128 {vr(RL)}, {vG16} offset:{ST_RL+sb*64}',
                 f'ds_read_b128 {vr(R)}, {vG16} offset:{ST_RSTD+sb*64}']
            o = 2*(sb%2)
            B = [f'v_fma_f32 v{TMP+r}, v{NB+r}, {vCsk}, {sDelta}' for r in range(4)]
            B += [f'v_fma_f32 v{TMP+r}, v{ac+r}, v{RL+r}, v{TMP+r}' for r in range(4)]
            for r in range(4): B += [f'v_exp_f32 v{TMP+4+r}, v{TMP+r} clamp', f'v_max_f32 v{TMP+r}, {sDelta}, v{TMP+r}']
            B += [f'v_fma_f32 v{TMP+r}, v{TMP+r}, {sLn2}, v{TMP+4+r}' for r in range(4)]
            B += [f'v_cvt_pk_bf16_f32 v{PK+o}, v{TMP}, v{TMP+1}', f'v_cvt_pk_bf16_f32 v{PK+o+1}, v{TMP+2}, v{TMP+3}']
            V = [f'v_mul_f32 v{TMP+8+r}, v{NB+r}, {vCsv}' for r in range(4)]
            V += [f'v_fma_f32 v{TMP+8+r}, v{ac+4+r}, v{R+r}, v{TMP+8+r}' for r in range(4)]
            V += [f'v_cvt_pk_bf16_f32 v{VP+o}, v{TMP+8}, v{TMP+9}', f'v_cvt_pk_bf16_f32 v{VP+o+1}, v{TMP+10}, v{TMP+11}']
            B = (B, V)
            T = []
            if sb % 2 == 1:
                c = "0" if sb == 1 else None
                T = [f'{MF} {vr(ZA)}, {vr(PK)}, {vr(ONES)}, {c or vr(ZA)}', f'{MF} {vr(KVA)}, {vr(PK)}, {vr(VP)}, {c or vr(KVA)}']
            return L, B, T
        s.fs('P1')
        mem = []; valu = []
        if l == 1:
            for i in range(4): a.e(f'v_mov_b32 v{ONES+i}, {sOnes}')
            for q in range(4): a.e(f'v_add_u32 v{XA+q}, {LB+1024*q}, {vL16}')
            a.e(f's_add_u32 {sT0}, {sW4}, {LB}\n v_add_u32 {vS0}, {sT0}, {vL16}')
            s.fs('P1')
            rdv, vv = s.ver('b128', VB, 0, 0)
            a.wait(st[('dma',0)]); s.run(rdv + vv); a.raw('s_nop 1')
            s.ver_branch(s.tile_dma(s.bX2(), 0, {}, sT0, LB), 'b128', VB, 0, 0)
            s.barrier()()
        s.fs('P1')
        for n in range(NR-1): a.e(rd(n))
        for n in range(64-NR+1): pin.setdefault(2*n+1, []).append(rd(n+NR-1))
        G1, G2, G3 = [2*(16*sb-NR+1) for sb in (1,2,3)]
        if l == 1:
            s.arrivals(st, pin, mem, valu, s.bX2(), 0, VB, LB, [(1, s.o('p1v1', 2), G1, ['sw0']), (2, s.o('p1v2', 36), G2, []), (3, s.o('p1v3', 60), G3, ['sw1'])])
            valu.insert(0, Stream(s.stats_chk(0, 1, 0, SL) + s.stats_use(1, 0, SL, st, 'sw0'), 0, deadline=G1-2))
            nwq = s.o('wq1', 16); w0 = st.get('wqpre', 0)
            q = [At(s.o('p1d2', 6))] + s.tile_dma(s.bX2(), 2, st, sU0, LB) + s.stats_ld(0, 1, 1, SL+4, sU0) + s.tile_dma(s.bX2(), 3, st, sU0, LB) + (s.t2(0) if s.o('tw2', 1) else []) + s.wq_loads(w0, 12) + (s.t2(1) if s.o('tw2', 1) else []) + s.wo_dma(st, 0, s.o('wo1', 1)) + [At(G3+1)] + s.wq_loads(12, nwq)
            mem.append(Stream(q, 0, pace=s.o('pace1', 3)))
            valu.append(Stream(s.stats_chk(0, 1, 1, SL+4) + s.stats_use(1, 1, SL+4, st, 'sw1'), s.o('p1s1', 44), deadline=G3))
        st['nwq'] = nwq
        for k in (19, 31, 51, 63, 83, 95): pin.setdefault(k, []).append(s.F('P1'))
        for sb in range(3):
            L, B, T = epi(sb); b0 = 32*(sb+1)
            mem.insert(0, Stream([At(b0-6 if sb == 0 else b0-1)] + L, 0))
            B, V = B
            valu.append(Stream([At(b0-2 if sb == 0 else b0+1)] + B[:4] + [At(b0+3)] + B[4:], 0, deadline=b0+30))
            valu.append(Stream([At(b0-2 if sb == 0 else b0+1)] + V[:4] + [At(b0+4)] + V[4:], 0, deadline=b0+30))
            pin.setdefault(b0+30, []).extend(T)
        L3, B3, T3 = epi(3)
        pin.setdefault(126, []).extend(L3[:2]); pin.setdefault(127, []).extend(L3[2:])
        left = sched(a, mf, pin, mem, valu); s.lefts.append(left)
        s.fs('P1')
        B3, V3 = B3
        s.run(B3[:4] + V3[:4] + B3[4:16] + V3[4:8] + B3[16:] + V3[8:] + T3)
        s.kv_publish(l, 84, KVA, ZA)
        s.fs('P1')
        st['won'] = s.o('wo1', 1)
        return st

    def kv_publish(s, l, G0, KVA, ZA):
        a = s.a
        a.e(f'''v_mov_b32 v{G0+3}, {vTag}
            s_lshl_b32 {sT0}, {sJ}, 10
            s_add_u32 {sT0}, {sT0}, {sKV1}
            s_add_u32 {sT0}, {sT0}, {l*0x100000}
            v_cvt_pk_bf16_f32 v{G0+4}, v{ZA}, v{ZA+1}
            v_cvt_pk_bf16_f32 v{G0+5}, v{ZA+2}, v{ZA+3}
            v_cvt_pk_bf16_f32 v{G0}, v{KVA}, v{KVA+1}
            v_cvt_pk_bf16_f32 v{G0+1}, v{KVA+2}, v{KVA+3}
            v_cndmask_b32 v{G0+2}, v{G0+4}, v{G0+5}, {sOdd}''')
        a.e(f'buffer_store_dwordx4 {vr(G0)}, {vL16}, {SWS}, {sT0} offen{s.sc}')

    def kv_tags(s, base, n):
        a = s.a
        for i in range(n):
            if i == 0: a.e(f'v_cmp_ne_u32 {sAcc}, {sT}, v{base+3}')
            else: a.e(f'v_cmp_ne_u32 {sCm}, {sT}, v{base+4*i+3}\n s_or_b64 {sAcc}, {sAcc}, {sCm}')
    def kv_add(s, base, n, acc):
        a = s.a
        for i in range(n):
            g = base + 4*i
            for k in range(3):
                if i == 0: a.e(f'v_lshlrev_b32 {acc[2*k]}, 16, v{g+k}\n v_and_b32 {acc[2*k+1]}, 0xffff0000, v{g+k}')
                else: a.e(f'v_dot2_f32_bf16 {acc[2*k]}, v{g+k}, {sLo}, {acc[2*k]}\n v_dot2_f32_bf16 {acc[2*k+1]}, v{g+k}, {sHi}, {acc[2*k+1]}')
    def kv_sum(s, base, n, acc):
        a = s.a
        for i in range(n):
            g = base + 4*i
            for k, (src, sel) in enumerate([(0,sLo),(0,sHi),(1,sLo),(1,sHi),(2,sLo),(2,sHi)]):
                a.e(f'v_dot2_f32_bf16 v{acc+k}, v{g+src}, {sel}, {"0" if i == 0 else f"v{acc+k}"}')
            if i == 0: a.e(f'v_cmp_ne_u32 {sAcc}, {sT}, v{g+3}')
            else: a.e(f'v_cmp_ne_u32 {sCm}, {sT}, v{g+3}\n s_or_b64 {sAcc}, {sAcc}, {sCm}')

    def woreg(s, ks, sl):
        if ks % 4 == 3: return 64 + 8*(ks//4) + 4*sl
        return 96 + 8*((ks//4)*3 + ks%4) + 4*sl
    def Q(s, l, st):
        a = s.a; s.wql = l
        RING=32; NR=8; QA=96; CS=92; T=120; PQ=64; ONES=112; EPS=72; SUM=76; KT=82; ZT=84; NBR=88; OUT=88
        s.fs('Q')
        R1 = 68; RA = ['v84', 'v85', 'v86', 'v87', vS0, vS1]
        def red_ld():
            a.e(f's_add_u32 {sT0}, {sKV1}, {l*0x100000}')
            for i in range(4): a.e(f'buffer_load_dwordx4 {vr(R1+4*i)}, {vL16}, {SWS}, {sT0} offen offset:{i*1024} sc1')
        def red1():
            with a.skip_if(f's_cmp_lg_u32 {sW}, {sJ}', 's_cbranch_scc1'): red_ld()
        def red2():
            with a.skip_if(f's_cmp_lg_u32 {sW}, {sJ}', 's_cbranch_scc1'):
                s.kv_tags(R1, 4)
                with a.rare(f's_cmp_lg_u64 {sAcc}, 0', 's_cbranch_scc1'):
                    lb = a.label('Lred'); a.raw(f'{lb}:'); s.spin_guard()
                    red_ld(); s.kv_tags(R1, 4)
                    a.e(f's_cmp_lg_u64 {sAcc}, 0'); a.raw(f's_cbranch_scc1 {lb}')
                s.kv_add(R1, 4, RA)
                a.e(f'''s_lshl_b32 {sT0}, {sXC}, 10
                    s_add_u32 {sT0}, {sT0}, {sKV2}
                    s_add_u32 {sT0}, {sT0}, {l*0x40000}
                    v_cvt_pk_bf16_f32 v{R1}, {RA[0]}, {RA[1]}
                    v_cvt_pk_bf16_f32 v{R1+1}, {RA[2]}, {RA[3]}
                    v_cvt_pk_bf16_f32 v{R1+2}, {RA[4]}, {RA[5]}''')
                a.e(f'buffer_store_dwordx4 {vr(R1)}, {vL16}, {SWS}, {sT0} offen sc1')
            s.fs('Q')
        order = [(rt, ks) for rt in range(4) for ks in range(16)]
        def rd(n): rt, ks = order[n]; return f'ds_read_b128 {vr(RING+4*(n%NR))}, v{XA+ks%4} offset:{rt*16384+(ks//4)*4096}'
        mf = []; pin = {}; gend = {}
        for n, (rt, ks) in enumerate(order):
            mf.append(f'{MF} {vr(QA+4*rt)}, {vr(128+4*ks)}, {vr(RING+4*(n%NR))}, {"0" if ks==0 else vr(QA+4*rt)} ; ?v{128+4*ks}=wq{l}')
            if n+NR-1 < 64: pin.setdefault(len(mf)-1, []).append(rd(n+NR-1))
            if l == 0 and n < 16: mf.append(f'{MF} {vr(CS)}, {vr(128+4*ks)}, {vr(ONES)}, {"0" if ks==0 else vr(CS)}')
            gend[rt] = len(mf)
        wql = Stream(s.wq_loads(st['nwq'], 16)).items
        if s.o('rga', 6) < 0: red1()
        s.run(wql)
        a.e(f's_lshl_b32 {sT0}, {sW}, 6\n v_add_u32 {vS2}, {sT0}, {vG16}')
        if l == 1: a.e(f'ds_read_b128 {vr(CS)}, {vS2} offset:{CSQ}')
        for n in range(NR-1): a.e(rd(n))
        def epi(rt):
            nb, rl = f'v{NBR+2*(rt%2)}', f'v{NBR+1+2*(rt%2)}'
            R = [f'ds_read_b32 {nb}, {vR4} offset:{ST_NB+rt*64}', f'ds_read_b32 {rl}, {vR4} offset:{ST_RL+rt*64}']
            L = [f'v_fma_f32 v{T+r}, {nb}, v{CS+r}, {sDelta}' for r in range(4)]
            L += [f'v_fma_f32 v{T+r}, v{QA+4*rt+r}, {rl}, v{T+r}' for r in range(4)]
            for r in range(4): L += [f'v_exp_f32 v{T+4+r}, v{T+r} clamp', f'v_max_f32 v{T+r}, {sDelta}, v{T+r}']
            L += [f'v_fma_f32 v{T+r}, v{T+r}, {sLn2}, v{T+4+r}' for r in range(4)]
            L += [f'v_cvt_pk_bf16_f32 v{PQ+2*rt}, v{T}, v{T+1}', f'v_cvt_pk_bf16_f32 v{PQ+2*rt+1}, v{T+2}, v{T+3}']
            return R, L
        s.run(epi(0)[0] + epi(1)[0])
        S2 = 32
        def st2_loads():
            for i in range(8):
                if i % 4 == 0: a.e(f's_add_u32 {sT0}, {sKV2}, {l*0x40000+i*1024}')
                a.e(f'buffer_load_dwordx4 {vr(S2+4*i)}, {vL16}, {SWS}, {sT0} offen offset:{(i%4)*1024} sc1')
        valu = []
        for rt in range(3):
            pre = []
            if rt == 0 and l == 0: pre = [f'v_mul_f32 v{CS+r}, {sLog2e}, v{CS+r}' for r in range(4)] + [f'ds_write_b128 {vS2}, {vr(CS)} offset:{CSQ}']
            R, L = epi(rt)
            post = epi(rt+2)[0] if rt < 2 else []
            valu.append(Stream(pre + L + post, gend[rt]+3, deadline=(gend[rt+1]+2 if rt < 2 else None)))
        n0 = 0
        wo = [s.wo_dma(st, i, i+1) for i in range(st['won'], 4)]
        if l == 0:
            for i in range(4): a.e(f'v_mov_b32 v{120+i}, 0')
            p1 = s.poison(120, '', 1, sV0, sV1) if s.sc == '' else []
            if p1: p1[-1] = Nm(p1[-1], st, 'pz1')
            s.run(p1)
        if l == 0: q = s.tq(1) + wo[0] + wo[1] + [lambda: s.pf_check(124, True)] + s.t1(0) + wo[2] + wo[3] + s.t2(0) + (s.touch_oxs(127) if s.o('tch', 1) else [])
        else: q = sum(wo, []) + (s.t2(2) if s.o('tw2', 1) else [])
        q = Stream(q).items
        g = 0
        for it in q:
            pin.setdefault(g, []).insert(len([x for x in pin.get(g, []) if not (isinstance(x, str) and x.startswith('ds_read'))]), it)
            t = it.text if isinstance(it, Nm) else it
            if isinstance(t, str) and t.startswith('buffer'): g += (3 if l == 0 else 4)
        assert g < len(mf) - 8, g
        ga, gb = s.o('rga', 6), s.o('rgb', 28)
        assert gb < gend[2]

        if ga >= 0: pin.setdefault(ga, []).insert(0, red1)
        pin.setdefault(gb, []).insert(0, red2)
        for k in (gend[2]-1,): pin.setdefault(k, []).append(s.F('Q'))
        s.lefts.append(sched(a, mf, pin, [], valu, over=True))
        s.run(epi(3)[1] + [f'v_mov_b32 v{EPS+r}, 0x{f2u(1e-6):x}' for r in range(4)])
        a.e(f's_and_b32 {sT0}, {sW}, 1\n s_lshl_b32 {sT0}, {sT0}, 11\n s_add_u32 {sT0}, {sT0}, {RW(l)}\n v_add_u32 {vS2}, {sT0}, {vL16}')
        def wo_rd(ks): return [f'ds_read_b128 {vr(s.woreg(ks, sl))}, {vS2} offset:{ks*4096+sl*1024} ; @wo{l}' for sl in range(2)]
        early = [ks for ks in range(16) if not (64 <= s.woreg(ks, 0) < 96 or S2 <= s.woreg(ks, 0) < S2+32)]
        late = [ks for ks in range(16) if ks not in early]
        s.fs('Q')
        a.wait(st['wo'])
        if l == 0: a.e(s.flag_st(0, 0, 0))
        s.barrier()()
        if s.o('qsleep', 0): a.raw(f"s_sleep {s.o('qsleep', 0)}")
        s.fs('Q')
        st2_loads()
        for ks in early: s.run(wo_rd(ks))
        st['w2'] = {}
        for i in range(1, 1+s.o('w2q', 3)): s.run(s.w2_dma(i, st['w2']))
        n1 = s.o('w1a', 12)
        if l == 0:
            for i in range(4): a.e(f'v_mov_b32 v{32+i}, 0')
            ph = s.poison(32, s.sc, 2) if s.sc == '' else []
            if ph: ph[-1] = Nm(ph[-1], st, 'pzh')
            s.run(s.t1(1) + ph + s.w1_loads(0, n1) + s.t1(2))
        st['w1n'] = n1
        s.stamp(3); s.fs('Q')
        s.kv_sum(S2, 8, SUM)
        a.e(f's_cmp_lg_u64 {sAcc}, 0')
        s.fs('Q')
        with a.rare(None, 's_cbranch_scc1'):
            lo = a.label('Lst2o'); a.raw(f'{lo}:'); s.spin_guard()
            for i in range(8):
                a.e(f'v_cmp_ne_u32 vcc, {sT}, v{S2+4*i+3}\n s_nop 1')
                with a.skip_if(None, 's_cbranch_vccz'):
                    a.e(f's_add_u32 {sT0}, {sKV2}, {l*0x40000+i*1024}')
                    a.e(f'buffer_load_dwordx4 {vr(S2+4*i)}, {vL16}, {SWS}, {sT0} offen sc1')
            a.waitall(lg=False)
            s.kv_tags(S2, 8)
            a.e(f's_cmp_lg_u64 {sAcc}, 0'); a.raw(f's_cbranch_scc1 {lo}')
            s.kv_sum(S2, 8, SUM)
        s.stamp(4); s.fs('Q')
        a.e(f'''v_cvt_pk_bf16_f32 v86, v{SUM+4}, v{SUM+5}
            v_cvt_pk_bf16_f32 v{KT}, v{SUM}, v{SUM+1}
            v_cvt_pk_bf16_f32 v{KT+1}, v{SUM+2}, v{SUM+3}
            v_mov_b32_dpp v{ZT}, v86 quad_perm:[0,0,2,2] {DPPF}
            v_mov_b32_dpp v{ZT+1}, v86 quad_perm:[1,1,3,3] {DPPF}
            s_add_u32 {sT0}, {sOme}, {s.bO(l)}''')
        for rt in range(4):
            a.e(f'{MF16} {vr(32+4*rt)}, {vr(ZT,2)}, {vr(PQ+2*rt,2)}, {vr(EPS)}')
            a.e(f'{MF16} {vr(48+4*rt)}, {vr(KT,2)}, {vr(PQ+2*rt,2)}, 0')
        a.e('v_rcp_f32 v32, v32')
        for rt in range(4):
            if rt < 3: a.e(f'v_rcp_f32 v{36+4*rt}, v{36+4*rt}')
            for r in range(4): a.e(f'v_mul_f32 v{48+4*rt+r}, v{48+4*rt+r}, v{32+4*rt}')
            a.e(f'v_cvt_pk_bf16_f32 v{OUT+2*rt}, v{48+4*rt}, v{49+4*rt}\n v_cvt_pk_bf16_f32 v{OUT+1+2*rt}, v{50+4*rt}, v{51+4*rt}')
            a.e(f'v_or_b32 v{OUT+2*rt}, 1, v{OUT+2*rt}' if l == 0 else f'v_and_b32 v{OUT+2*rt}, -2, v{OUT+2*rt}')
            e = a.e(f'buffer_store_dwordx2 {vr(OUT+2*rt,2)}, {vO8}, {SWS}, {sT0} offen{s.sc}')
            if rt < 3: a.e(f's_add_u32 {sT0}, {sT0}, 16384')
        s.fs('Q')
        for ks in late: s.run(wo_rd(ks))
        if l == 0:
            a.wait(st.get('pzh')); a.e(s.flag_st(0, 0, 1)); s.run([s.poll_ld(0, 0, 0)]); s.poll_check(0, 0, 0)
        s.fs('Q')
        if l == 0: s.run(s.w1_loads(n1, n1 + s.o('w1b', 8))); st['w1n'] = n1 + s.o('w1b', 8)
        s.stamp(5); s.fs('Q')
        return st

    def P2(s, l, st):
        a = s.a
        RING=32; NR=6; VB=56; PKO=96; b = 1 - l
        s.fs('P2')
        n2 = st['w1n']; n3 = min(48, n2 + s.o('w1c', 10))
        def chunk(c, t, d):
            hf, kh = divmod(c, 2)
            L = [f's_add_u32 m0, {sOW}, {RW(l)+hf*32768+kh*8192}', f's_add_u32 {t}, {sGO}, {s.bO(l)+hf*32768+kh*8192}']
            L += [f'buffer_load_dwordx4 {vL16}, {SWS}, {t} offen offset:{i*1024}{s.lc} lds' for i in range(4)]
            L[-1] = Nm(L[-1], d, ('c', c))
            return L
        coff = lambda c: (c//2)*32768 + (c%2)*8192
        a.waitall(vm=False); a.raw('s_barrier')
        if s.kw.get('fine') == 'X' and l == s.o('fl', 1):
            a.waitall()
            for rep_ in range(2):
                for i in (1, 2, 3, 4):
                    s.fs('X'); d = {}; s.run(s.w2_dma(i, d)); a.waitall()
            s.fs('X')
            s.run(s.wq_loads(0, 4)); a.waitall(); s.fs('X')
            s.run(s.wq_loads(0, 4)); a.waitall(); s.fs('X')
            a.raw('s_branch Lfin')
        if s.o('opoll', 1):
            a.e(f'v_lshlrev_b32 {vS0}, 7, {vFl}\n v_and_b32 {vS0}, 0x3c00, {vS0}\n v_and_b32 {vS1}, 4, {vFl}\n v_lshl_add_u32 {vS0}, {vS1}, 1, {vS0}\n s_add_u32 {sT0}, {sGA}, {s.bO(l)+3*16384}')
            lb = a.label('Lop'); a.raw(f'{lb}:'); s.spin_guard()
            a.e(f'buffer_load_dword {vP}, {vS0}, {SWS}, {sT0} offen offset:1008 sc1'); a.waitall(lg=False)
            a.e(f'v_and_b32 {vP}, 1, {vP}\n v_cmp_ne_u32 vcc, {b}, {vP}'); a.raw(f's_cbranch_vccnz {lb}')
        s.fs('P2')
        s.run(chunk(0, sT0, st) + chunk(1, sT0, st) + (chunk(2, sT0, st) if s.o('p2b', 2) == 3 else []))
        s.stamp(6); s.fs('P2')
        a.e(f's_and_b32 {sT0}, {sOW}, 0x4000\n s_add_u32 {sT0}, {sT0}, {RW(l)}\n v_add_u32 {vS2}, {sT0}, {vL16}\n s_add_u32 {sT0}, {sOW}, {RW(l)}\n v_add_u32 {vS0}, {sT0}, {vL16}\n v_add_u32 {vS1}, 8, {vS0}')
        def rd(n): hf, ks = divmod(n, 16); return f'ds_read_b128 {vr(RING+4*(n%NR))}, {vS2} offset:{hf*32768+ks*1024}'
        mf = []; pin = {}; mem = []; valu = []
        for n in range(32):
            hf, ks = divmod(n, 16)
            for sl in range(2):
                ac = RES+8*hf+4*sl
                mf.append(f'{MF} {vr(ac)}, {vr(s.woreg(ks, sl))}, {vr(RING+4*(n%NR))}, {vr(ac)} ; ?v{s.woreg(ks, sl)}=wo{l}')
        rdv, vv = s.ver('r2', VB, 0, b)
        a.wait(st[('c',0)]); s.fs('P2')
        s.run(rdv + chunk(s.o('p2b', 2), sT0, st) + vv); a.raw('s_nop 1')
        s.ver_branch(chunk(0, sT0, {}), 'r2', VB, 0, b)
        a.raw('s_barrier')
        s.fs('P2')
        for n in range(NR-1): a.e(rd(n))
        for n in range(32-NR+1): pin.setdefault(2*n+1, []).append(rd(n+NR-1))
        for c in range(1, 4):
            G = 2*(8*c-NR+1)
            rdv, vv = s.ver('r2', VB, coff(c), b)
            mem.append(Stream([lambda c=c: a.wait(st[('c', c)])] + rdv, max(0, G-10), deadline=max(2, G-4)))
            valu.append(Stream(vv, max(3, G-5), deadline=G-1))
            def f(c=c):
                s.ver_branch(chunk(c, sT0, {}), 'r2', VB, coff(c), b); a.raw('s_barrier')
            pin.setdefault(G, []).insert(0, f)
        extra = s.t2(1) + s.w1_loads(n2, n3) + s.t2(2) if l == 0 else []
        xp = s.x_pub(l, 0, 0, PKO, 'v104', 'v105', st, 'p0', False, sV0)
        mem.append(Stream(xp[:8], 35, deadline=44))
        mem.append(Stream((chunk(3, sU0, st) if s.o('p2b', 2) == 2 else []) + [At(s.o('p2x', 24))] + extra, 3, pace=s.o('pace2', 2)))
        valu.append(Stream(xp[8:], 44))
        for k in (5, 15, 31, 47): pin.setdefault(k, []).append(s.F('P2'))
        s.lefts.append(sched(a, mf, pin, mem, valu))
        s.fs('P2')
        s.run(s.x_pub(l, 0, 1, PKO+4, vS0, vS1, st, 'p1', True, sT0))
        s.fs('P2')
        st['w1n'] = n3
        s.stamp(7)
        return st

    def P3(s, l, st):
        a = s.a; w2 = st['w2']
        RING=32; NR=6; ACC=[56,68]; CS=80; NM=92; PKD=[144,150]; SL=156; ONES=164; HELD=176
        VB = 128
        s.fs('P3')
        s.run(s.tile_dma(s.bX1(l), 0, st, sT0, RW(l)) + s.tile_dma(s.bX1(l), 1, st, sT0, RW(l)))
        if l == 0: s.run(s.w1_loads(st['w1n'], 48))
        else: s.run(s.held()); st['held'] = 1
        s.fs('P3')
        a.e(f's_mul_i32 {sT0}, {sW}, 192\n v_add_u32 {vS2}, {sT0}, {vG16}\n s_add_u32 {sT0}, {sW4}, {RW(l)}\n v_add_u32 {vS0}, {sT0}, {vL16}\n v_add_u32 v94, {RW(l)}, {vL16}')
        if l == 1:
            for sl in range(3): a.e(f'ds_read_b128 {vr(CS+4*sl)}, {vS2} offset:{CSW1+sl*64}')
        rdv, vv = s.ver('b128', VB, 0, 1)
        a.wait(st[('dma',0)]); s.run(rdv + vv); a.raw('s_nop 1')
        s.ver_branch(s.tile_dma(s.bX1(l), 0, {}, sT0, RW(l)), 'b128', VB, 0, 1)
        if l == 0:
            for i in range(4): a.e(f'v_mov_b32 v{ONES+i}, {sOnes}')
            for k in range(16):
                for sl in range(3): a.e(s.colsum_w1(sl, CS, ONES)[k])
            for sl in range(3): a.e(f'ds_write_b128 {vS2}, {vr(CS+4*sl)} offset:{CSW1+sl*64}')
        s.stamp(8); s.fs('P3')
        def rd(n): return f'ds_read_b128 {vr(RING+4*(n%NR))}, v94 offset:{n*1024}'
        mf = []; pin = {}
        for n in range(64):
            sb, ks = divmod(n, 16)
            for sl in range(3):
                ac = ACC[sb%2]+4*sl
                mf.append(f'{MF} {vr(ac)}, {ar(64*sl+4*ks)}, {vr(RING+4*(n%NR))}, {"0" if ks==0 else vr(ac)} ; ?a{64*sl+4*ks}=w1')
        s.barrier()()
        s.fs('P3')
        for n in range(NR-1): a.e(rd(n))
        for n in range(64-NR+1): pin.setdefault(3*n+2, []).append(rd(n+NR-1))
        G1, G2, G3 = [3*(16*sb-NR+1) for sb in (1,2,3)]
        G4 = 3*48+9
        mem = []; valu = []
        s.arrivals(st, pin, mem, valu, s.bX1(l), 1, VB, RW(l), [(1, 6, G1, []), (2, 54, G2, ['sw0']), (3, 100, G3, ['sw1'])])
        pin.setdefault(G4, []).insert(0, s.barrier())
        valu.append(Stream(s.stats_chk(l, 0, 0, SL) + s.stats_use(0, 0, SL, st, 'sw0') + s.stats_chk(l, 0, 1, SL+4) + [By(G2-2)] + s.stats_use(0, 1, SL+4, st, 'sw1'), 36, deadline=G3-2))
        todo = [i for i in range(1, 5) if i not in w2]
        q = []
        q += s.stats_ld(l, 0, 0, SL, sU0) + s.tile_dma(s.bX1(l), 2, st, sU0, RW(l)) + s.stats_ld(l, 0, 1, SL+4, sU0) + s.tile_dma(s.bX1(l), 3, st, sU0, RW(l))
        for i in todo: q += s.w2_dma(i, w2)
        if 'held' not in st: q += s.held()
        if l == 0:
            def five():
                with a.skip_if(f's_cmp_eq_u32 {sW}, 3', 's_cbranch_scc1'): s.run(s.w2_dma(5, w2))
            q += [five] + s.w2_dma(6, w2)
        q += [At(G2+1)] + s.w2_dma(7, w2)
        nl = s.o('late0', 10) if l == 0 else 10
        if nl > 8: q += [At(G3+1)] + s.w2_dma(8, w2)
        if nl > 9: q += [At(G4+1)] + s.w2_dma(9, w2)
        st['nA'] = s.o('p3a', 5) if l == 1 else s.o('p3a0', 4)
        if l == 0: q += [s.poll_ld(0, 0, 1), At(s.o('p3h', 138)), lambda: s.poll_check(0, 0, 1)]
        al = [At(s.o('p3h', 138))] + sum([s.aload(l, n) for n in range(st['nA'])], [])
        k9 = [k for k, it in enumerate(q) if isinstance(it, At) and it.g == G4+1]
        if k9: q = q[:k9[0]] + al[:8] + q[k9[0]:] + al[8:]
        else: q += al
        def epi(sb):
            ac = ACC[sb%2]; p = PKD[sb%2]
            R = [f'ds_read_b32 v{NM+sb%2}, {vR4} offset:{1024+ST_NM+sb*64}']
            ng = '-' if l == 0 else ''
            B = [f'v_fma_f32 v{ac+i}, {ng}v{NM+sb%2}, v{CS+i}, {ng}v{ac+i}' for i in range(12)]
            B += [f'v_cvt_pk_bf16_f32 v{p+i}, v{ac+2*i}, v{ac+2*i+1}' for i in range(6)]
            B += [(f'v_pk_max_u16 v{p+i}, v{p+i}, {sNeg}' if l == 0 else f'v_pk_max_i16 v{p+i}, v{p+i}, 0') for i in range(6)]
            B += [f's_add_u32 {sV0}, {sHst}, {s.bH(l)+sb*HRT}', f's_add_u32 {sV1}, {sHst2}, {s.bH(l)+sb*HRT}',
                  f'buffer_store_dwordx4 {vr(p)}, {vL16}, {SWS}, {sV0} offen{s.sc}',
                  Nm(f'buffer_store_dwordx2 {vr(p+4,2)}, {vO8}, {SWS}, {sV1} offen{s.sc}', st, ('hs', sb))]
            return R, B
        for sb in range(3):
            R, B = epi(sb); b0 = 48*(sb+1)
            if sb == 0:
                mem.append(Stream(R, G2)); valu.insert(0, Stream([At(G2+3)] + B[:18] + [By(95)] + B[18:], 0, deadline=104))
            else:
                mem.append(Stream(R, b0-3)); valu.insert(sb, Stream(B, b0+4, deadline=b0+40))
        mem.append(Stream(epi(3)[0], 48*4-6))
        mq = Stream(q, 0, pace=s.o('pace3', 4)); mem.append(mq)
        for k_ in (31, 47, 53, 63, 79, 95, 143): pin.setdefault(k_, []).append(s.F('P3'))
        left = sched(a, mf, pin, mem, valu, keep=[mq]); s.lefts.append((left, len(mq.items)-mq.k))
        s.fs('P3')
        R, B = epi(3)
        s.barrier(w2[6] if l == 0 else None)(); s.run(B); s.run(mq.items[mq.k:])
        s.stamp(9); s.fs('P3')
        return st

    def aload(s, l, n, sA0=sA0, sA1=sA1, force=False):
        AR=96; NA=6
        ps, i = divmod(n, 11); r = AR + 8*(n % NA)
        base, j = (sHe, i) if i <= 4 else ((sH5, 0) if i == 5 else ((sH6, 0) if i == 6 else (sHl, i-7)))
        L = []
        if j % 4 == 0 or force: L += [f's_add_u32 {sA0}, {base}, {s.bH(l)+ps*2*HRT+(j//4)*4096}', f's_add_u32 {sA1}, {sA0}, {sHd}']
        return L + [f'buffer_load_dwordx4 {vr(r)}, {vL16}, {SWS}, {sA0} offen offset:{(j%4)*1024}{s.lc} ; @h{l}_{n}',
                    f'buffer_load_dwordx4 {vr(r+4)}, {vL16}, {SWS}, {sA1} offen offset:{(j%4)*1024}{s.lc} ; @h{l}_{n}']

    def P4(s, l, st):
        a = s.a; nxt = {}; w2 = st['w2']
        ACC=[32,64]; AR=96; NA=6; BR=[144,160]; HELD=176
        def breg(n):
            ps, i = divmod(n, 11); return HELD if i == 0 else BR[(ps*10+i) % 2]
        def bread(n):
            ps, i = divmod(n, 11)
            if i == 0: return []
            L = []
            if ps == 0 and i in w2: L.append(lambda: a.wait(w2[i]))
            v, o = (vS0, (i-1)*4096) if i <= 4 else ((vS2, (i-5)*4096) if i <= 6 else (vS1, (i-7)*16384))
            return L + [f'ds_read_b128 {vr(breg(n)+4*c)}, {v} offset:{o+c*1024} ; @b{l}_{n}' for c in range(4)]
        s.fs('P4')
        a.e(f'''s_lshl_b32 {sT0}, {sW4}, 2
            s_add_u32 {sT0}, {sT0}, {RX(l)}
            v_add_u32 {vS0}, {sT0}, {vL16}
            s_add_u32 {sT0}, {sW4}, {RW(l)}
            v_add_u32 {vS1}, {sT0}, {vL16}
            v_add_u32 {vS2}, {sCb}, {vL16}''')
        nA = st['nA']
        for n in range(nA, 2): s.run(s.aload(l, n))
        nA = max(nA, 2)
        s.stamp(10); s.fs('P4')
        def xwrite(ps): return [f'ds_write_b128 {vS0}, {vr(ACC[ps]+8*t+4*sl)} offset:{ps*8192+t*2048+sl*1024}' for t in (1,2,3) for sl in (0,1)]
        def xread(ps, tmp, sx):
            return [f'v_xor_b32 v{tmp+t}, {t<<14}, {vS0}' for t in (1,2,3)] + [f's_and_b32 {sx}, {sW}, 2', f's_lshl_b32 {sx}, {sx}, 5', f'v_add_u32 v{tmp}, {sx}, {vR4}']
        def xread2(ps, tmp):
            L = [f'ds_read_b32 v{tmp}, v{tmp} offset:{1024+ST_RSTD+ps*128}']
            for t in (1,2): L += [f'ds_read_b128 {vr(ACC[ps]+8*t+4*sl)}, v{tmp+t} offset:{ps*8192+t*2048+sl*1024}' for sl in (0,1)]
            L += [f'ds_read_b128 {vr(ACC[ps]+24+4*sl)}, v{tmp+3} offset:{ps*8192+3*2048+sl*1024}' for sl in (0,1)]
            return L
        def xsum(ps, tmp):
            ac = ACC[ps]; L = []
            for i in range(8): L.append(f'v_add_f32 v{ac+i}, v{ac+i}, v{ac+8+i}')
            for i in range(8): L.append(f'v_add_f32 v{ac+16+i}, v{ac+16+i}, v{ac+24+i}')
            for i in range(8): L.append(f'v_add_f32 v{ac+i}, v{ac+i}, v{ac+16+i}')
            for i in range(8): L.append(f'v_fma_f32 v{RES+8*ps+i}, {"-" if l == 0 else ""}v{ac+i}, v{tmp}, v{RES+8*ps+i}')
            return L
        def publish(ps, dot, sx):
            ac = ACC[ps]
            if l == 0: return s.x_pub(0, 1, ps, ac+8, f'v{ac+12}', f'v{ac+13}', nxt, ('pub', ps), dot, sx)
            r = RES + 8*ps
            return [f'v_cvt_pk_bf16_f32 v{ac+8+i}, v{r+2*i}, v{r+2*i+1}' for i in range(4)] + [
                f'v_bfe_u32 v{ac+12}, {vL16}, 4, 4', f'v_lshrrev_b32 v{ac+13}, 8, {vL16}', f'v_lshlrev_b32 v{ac+12}, 10, v{ac+12}',
                f'v_lshl_add_u32 v{ac+12}, v{ac+13}, 4, v{ac+12}', f's_add_u32 {sx}, {sOutO}, {ps*32768}',
                f'buffer_store_dwordx4 {vr(ac+8)}, v{ac+12}, {SOUT}, {sx} offen']
        mf = []; pin = {}; q = []; rds = []
        for n in range(22):
            ps, i = divmod(n, 11); r = AR + 8*(n % NA); grp = []
            for c in range(4):
                for t2 in range(2):
                    ac = ACC[ps] + 16*t2 + 4*c
                    grp.append(f'{MF} {vr(ac)}, {vr(breg(n)+4*c)}, {vr(r+4*t2)}, {"0" if i==0 else vr(ac)} ; ?v{r+4*t2}=h{l}_{n} ?v{breg(n)+4*c}={"held"+str(l) if i == 0 else f"b{l}_{n}"}')
            mf += grp
            if n+1 < 22: rds.append(Stream(bread(n+1), 8*n, deadline=8*(n+1)))
        def hchk(n):
            ps, i = divmod(n, 11); r = AR + 8*(n % NA)
            if l == 0:
                c = [f'v_bitop3_b32 {vP}, v{r}, v{r+2}, v{r+4} bitop3:0x80',
                     f'v_bitop3_b32 {vP}, {vP}, v{r+6}, {sM5} bitop3:0xea' if i == 5 else f'v_and_b32 {vP}, {vP}, v{r+6}',
                     f'v_cmp_le_i32 vcc, 0, {vP}']
            else:
                c = [f'v_or3_b32 {vP}, v{r}, v{r+2}, v{r+4}', f'v_or_b32 {vP}, {vP}, v{r+6}', f'v_cmp_gt_i32 vcc, 0, {vP}']
            def br():
                with a.rare(None, 's_cbranch_vccnz'):
                    lb = a.label('Lhv'); a.raw(f'{lb}:'); s.spin_guard()
                    s.run(s.aload(l, n, sT0, sT1, True)); a.waitall(lg=False); s.run(c)
                    a.raw(f's_cbranch_vccnz {lb}')
            return c, br
        for n in range(nA, 22):
            for i in (8, 9, 10):
                if n == i - 2 and i not in w2 and not (l == 1 and s.o('x_nos10', 0)): q += s.w2_dma(i, w2)
            if l == 0 and s.o('tq4', 1) and n in (12, 17): q += s.tq((n-12)//5)
            q.append(At(max(0, 8*(n-NA+1))))
            if not (l == 1 and s.o('x_nold', 0)): q += s.aload(l, n) + [By(max(0, 8*n - 10))]
        c, br = hchk(0); s.run(c); br()
        for n in range(1, 22):
            c, br = hchk(n)
            if l == 1 and s.o('x_nochk', 0): c = ['s_nop 0', 's_nop 0', 's_nop 0']; br = lambda: None
            pin.setdefault(8*n-5, []).extend(c[:2]); pin.setdefault(8*n-4, []).append(c[2]); pin.setdefault(8*n-s.o('brg', 2), []).insert(0, br)
            def wb(n, lo):
                def f():
                    regs = set(regs_of(vr(breg(n)+lo, 8)))
                    a.wait(*[e for e in a.q['lg'] if not e.done and (e.defs & regs)])
                f.pre = True
                return f
            br.pre = True
            pin.setdefault(8*n-1, []).insert(0, wb(n, 0)); pin.setdefault(8*n+2, []).insert(0, wb(n, 8))
        if l == 0 and s.o('tsm', 1): q += s.touch_kv1(1, 190) + (s.touch_kv2(1, 189) if s.o('tkv2', 0) else [])
        TM = HELD
        xw = xwrite(0); xw[-1] = Nm(xw[-1], nxt, 'xw')
        red = [At(8*12)] + xread(0, TM, sV0) + [At(8*13)] + xw[:2] + [At(8*14)] + xw[2:]
        GB = 8*14+7
        redS = Stream(red, 0, deadline=GB)
        pin.setdefault(GB, []).append(s.barrier(lambda: nxt['xw']) if not (l == 1 and s.o('x_nobar', 0)) else (lambda: None))
        red2 = Stream(xread2(0, TM), GB, deadline=8*16)
        red3 = Stream(xsum(0, TM) + publish(0, False, sV0) + xread(1, TM+4, sV0), 8*15+6)
        for n in (0, 2, 5, 8, 11, 14, 17): pin.setdefault(8*n+7, []).append(s.F('P4'))
        left = sched(a, mf, pin, rds + [red2, Stream(q, 0, pace=s.o('pace4', 2))], [redS, red3]); s.lefts.append(left)
        s.stamp(11); s.fs('P4')
        s.run(xwrite(1))
        a.waitall(vm=False); a.raw('s_barrier')
        s.fs('P4')
        s.run(xread2(1, TM+4))
        tail = xsum(1, TM+4) + publish(1, True, sT0)
        if l == 0:
            d = Stream(s.tile_dma(s.bX2(), 0, nxt, sU0, LB) + s.tile_dma(s.bX2(), 1, nxt, sU0, LB) + s.stats_ld(0, 1, 0, 120, sU0)).items
            k = 0
            for n, it in enumerate(tail):
                if n % 6 == 0 and n < 36:
                    while k < len(d):
                        t = d[k].text if isinstance(d[k], Nm) else d[k]
                        s.run([d[k]]); k += 1
                        if t.startswith('buffer'): break
                s.run([it])
            s.run(d[k:])
            s.wql = 1; nxt['wqpre'] = s.o('wqpre', 4); s.run(s.wq_loads(0, nxt['wqpre']))
        else: s.run(tail)
        s.fs('P4')
        return nxt

    def main(s, fast):
        a = s.a; s.sc = '' if fast else ' sc1'; s.nfs = 0; s.pl = {}
        s.lc = '' if (fast and s.o('plainl', 0)) else ' sc1'; s.wc = '' if s.o('plainw', 0) else ' sc1'
        prev = {}
        s.l = 0
        s.kv_publish(0, 96, 88, 92)
        if not fast:
            for i in range(4): a.e(f'v_mov_b32 v{32+i}, 0')
            s.run(s.poison(32, ' sc1')); a.waitall(); a.raw('s_barrier')
        for l in range(2):
            s.l = l
            st = s.P1(l, prev) if l else dict(s.st0)
            s.stamp(2)
            if s.stop == 'P1': break
            st = s.Q(l, st)
            if s.stop == 'Q': break
            st = s.P2(l, st)
            if s.stop == 'P2': break
            st = s.P3(l, st)
            if s.stop == 'P3': break
            prev = s.P4(l, st); s.stamp(12)
            if s.stop == 'P4': break
        a.q = {'vm': [], 'lg': []}
        a.raw('s_branch Lfin')

    def build(s):
        a = s.a
        s.sc = ''; s.lc = ' sc1'; s.wc = ' sc1'; s.pl = {}
        s.startup()
        import copy
        q0 = {k: list(v) for k, v in a.q.items()}; tg0 = dict(a.tags)
        s.main(True)
        a.raw('Lslow:')
        a.q = {k: list(v) for k, v in q0.items()}; a.tags = tg0
        for k in a.q:
            for e in a.q[k]: e.done = False
        s.main(False)
        a.raw('Lfin:')
        a.e(f's_or_b32 {sT0}, s2, {sW}')
        with a.skip_if(f's_cmp_lg_u32 {sT0}, 0', 's_cbranch_scc1'):
            a.e(f'buffer_store_dword {vTag}, {vFlagOff}, {SWS}, 0 offen sc1')
        if s.prof:
            a.raw(f's_memrealtime s[74:75]'); a.raw('s_waitcnt lgkmcnt(0)')
            if not s.kw.get('fine'):
                a.e(f's_mov_b32 s{sPR+25}, s74')
                a.raw(f's_memtime s[74:75]'); a.raw('s_waitcnt lgkmcnt(0)'); a.e(f's_sub_u32 s{sPR+13}, s74, s23')
            a.e(f's_lshl_b32 {sT0}, s2, 2\n s_add_u32 {sT0}, {sT0}, {sW}\n s_lshl_b32 {sT0}, {sT0}, 7\n s_add_u32 {sT0}, {sT0}, {PROF}')
            for i in range(26):
                a.e(f'v_mov_b32 v32, s{sPR+i}')
                a.e(f'buffer_store_dword v32, {vFlagOff}, {SWS}, {sT0} offen offset:{4*i}')
        a.raw('Lbail:'); a.raw('Lend:'); a.raw('s_endpgm'); a.ins += a.cold
        hdr = open('interleave_layers__linear_attn_block__dense_activation_relu__prompt.s.ref').read().split('\n')
        top = [l for l in hdr if l.startswith(';') and '@launch' not in l]
        txt = '\n'.join(top) + f'\n; @launch grid=(256,1,1) block=(256,1,1) lds={LDSZ}\n'
        txt += f'.amdgcn_target "amdgcn-amd-amdhsa--gfx950"\n.text\n.globl {KNAME}\n.p2align 8\n.type {KNAME},@function\n{KNAME}:\n'
        txt += a.text()
        txt += f'''.section .rodata,"a"
.p2align 6
.amdhsa_kernel {KNAME}
  .amdhsa_next_free_vgpr 512
  .amdhsa_next_free_sgpr 102
  .amdhsa_accum_offset 256
  .amdhsa_group_segment_fixed_size 0
  .amdhsa_kernarg_size 72
  .amdhsa_user_sgpr_count 2
  .amdhsa_user_sgpr_kernarg_segment_ptr 1
  .amdhsa_system_sgpr_workgroup_id_x 1
.end_amdhsa_kernel
'''
        return txt


if __name__ == '__main__':
    import argparse
    p = argparse.ArgumentParser(); p.add_argument('-o', default='k.s'); p.add_argument('--prof', action='store_true'); p.add_argument('--stop'); p.add_argument('--force'); p.add_argument('--opts', default='')
    x = p.parse_args()
    kw = dict(kv.split('=') for kv in x.opts.split(',') if kv)
    g = G(x.prof, x.stop, x.force, **kw)
    open(x.o, 'w').write(g.build())
    print('forced', getattr(g.a, 'forced', 0), 'left', g.lefts)
```

```python
import sys, math, struct
sys.path.insert(0, 'dev')
from asmlib import *
KNAME = "interleave_layers__linear_attn_block__dense_activation_relu__prompt_kernel"
EPOCH=0x0; XF=0x1000; PF=0x2000
KV1=0x200000; KV2=0x400000
WQF=0x500000; WOF=0x510000; W1F=0x600000; W2F=0x800000
W2S=43*4096
GA0=0x1000000; GAS=0x100000
A_O=0x00000; A_X1=0x20000; A_X2=0x40000; A_H=0x50000; A_HL=0x30000; A_ST=0xB0000; A_FL=0xB8000; A_JUNK=0xC0000
HRT=43*1024
PROF=0x4000000
LA=0; LB=0x10000; LC=0x20000; MISC=0x27000; LDSZ=0x28000
ST_RSTD=0; ST_NB=256; ST_RL=512; ST_NM=768
CSW1=2048; CSQ=2816
SWS='s[4:7]'; SOUT='s[8:11]'; SX='s[12:15]'; SQ='s[16:19]'; SP='s[20:23]'
sW,sM,sG,sXC,sJ,sT = 's24','s25','s26','s27','s28','s29'
sT0,sT1,sT2,sT3 = 's31','s3','s0','s1'
sU0,sU1 = 's30','s51'
sV0,sV1 = 's35','s36'
sGA='s32'; sFL='s33'; sFLme='s34'; sGW='s37'; sGO='s38'; sKV1='s39'; sKV2='s40'
sW4='s41'; sOW='s42'; sXme='s43'; sSTme='s44'
sOnes='s45'; sLo='s46'; sHi='s47'; sDelta='s48'; sLn2='s49'; sLog2e='s50'
sOdd='s[52:53]'; sAcc='s[54:55]'; sCm='s[56:57]'
sHst='s58'; sHst2='s59'; sHe='s60'; sHl='s61'; sW2e='s62'; sW2l='s63'
sA0='s64'; sA1='s65'; sSpin='s66'; sOme='s67'; sW2e2='s68'; sW2l2='s69'; sOutO='s70'; sWQ='s71'; sW1='s72'; sHd='s73'
sTch='s12'; sWQm='s13'; sW2m='s14'; sH5='s15'; sH6='s20'; sW26='s21'; sW262='s22'; sCb='s16'
sNeg='s17'; sM5='s18'; sSTw='s19'
sPdst='s64'; sPstr='s65'; sPmode='s35'; sPi='s36'; sPsrc='s58'; sPstep='s59'; sJ4='s33'; sGWr='s34'; sFm='s18'; sPF='s101'; sCs='s98'; sCl='s99'; sXt='s100'; sR='s79'; sXFa='s78'
def RX(l): return LA if l == 0 else LB
def RW(l): return LB if l == 0 else LA
sPR=76
vL16,vG16,vR4,vFl,vFlagOff,vTag,vStatLd,vStatSt,vStatW,vO8 = [f'v{i}' for i in range(0,10)]
vCsk,vCsv='v10','v11'; vT32='v6'; JUNK=MISC+3584
RES=12
vS0,vS1,vS2,vP='v28','v29','v30','v31'
WV=192; WK=192
XA=116
def vr(b,n=4): return f'v[{b}:{b+n-1}]'
def ar(b,n=4): return f'a[{b}:{b+n-1}]'
MF='v_mfma_f32_16x16x32_bf16'; MF16='v_mfma_f32_16x16x16_bf16'
def f2u(x): return struct.unpack('<I', struct.pack('<f', x))[0]
DPPF='row_mask:0xf bank_mask:0xf'

class G:
    def __init__(s, prof=False, stop=None, force=None, **kw):
        s.a = Asm(); s.prof = prof; s.stop = stop; s.force = force; s.kw = kw; s.nfs = 0; s.l = 0; s.lefts = []
        s.a.notags = bool(s.o('x_nold', 0))
        s.nt1 = ' nt' if s.o('nt1', 0) else ''; s.nt0 = ' nt' if s.o('nt0', 0) else ''
    def o(s, k, d): return int(s.kw.get(k, d))
    def bO(s, l): return A_O + (0 if s.o('alias', 1) else l*0x10000)
    def bX1(s, l): return A_X1 + (0 if s.o('alias', 1) else l*0x10000)
    def bX2(s): return A_X1 if s.o('alias', 1) else A_X2
    def bH(s, l): return A_H + (0 if s.o('alias', 1) else l*A_HL)
    def bST(s, l, kind): return A_ST + (0 if s.o('alias', 1) else kind*8192 + l*16384)
    def bKV1(s, l): return l*0x100000
    def fs(s, ph):
        if s.kw.get('fine') != ph or (ph != 'S' and s.l != s.o('fl', 1)): return
        k = s.nfs; s.nfs += 1
        assert k < 13
        if ph == 'S':
            s.a.raw('s_memrealtime s[74:75]' if s.o('rt', 0) else 's_memtime s[74:75]'); s.a.waitall(vm=False); s.a.e(f'v_writelane_b32 v30, s74, {2*k}'); return
        s.a.raw(f's_memtime s[{sPR+2*k}:{sPR+2*k+1}]')
    def F(s, ph): return lambda: s.fs(ph)
    def stamp(s, idx):
        if not s.prof or s.kw.get('fine'): return
        a = s.a
        if s.o('spins', 0):
            a.e(f's_mov_b32 s{sPR+idx+(12*s.l if idx >= 2 else 0)}, {sSpin}'); return
        a.raw(f's_memrealtime s[74:75]'); a.waitall(vm=False)
        if idx < 2:
            a.e(f's_mov_b32 s{sPR+idx}, s74')
            a.raw(f's_memtime s[74:75]'); a.waitall(vm=False); a.e('s_mov_b32 s23, s74')
        else: a.e(f's_mov_b32 s{sPR+idx+12*s.l}, s74')
    def spin_guard(s):
        s.a.e(f's_sub_u32 {sSpin}, {sSpin}, 1'); s.a.raw('s_cbranch_scc1 Lbail')
    def floff(s, l, hop, half): return l*1024 + hop*256 + half*128
    def poll_ld(s, l, hop, half): return Nm(f'buffer_load_dword {vP}, {vFl}, {SWS}, {sGW} offen offset:{hop*128} sc1', s.pl, (l,hop,half))
    def poll_check(s, l, hop, half):
        a = s.a
        assert list(s.pl)[-1] == (l,hop,half), (list(s.pl), l, hop, half)
        a.e(f'v_cmp_ne_u32 vcc, {sT}, {vP}')
        with a.rare(None, 's_cbranch_vccnz'):
            lb = a.label('Lpoll'); a.raw(f'{lb}:'); s.spin_guard()
            a.e(s.poll_ld(l, hop, half).text); a.waitall(lg=False)
            a.e(f'v_cmp_ne_u32 vcc, {sT}, {vP}'); a.raw(f's_cbranch_vccnz {lb}')
    def flag_st(s, l, hop, half): return f'buffer_store_dword {vTag}, {vFlagOff}, {SWS}, {sFm} offen offset:{hop*128}{s.sc}'
    def stats_fin(s, u, t0, t1, vaddr, off, d=None, key=None):
        last = f'ds_write_b32 {vaddr}, {t0} offset:{off+ST_RL}'
        return [f'v_mul_f32 {u}, 0x{f2u(-1/512):x}, {u}', f'v_mul_f32 {t0}, 0x{f2u(1/512):x}, {t0}',
                f'v_fma_f32 {t0}, -{u}, {u}, {t0}', f'ds_write_b32 {vaddr}, {u} offset:{off+ST_NM}', f'v_max_f32 {t0}, 0, {t0}', f'v_add_f32 {t0}, 0x{f2u(1e-5):x}, {t0}',
                f'v_rsq_f32 {t0}, {t0}', f'v_mul_f32 {t1}, {u}, {t0}',
                f'ds_write_b32 {vaddr}, {t0} offset:{off+ST_RSTD}', f'v_mul_f32 {t0}, {sLog2e}, {t0}',
                f'ds_write_b32 {vaddr}, {t1} offset:{off+ST_NB}', Nm(last, d, key) if d is not None else last]
    def stats_ld(s, l, kind, hf, b, st):
        return [f's_add_u32 {st}, {sSTw}, {s.bST(l,kind)+hf*4096}', f'buffer_load_dwordx4 {vr(b)}, {vL16}, {SWS}, {st} offen sc1']
    def stats_use(s, kind, hf, b, d, key):
        x, y, t = f'v{b}', f'v{b+1}', f'v{b+2}'
        L = [f'v_add_f32 {x}, v{b}, v{b+2}', f'v_add_f32 {y}, v{b+1}, v{b+3}', 's_nop 0']
        for m in ('quad_perm:[1,0,3,2]', 'quad_perm:[2,3,0,1]', 'row_half_mirror'):
            L += [f'v_add_f32_dpp {x}, {x}, {x} {m} {DPPF}', f'v_add_f32_dpp {y}, {y}, {y} {m} {DPPF}']
        return L + s.stats_fin(x, y, t, vStatW, (1-kind)*1024 + hf*128, d, key)
    def tile_dma(s, off, rt, d, st, reg):
        L = [f's_add_u32 m0, {sW4}, {reg+rt*16384}', f's_add_u32 {st}, {sGWr}, {off+rt*16384}']
        L += [f'buffer_load_dwordx4 {vL16}, {SWS}, {st} offen offset:{i*1024}{s.lc} lds' for i in range(3)]
        L.append(Nm(f'buffer_load_dwordx4 {vL16}, {SWS}, {st} offen offset:3072{s.lc} lds', d, ('dma', rt)))
        return L
    def x_pub(s, l, kind, hf, pk, t0, t1, d, key, usedot, st):
        r = RES + 8*hf
        L = [f'v_cvt_pk_bf16_f32 v{pk+i}, v{r+2*i}, v{r+2*i+1}' for i in range(4)]
        b = 1 - kind
        tag = lambda v: f'v_or_b32 {v}, 1, {v}' if b else f'v_and_b32 {v}, -2, {v}'
        L += [tag(f'v{pk}'), tag(f'v{pk+2}')]
        L.append(f's_add_u32 {st}, {sXme}, {(s.bX2() if kind else s.bX1(l)) + hf*32768}')
        L.append(f'buffer_store_dwordx4 {vr(pk)}, {vL16}, {SWS}, {st} offen{s.sc}')
        if usedot:
            L += [f'v_dot2_f32_bf16 {t0}, v{pk}, {sOnes}, 0', f'v_dot2_f32_bf16 {t1}, v{pk}, v{pk}, 0']
            for i in range(1,4): L += [f'v_dot2_f32_bf16 {t0}, v{pk+i}, {sOnes}, {t0}', f'v_dot2_f32_bf16 {t1}, v{pk+i}, v{pk+i}, {t1}']
        else:
            L += [f'v_add_f32 {t0}, v{r}, v{r+1}', f'v_mul_f32 {t1}, v{r}, v{r}', f'v_fmac_f32 {t1}, v{r+1}, v{r+1}']
            for i in range(2,8): L += [f'v_add_f32 {t0}, {t0}, v{r+i}', f'v_fmac_f32 {t1}, v{r+i}, v{r+i}']
        L.append(f's_add_u32 {st}, {sSTme}, {s.bST(l,kind)+hf*4096}')
        L += [f'v_permlane16_swap_b32 {t0}, {t1}', f'v_add_f32 {t0}, {t0}, {t1}', f'v_mov_b32 {t1}, {t0}',
              f'v_permlane32_swap_b32 {t0}, {t1}', f'v_add_f32 {t0}, {t0}, {t1}', tag(t0),
              Nm(f'buffer_store_dword {t0}, {vStatSt}, {SWS}, {st} offen{s.sc}', d, key)]
        return L
    def comb8(s, R, t, b):
        op = '0x80' if b else '0xfe'
        return [f'v_bitop3_b32 {R[0]}, {R[0]}, {R[1]}, {R[2]} bitop3:{op}', f'v_bitop3_b32 {R[3]}, {R[3]}, {R[4]}, {R[5]} bitop3:{op}',
                f'v_bitop3_b32 {R[0]}, {R[0]}, {R[3]}, {R[6]} bitop3:{op}', f'v_bitop3_b32 {R[0]}, {R[0]}, {R[7]}, 1 bitop3:{"0x80" if b else "0xa8"}',
                f'v_cmp_ne_u32 {sCm}, {b}, {R[0]}']
    def ver(s, mode, VB, off, b):
        if mode == 'b128':
            rd = [f'ds_read_b128 {vr(VB+4*i)}, {vS0} offset:{off+i*1024}' for i in range(4)]
            R = [f'v{VB+4*i+k}' for i in range(4) for k in (0, 2)]
        else:
            o = off // 256
            rd = [f'ds_read2st64_b32 {vr(VB+2*i,2)}, {(vS0,vS1)[i%2]} offset0:{o+8*(i//2)} offset1:{o+8*(i//2)+4}' for i in range(4)]
            R = [f'v{VB+i}' for i in range(8)]
        return rd, s.comb8(R, None, b)
    def ver_branch(s, dma, mode, VB, off, b):
        a = s.a
        with a.rare(f's_cmp_lg_u64 {sCm}, 0', 's_cbranch_scc1'):
            a.e(f's_mov_b32 {sT3}, m0')
            lb = a.label('Lver'); a.raw(f'{lb}:'); s.spin_guard()
            for it in dma: a.e(it.text if isinstance(it, Nm) else it)
            a.waitall(lg=False)
            rd, va = s.ver(mode, VB, off, b)
            s.run(rd + va)
            a.e(f's_nop 1\n s_cmp_lg_u64 {sCm}, 0'); a.raw(f's_cbranch_scc1 {lb}')
            a.e(f's_mov_b32 m0, {sT3}')
    def stats_chk(s, l, kind, hf, b):
        a = s.a; t = 1 - kind; x = vP
        chk = [f'v_bitop3_b32 {x}, v{b}, v{b+1}, v{b+2} bitop3:{"0x80" if t else "0xfe"}', f'v_bitop3_b32 {x}, {x}, v{b+3}, 1 bitop3:{"0x80" if t else "0xa8"}']
        def br():
            a.e(f'v_cmp_ne_u32 vcc, {t}, {x}')
            with a.rare(None, 's_cbranch_vccnz'):
                lb = a.label('Lstc'); a.raw(f'{lb}:'); s.spin_guard()
                s.run(s.stats_ld(l, kind, hf, b, sT0)); a.waitall(lg=False); s.run(chk)
                a.e(f'v_cmp_ne_u32 vcc, {t}, {x}'); a.raw(f's_cbranch_vccnz {lb}')
        return chk + [br]
    def poison(s, z, sc, part=3, t0=sT0, t1=sT1):
        x = f'buffer_store_dwordx4 {vr(z)}, {vL16}, {SWS}, {t0} offen{sc}'
        L = []
        if part & 1:
            L += [f's_and_b32 {t1}, {sW}, 1', f's_lshl_b32 {t1}, {t1}, 15', f's_add_u32 {t0}, {sOme}, {t1}', x, f's_add_u32 {t0}, {t0}, 16384', x,
                  f's_add_u32 {t0}, {sXme}, {A_X1}', x, f's_add_u32 {t0}, {sXme}, {A_X1+32768}', x]
            for hf in range(2): L += [f's_add_u32 {t0}, {sSTme}, {A_ST+hf*4096}', f'buffer_store_dword v{z}, {vStatSt}, {SWS}, {t0} offen{sc}']
        if part & 2:
            for rt in range(4): L += [f's_add_u32 {t0}, {sHst}, {A_H+rt*HRT}', x]
            L += [f's_and_b32 {t1}, {sW}, 1', f's_mul_i32 {t1}, {t1}, {2*HRT}', f's_add_u32 {t0}, {sHst2}, {t1}', f's_add_u32 {t0}, {t0}, {A_H}', x, f's_add_u32 {t0}, {t0}, {HRT}', x]
        return L
    def run(s, L):
        for it in L:
            if isinstance(it, Nm): it.d[it.key] = s.a.e(it.text)
            elif isinstance(it, (At, By)): pass
            elif callable(it): it()
            else: s.a.e(it)
    def wq_loads(s, lo=0, hi=16):
        L = []
        for ks in range(lo, hi):
            if ks % 4 == 0 or ks == lo: L += [f's_add_u32 {sU0}, {sJ4}, {(ks//4)*4096}', f's_and_b32 {sU0}, {sU0}, 0x3fff', f's_add_u32 {sU0}, {sU0}, {sWQ}']
            L.append(f'buffer_load_dwordx4 {vr(128+4*ks)}, {vL16}, {SWS}, {sU0} offen offset:{(ks%4)*1024}{s.wc} ; @wq{s.wql}')
        return L
    def wo_dma(s, d, lo=0, hi=4):
        if s.l == 1 and s.o('x_nowo', 0): return [Nm('ds_read_b32 v31, v0', d, 'wo')]
        L = []
        for i in range(lo, hi):
            L += [f's_add_u32 {sU1}, {sJ4}, {i*4096}', f's_and_b32 {sU1}, {sU1}, 0x3fff', f's_lshl_b32 {sU0}, {sW4}, 2', f's_add_u32 {sU0}, {sU0}, {sU1}',
                  f's_add_u32 m0, {sU0}, {RW(s.wql)}', f's_add_u32 {sU0}, {sWQ}, {sU1}', f's_add_u32 {sU0}, {sU0}, {WOF-WQF}']
            L += [f'buffer_load_dwordx4 {vL16}, {SWS}, {sU0} offen offset:{k*1024}{s.wc} lds' for k in range(4)]
        if L: L[-1] = Nm(L[-1], d, 'wo')
        return L
    def w1_loads(s, lo, hi):
        L = []
        for n in range(lo, hi):
            kq, r = divmod(n, 12); slot, k4 = divmod(r, 4); ks = 4*kq + k4
            if ks % 4 == 0 or n == lo:
                L += [f's_add_u32 {sU1}, {sJ4}, {(ks//4)*4096}', f's_and_b32 {sU1}, {sU1}, 0x3fff', f's_lshl_b32 {sU0}, {sW4}, {3 if slot < 2 else 2}',
                      f's_add_u32 {sU0}, {sU0}, {sU1}', f's_add_u32 {sU0}, {sU0}, {sW1}', f's_add_u32 {sU0}, {sU0}, {(slot if slot < 2 else 8)*16384}']
            L.append(f'buffer_load_dwordx4 {ar(64*slot+4*ks)}, {vL16}, {SWS}, {sU0} offen offset:{(ks%4)*1024}{s.wc}{s.nt1} ; @w1')
        return L
    def w2_dma(s, i, d):
        if s.l == 1 and s.o('x_now2', 0): return [Nm('ds_read_b32 v31, v0', d, i)]
        if i <= 4:   m = [f's_lshl_b32 {sU0}, {sW4}, 2', f's_add_u32 m0, {sU0}, {RX(s.l)+(i-1)*4096}']
        elif i <= 6: m = [f's_add_u32 m0, {sCb}, {(i-5)*4096}']
        else:        m = [f's_add_u32 m0, {sW4}, {RW(s.l)+(i-7)*16384}']
        b1, b2, o = (sW2e, sW2e2, i*4096) if i <= 5 else ((sW26, sW262, 0) if i == 6 else (sW2l, sW2l2, (i-7)*4096))
        x = f'buffer_load_dwordx4 {vL16}, {SWS}, '
        return m + [f's_add_u32 {sU0}, {b1}, {o}', f's_add_u32 {sU1}, {b2}, {o}', x+f'{sU0} offen{s.wc} lds', x+f'{sU0} offen offset:1024{s.wc} lds',
                    x+f'{sU1} offen offset:2048{s.wc} lds', Nm(x+f'{sU1} offen offset:3072{s.wc} lds', d, i)]
    def touch(s, base_s, off, junk, lim=None, nt=''):
        L = [f's_add_u32 {sU0}, {sTch}, {base_s}', f's_add_u32 {sU0}, {sU0}, {off}']
        if lim is not None: L.append(f's_cmp_ge_u32 {sTch}, {lim*8192}\ns_cselect_b32 {sU0}, 0x40000000, {sU0}')
        L = [lambda L=L: s.run(L)]
        return L + [f'v_lshlrev_b32 v{junk}, 3, {vL16}', f'buffer_load_dword v{junk}, v{junk}, {SWS}, {sU0} offen{s.wc}{nt}']
    def t4(s, base_s, off, k, npieces):
        L = [f's_add_u32 {sU0}, {sTch}, {base_s}', f's_add_u32 {sU0}, {sU0}, {off + k*65536}', f's_mov_b32 m0, {JUNK}']
        if 16*k + 16 > npieces:
            L = [lambda L=L: s.run(L + [f's_cmp_ge_u32 {sTch}, {(npieces-16*k)*4096}', f's_cselect_b32 {sU0}, 0x40000000, {sU0}'])]
        return L + [f'buffer_load_dword {vT32}, {SWS}, {sU0} offen lds']
    def tq(s, k): return s.t4(sWQm, WQF, k, 32)
    def t1(s, k): return s.t4(sW1, 0, k, 48)
    def t2(s, k): return s.t4(sW2m, 0, k, 43)
    def touch_s(s, setup, junk):
        return [lambda: s.run(setup + [f's_mov_b32 m0, {JUNK}']), f'v_lshlrev_b32 {vP}, 3, {vL16}', f'buffer_load_dword {vP}, {SWS}, {sU0} offen lds']
    def touch_oxs(s, junk):
        return s.touch_s([f's_lshl_b32 {sU0}, {sM}, 13', f's_add_u32 {sU0}, {sU0}, {sGA}', f's_cmp_eq_u32 {sW}, 1', f's_cselect_b32 {sU1}, {A_X1}, 0',
                          f's_cmp_eq_u32 {sW}, 2', f's_cselect_b32 {sU1}, {A_ST}, {sU1}', f's_add_u32 {sU0}, {sU0}, {sU1}',
                          f's_cmp_ge_u32 {sM}, 2', f's_cselect_b32 {sU1}, 2, 9', f's_cmp_eq_u32 {sW}, {sU1}', f's_cselect_b32 {sU0}, 0x40000000, {sU0}',
                          f's_cmp_eq_u32 {sW}, 3', f's_cselect_b32 {sU0}, 0x40000000, {sU0}'], junk)
    def touch_h(s, junk):
        return s.touch_s([f's_lshl_b32 {sU0}, {sW}, 3', f's_add_u32 {sU0}, {sU0}, {sM}', f's_cmp_ge_u32 {sU0}, 22', f's_cselect_b32 {sU1}, 0x40000000, {sGA}',
                          f's_lshl_b32 {sU0}, {sU0}, 13', f's_add_u32 {sU0}, {sU0}, {sU1}', f's_add_u32 {sU0}, {sU0}, {A_H}'], junk)
    def touch_small(s, junk):
        return [f'v_lshlrev_b32 v{junk}, 5, {vFl}', f'v_cmp_gt_u32 vcc, 64, {vFl}', f's_lshl_b32 {sU0}, {sW}, 11', f's_add_u32 {sU0}, {sU0}, {A_ST-2048}',
                f'v_mov_b32 v{junk+1}, {sU0}', f'v_mov_b32 v{junk+2}, {A_FL}', f'v_cndmask_b32 v{junk+1}, v{junk+1}, v{junk+2}, vcc', f'v_add_u32 v{junk}, v{junk}, v{junk+1}',
                f'buffer_load_dword v{junk}, v{junk}, {SWS}, {sGA} offen sc1']
    def touch_kv2(s, l, junk):
        return s.touch_s([f's_add_u32 {sU0}, {sKV2}, {l*0x40000}'], junk)
    def touch_kv1(s, l, junk):
        return [lambda: s.run([f's_add_u32 {sU0}, {sKV1}, {l*0x100000}', f's_cmp_lg_u32 {sW}, {sJ}', f's_cselect_b32 {sU0}, 0x40000000, {sU0}', f's_mov_b32 m0, {JUNK}']),
                f'buffer_load_dword {vT32}, {SWS}, {sU0} offen lds']
    def held(s, HELD=176):
        return [f'buffer_load_dwordx4 {vr(HELD)}, {vL16}, {SWS}, {sW2e} offen{s.wc} ; @held{s.l}', f'buffer_load_dwordx4 {vr(HELD+4)}, {vL16}, {SWS}, {sW2e} offen offset:1024{s.wc} ; @held{s.l}',
                f'buffer_load_dwordx4 {vr(HELD+8)}, {vL16}, {SWS}, {sW2e2} offen offset:2048{s.wc} ; @held{s.l}', f'buffer_load_dwordx4 {vr(HELD+12)}, {vL16}, {SWS}, {sW2e2} offen offset:3072{s.wc} ; @held{s.l}']
    def colsum_w1(s, slot, CS, ONES):
        return [f'{MF} {vr(CS+4*slot)}, {ar(64*slot+4*ks)}, {vr(ONES)}, {"0" if ks==0 else vr(CS+4*slot)}' for ks in range(16)]

    def startup(s):
        a = s.a
        t2, t3 = 's54', 's55'
        a.e('s_cmp_ge_u32 s2, 256'); a.raw('s_cbranch_scc1 Lend')
        s.fs('S')
        a.raw('s_load_dwordx16 s[80:95], s[0:1], 0'); a.raw('s_load_dwordx2 s[96:97], s[0:1], 64')
        if s.prof: a.raw(f's_memrealtime s[74:75]')
        a.e(f's_getpc_b64 s[62:63]'); a.raw('Lpc0:')
        a.e(f"""s_lshr_b32 {sR}, s2, 3
            v_lshlrev_b32 v32, 4, v0
            s_lshl_b32 {sT1}, {sR}, 12
            s_and_b32 s62, s62, -16
            s_cmp_lt_u32 {sT1}, Lslow-Lpc0
            s_cselect_b32 {sT1}, {sT1}, 0
            v_add_u32 v32, {sT1}, v32
            global_load_dwordx4 v[144:147], v32, s[62:63]
            v_lshrrev_b32 v32, 6, v0
            v_and_b32 v33, 63, v0
            v_readfirstlane_b32 {sW}, v32
            s_and_b32 {sXC}, s2, 7
            s_lshr_b32 {sJ}, {sR}, 3
            s_and_b32 {sM}, {sR}, 7
            s_lshl_b32 {sG}, {sXC}, 2
            s_add_u32 {sG}, {sG}, {sJ}
            v_lshrrev_b32 v34, 4, v33
            v_and_b32 v35, 15, v33
            v_lshrrev_b32 v36, 3, v33
            v_and_b32 v37, 7, v33
            v_lshlrev_b32 v39, 7, v33
            v_min_u32 v38, 11, v35
            v_lshlrev_b32 v38, 7, v38
            v_and_b32 v42, 3, v33
            v_lshlrev_b32 v42, 7, v42
            v_xor_b32 v54, v34, v35
            v_lshlrev_b32 v54, 4, v54
            v_lshl_add_u32 v41, v34, 10, v54
            s_lshl_b32 s60, {sXC}, 18
            s_lshl_b32 s61, {sR}, 13
            s_add_u32 s60, s60, s61
            s_cmp_eq_u32 {sW}, 0
            s_cselect_b32 s60, s60, 0x40000000
            s_lshl_b32 s61, s2, 2
            s_add_u32 s61, s61, {sW}
            s_lshr_b32 s62, s61, 1
            s_mul_i32 s62, s62, 3072
            s_lshl_b32 s59, s61, 9
            s_and_b32 s61, s61, 1
            s_mul_i32 s61, s61, 1536
            s_add_u32 s61, s62, s61
            s_mov_b32 s6, 0x10000000
            s_mov_b32 s7, 0x20000
            s_mov_b32 s22, 0x80000
            s_mov_b32 s23, 0x20000
            s_mov_b32 s18, 0x180000
            s_mov_b32 s19, 0x20000
            s_mov_b32 s14, 0x200000
            s_mov_b32 s15, 0x20000
            s_lshl_b32 s56, {sG}, 16
            s_lshl_b32 s57, {sW}, 14
            s_add_u32 s56, s56, s57
            s_mul_i32 {sCs}, {sW}, {8*3072}
            s_lshl_b32 {sT1}, {sM}, 7
            s_add_u32 {sCs}, {sCs}, {sT1}
            s_add_u32 {sCs}, {sCs}, 1024
            s_lshl_b32 {sCl}, {sW}, 10
            s_add_u32 {sCl}, {sCl}, {LB}
            v_bfe_u32 v40, v36, 1, 1
            s_and_b32 {sT1}, {sW}, 1
            s_lshl_b32 {sT0}, {sT1}, 1
            v_or_b32 v40, {sT0}, v40
            v_lshlrev_b32 v40, 1, v40
            v_xor_b32 v40, v40, v37
            v_lshlrev_b32 v40, 4, v40
            s_movk_i32 {sT0}, 3072
            v_mad_u32_u24 v40, v36, {sT0}, v40""")
        a.raw('s_waitcnt lgkmcnt(0)')
        if s.prof: a.e(f's_mov_b32 s{sPR}, s74')
        s.fs('S')
        a.e('s_mov_b32 s12, s80\n s_mov_b32 s13, s81\n s_mov_b32 s16, s82\n s_mov_b32 s17, s83')
        a.e(f'buffer_load_dword v141, v39, {SX}, s60 offen')
        a.e(f'buffer_load_dword v139, v38, {SQ}, s61 offen')
        a.e('s_mov_b32 s4, s96\n s_mov_b32 s5, s97\n s_mov_b32 s20, s84\n s_mov_b32 s21, s85')
        eE = a.e(f'buffer_load_dword v43, off, {SWS}, 0 sc1')
        a.e(f'buffer_load_dword v138, v42, {SP}, s59 offen')
        if s.o('s_tlb', 1):
            with a.skip_if(f's_cmp_lg_u32 {sW}, 1', 's_cbranch_scc1'):
                a.e(f'''v_min_u32 v137, 4, v35
                    v_lshlrev_b32 v137, 21, v137
                    s_lshl_b32 s62, {sG}, 20
                    s_add_u32 s62, s62, {GA0+0xF0000}
                    v_mov_b32 v136, s62
                    v_cmp_eq_u32 vcc, 0, v35
                    v_mov_b32 v135, 0
                    s_nop 0
                    v_cndmask_b32 v137, v137, v136, vcc
                    buffer_load_dword v137, v137, {SWS}, 0 offen
                    global_load_dword v136, v135, s[88:89]
                    global_load_dword v134, v135, s[90:91]
                    global_load_dword v133, v135, s[92:93]''')
        def xloop(lo, hi):
            lb = a.label('Lxl'); a.e(f's_mov_b32 {sT0}, {lo}'); a.raw(f'{lb}:')
            a.e(f"""s_and_b32 {sT1}, {sT0}, 3
            s_lshr_b32 s54, {sT0}, 2
            s_lshl_b32 s55, {sT1}, 2
            s_add_u32 s55, s55, s54
            s_lshl_b32 s55, s55, 10
            s_add_u32 m0, s55, s57
            s_add_u32 {sT1}, {sT1}, {sJ}
            s_and_b32 {sT1}, {sT1}, 3
            s_lshl_b32 s55, s54, 4
            s_add_u32 {sT1}, {sT1}, s55
            s_lshl_b32 {sT1}, {sT1}, 8
            s_add_u32 {sT1}, {sT1}, s56
            s_lshl_b32 s54, s54, 6
            v_xor_b32 v45, s54, v41
            s_add_u32 {sT0}, {sT0}, 1
            s_cmp_lt_u32 {sT0}, {hi}""")
            e = a.e(f'buffer_load_dwordx4 v45, {SX}, {sT1} offen lds')
            a.raw(f's_cbranch_scc1 {lb}')
            return e
        nx1 = s.o('s_nx1', 8)
        xloop(0, nx1)
        s.fs('S')
        a.e(f"""s_mov_b32 s10, 0x200000
            s_mov_b32 s11, 0x20000
            v_lshlrev_b32 {vL16}, 4, v33
            s_lshl_b32 {sW4}, {sW}, 12
            s_lshl_b32 {sJ4}, {sJ}, 12
            v_mov_b32 v42, 0""")
        D = {}
        W = []
        a.e(f"""s_mul_i32 {sPi}, s2, 3
            s_add_u32 {sPi}, {sPi}, {sW}
            s_add_u32 {sPi}, {sPi}, 255
            s_cmp_eq_u32 {sW}, 0
            s_cselect_b32 {sPi}, s2, {sPi}
            s_and_b32 s63, {sPi}, 7
            s_lshr_b32 {sPi}, {sPi}, 3
            s_lshl_b32 s52, s63, 7""")
        la = [a.label('Lpp') for _ in range(4)]
        def arm(ptr, size, stride, body, dstride, mode):
            a.e(f's_mov_b32 s20, s{ptr}\n s_mov_b32 s21, s{ptr+1}\n s_mov_b32 s22, {size}\n s_movk_i32 s53, {stride}\n' + body + f'\n s_movk_i32 {sPstr}, {dstride}\n s_mov_b32 {sPmode}, {mode}')
        a.e(f's_cmp_lt_u32 {sPi}, 16'); a.raw(f's_cbranch_scc0 {la[0]}')
        arm(84, 0x80000, 1024, f's_mov_b32 s54, {sPi}\n s_lshl_b32 {sPdst}, s63, 17\n s_lshl_b32 s62, {sPi}, 12\n s_add_u32 {sPdst}, {sPdst}, s62\n s_add_u32 {sPdst}, {sPdst}, {WOF}', 1024, 1)
        a.raw(f's_branch {la[3]}'); a.raw(f'{la[0]}:')
        a.e(f's_cmp_lt_u32 {sPi}, 32'); a.raw(f's_cbranch_scc0 {la[1]}')
        arm(82, 0x180000, 3072, f's_sub_u32 s54, {sPi}, 16\n s_lshl_b32 {sPdst}, s63, 17\n s_lshl_b32 s62, s54, 10\n s_add_u32 {sPdst}, {sPdst}, s62\n s_add_u32 {sPdst}, {sPdst}, {WQF}', 16384, 0)
        a.raw(f's_branch {la[3]}'); a.raw(f'{la[1]}:')
        a.e(f's_cmp_lt_u32 {sPi}, 80'); a.raw(f's_cbranch_scc0 {la[2]}')
        arm(88, 512*1376*2, 2752, f"""s_sub_u32 s62, {sPi}, 32
            s_and_b32 s54, s62, 15
            s_lshr_b32 s62, s62, 4
            s_min_u32 s52, s63, 3
            s_mul_i32 s55, s63, 5
            s_add_u32 s52, s52, s55
            s_lshl_b32 s52, s52, 6
            s_lshl_b32 s55, s62, 7
            s_add_u32 s52, s52, s55
            s_mul_i32 {sPdst}, s63, {12*16384}
            s_lshl_b32 s62, s62, 16
            s_add_u32 {sPdst}, {sPdst}, s62
            s_lshl_b32 s62, s54, 10
            s_add_u32 {sPdst}, {sPdst}, s62
            s_add_u32 {sPdst}, {sPdst}, {W1F}""", 16384, 0)
        a.raw(f's_branch {la[3]}'); a.raw(f'{la[2]}:')
        arm(90, 512*1376*2, 1024, f's_sub_u32 s54, {sPi}, 80\n s_mul_i32 {sPdst}, s63, {W2S}\n s_lshl_b32 s62, s54, 12\n s_add_u32 {sPdst}, {sPdst}, s62\n s_add_u32 {sPdst}, {sPdst}, {W2F}', 1024, 1)
        a.raw(f'{la[3]}:')
        a.e(f"""v_mul_u32_u24 v44, s53, v36
            v_lshl_add_u32 v44, v37, 4, v44
            s_lshl_b32 s54, s54, 5
            s_mul_i32 {sPsrc}, s54, s53
            s_add_u32 {sPsrc}, {sPsrc}, s52
            s_lshl_b32 {sPstep}, s53, 3
            s_lshl_b32 {sPF}, s63, 9
            s_lshl_b32 {sT1}, {sPi}, 2
            s_add_u32 {sPF}, {sPF}, {sT1}
            s_add_u32 {sPF}, {sPF}, {PF}""")
        pld = [[f's_add_u32 m0, {sW4}, {LC+i*1024}', Nm(f'buffer_load_dwordx4 v44, {SP}, {sPsrc} offen nt lds', D, 'pld'), f's_add_u32 {sPsrc}, {sPsrc}, {sPstep}'] for i in range(4)]
        if s.o('s_pt', 1):
            a.e(f'v_mul_u32_u24 v46, s53, v33\n v_cmp_gt_u32 vcc, 32, v33\n v_mov_b32 v47, 0x40000000\n s_mov_b32 m0, {JUNK}\n v_cndmask_b32 v46, v47, v46, vcc')
            a.e(f'buffer_load_dword v46, {SP}, {sPsrc} offen lds')
        with a.skip_if(f's_cmp_lg_u32 {sW}, 0', 's_cbranch_scc1'):
            s.run(sum(pld, [])); eP = D['pld']
            a.e(f's_mov_b32 {sPsrc}, 0x40000000')
        def groups(L):
            G = []; cur = []
            for x in Stream(L).items:
                cur.append(x); t = x.text if isinstance(x, Nm) else x
                if t.startswith('buffer'): G.append(cur); cur = []
            if cur: G[-1] += cur
            return G
        def mix(work, G, first=0):
            work = Stream(work).items; n = len(G); k = 0
            for idx, it in enumerate(work):
                while k < n and idx >= first + (len(work)-first)*k//n and not it.startswith('s_cselect'): s.run(G[k]); k += 1
                s.run([it])
            while k < n: s.run(G[k]); k += 1
        def chunk_dma(c):
            G = [[f's_add_u32 m0, {sCl}, {(c%4)*16384 + t*4096}', f's_add_u32 {sU0}, {sU1}, {(t%2)*32*3072 + (t//2)*1024}',
                     Nm(f'buffer_load_dwordx4 v40, {SQ}, {sU0} offen lds', D, ('c', c))] for t in range(4)]
            G[0] = [f's_lshl_b32 {sU1}, {sJ}, 1', f's_add_u32 {sU1}, {sU1}, {c}', f's_and_b32 {sU1}, {sU1}, 7', f's_mul_i32 {sU1}, {sU1}, {64*3072}', f's_add_u32 {sU1}, {sU1}, {sCs}'] + G[0]
            return G
        mix([f"""s_lshl_b32 {sGA}, {sG}, 20
            s_add_u32 {sGA}, {sGA}, {GA0}
            s_lshl_b32 {sT0}, {sM}, 2
            s_add_u32 {sT0}, {sT0}, {sW}
            s_lshl_b32 {sKV1}, {sXC}, 17
            s_lshl_b32 {sT1}, {sT0}, 12
            s_add_u32 {sKV1}, {sKV1}, {sT1}
            s_add_u32 {sKV1}, {sKV1}, {KV1}
            s_lshl_b32 {sKV2}, {sT0}, 13
            s_add_u32 {sKV2}, {sKV2}, {KV2}
            s_lshr_b32 {sT0}, {sW}, 1
            s_and_b32 {sT1}, {sW}, 1
            s_lshl_b32 {sOW}, {sT0}, 14
            s_lshl_b32 {t2}, {sM}, 1
            s_add_u32 {t2}, {t2}, {sT1}
            s_lshl_b32 {sXme}, {t2}, 10
            s_add_u32 {sXme}, {sXme}, {sOW}
            s_add_u32 {sXme}, {sXme}, {sGA}
            s_lshl_b32 {sSTme}, {sT0}, 11
            s_lshl_b32 {t3}, {t2}, 3
            s_add_u32 {sSTme}, {sSTme}, {t3}
            s_add_u32 {sSTme}, {sSTme}, {sGA}
            s_lshl_b32 {sOutO}, {sG}, 16
            s_add_u32 {sOutO}, {sOutO}, {sOW}
            s_lshl_b32 {t3}, {t2}, 6
            s_add_u32 {sOutO}, {sOutO}, {t3}
            v_lshl_add_u32 v{XA}, v35, 8, v54
            s_and_b32 {t3}, {t2}, 3
            s_lshl_b32 {t3}, {t3}, 6
            v_xor_b32 v55, {t3}, v{XA}
            s_lshr_b32 {t3}, {t2}, 2
            s_sub_u32 {t3}, {t3}, {sJ}
            s_and_b32 {t3}, {t3}, 3
            s_lshl_b32 {t3}, {t3}, 12
            s_add_u32 {t3}, {t3}, {sOW}
            v_add_u32 v55, {t3}, v55
            s_lshl_b32 {t3}, {sT1}, 12
            s_add_u32 {sOW}, {sOW}, {t3}
            s_add_u32 {sGO}, {sGA}, {sOW}
            s_lshl_b32 {sOme}, {sM}, 1
            s_add_u32 {sOme}, {sOme}, {sT0}
            s_lshl_b32 {sOme}, {sOme}, 10
            s_add_u32 {sOme}, {sOme}, {sGA}
            v_mov_b32 v48, 0x40000000
            v_lshlrev_b32 v49, 2, v34
            v_lshl_add_u32 {vStatSt}, v35, 7, v49
            v_cmp_gt_u32 vcc, 32, v33
            v_cndmask_b32 {vStatSt}, v48, {vStatSt}, vcc
            v_cndmask_b32 {vT32}, v48, v39, vcc
            s_add_u32 {sGWr}, {sW4}, {sJ4}
            s_and_b32 {sGWr}, {sGWr}, 0x3fff
            s_add_u32 {sGWr}, {sGWr}, {sGA}
            s_mov_b32 s8, s92
            s_mov_b32 s9, s93
            v_xor_b32 v{XA+1}, 64, v{XA}
            v_xor_b32 v{XA+2}, 128, v{XA}
            v_xor_b32 v{XA+3}, 192, v{XA}
            s_and_b32 {sT1}, {sW}, 1
            v_lshlrev_b32 {vG16}, 4, v34
            v_add_u32 {vG16}, {MISC}, {vG16}
            v_lshlrev_b32 {vR4}, 2, v35
            v_add_u32 {vR4}, {MISC}, {vR4}
            v_and_b32 {vFl}, 31, v33
            v_lshlrev_b32 {vFl}, 2, {vFl}
            v_cmp_eq_u32 vcc, 0, v33
            s_lshl_b32 {sT0}, {sT1}, 3
            v_add_u32 {vO8}, {sT0}, {vL16}
            v_cndmask_b32 {vFlagOff}, v48, v42, vcc
            s_lshl_b32 {sT0}, {sW}, 3
            v_add_u32 {vStatW}, {sT0}, v36
            v_lshlrev_b32 {vStatW}, 2, {vStatW}
            v_add_u32 {vStatW}, {MISC}, {vStatW}
            v_lshrrev_b32 v50, 2, v35
            v_and_b32 v49, 3, v33
            v_lshl_add_u32 v51, v34, 3, v50
            v_lshlrev_b32 v51, 7, v51
            v_lshl_add_u32 v51, v49, 3, v51
            v_lshl_add_u32 v52, v34, 2, v50
            v_lshlrev_b32 v52, 7, v52
            v_lshl_add_u32 v52, v49, 4, v52
            s_add_u32 {sT0}, {sW4}, {LC}
            v_add_u32 v53, {sT0}, v51
            v_add_u32 v52, {sT0}, v52
            v_lshrrev_b32 v54, 1, v50
            v_and_b32 v56, 1, v34
            v_lshl_or_b32 v54, v56, 1, v54
            v_xor_b32 v54, {sW}, v54
            v_lshl_add_u32 v51, v54, 5, v51
            v_add_u32 v51, {LB}, v51
            s_mov_b32 {sOnes}, 0x3F803F80
            s_mov_b32 {sLo}, 0x00003F80
            s_mov_b32 {sHi}, 0x3F800000
            s_mov_b32 {sDelta}, 0x{f2u(1e-6*math.log2(math.e)):x}
            s_mov_b32 {sLn2}, 0x{f2u(math.log(2)):x}
            s_mov_b32 {sLog2e}, 0x{f2u(math.log2(math.e)):x}
            v_mov_b32 v112, {sOnes}
            v_mov_b32 v113, {sOnes}
            v_mov_b32 v114, {sOnes}
            v_mov_b32 v115, {sOnes}
            v_cmp_eq_u32 vcc, v34, v50
            s_lshl_b32 {sT0}, {sW}, 6
            v_add_u32 v54, {sT0}, {vR4}
            v_mov_b32 v56, {JUNK-768}
            v_cndmask_b32 v54, v56, v54, vcc"""], [])
        mix([f"""s_lshr_b32 {sT1}, {sW}, 1
            s_mul_i32 {sT0}, {sW}, 11
            s_cmp_eq_u32 {sW}, 3
            s_cselect_b32 {sT2}, 6, 7
            s_add_u32 {sT2}, {sT2}, {sT0}
            s_mul_i32 {sT1}, {sT1}, {HRT}
            s_add_u32 {sT1}, {sT1}, {sGA}
            s_lshl_b32 {sHe}, {sT0}, 10
            s_add_u32 {sHe}, {sHe}, {sT1}
            s_lshl_b32 {sHl}, {sT2}, 10
            s_add_u32 {sHl}, {sHl}, {sT1}
            s_mul_i32 {sT1}, {sM}, {W2S}
            s_add_u32 {sT1}, {sT1}, {W2F}
            s_lshl_b32 {sW2e}, {sT0}, 12
            s_add_u32 {sW2e}, {sW2e}, {sT1}
            s_lshl_b32 {sW2l}, {sT2}, 12
            s_add_u32 {sW2l}, {sW2l}, {sT1}
            s_and_b32 {sT0}, {sW}, 1
            s_lshl_b32 {sT0}, {sT0}, 11
            s_sub_u32 {sW2e2}, {sW2e}, {sT0}
            s_add_u32 {sW2e}, {sW2e}, {sT0}
            s_sub_u32 {sW2l2}, {sW2l}, {sT0}
            s_add_u32 {sW2l}, {sW2l}, {sT0}
            s_lshl_b32 {sT0}, {sM}, 17
            s_lshl_b32 {sT1}, {sW}, 14
            s_add_u32 {sWQ}, {sT0}, {sT1}
            s_add_u32 {sWQ}, {sWQ}, {WQF}
            s_mul_i32 {sW1}, {sM}, {12*16384}
            s_add_u32 {sW1}, {sW1}, {W1F}
            s_lshl_b32 {sXFa}, {sXC}, 7
            s_add_u32 {sXFa}, {sXFa}, {XF}"""], [])
        def prep(PB, stores=True, va='v53', vb='v52'):
            with a.skip_if(f's_cmp_eq_u32 {sPmode}, 1', 's_cbranch_scc1'):
                for c in range(4):
                    for hh in range(2): a.e(f'ds_read_b64_tr_b16 {ar(PB+4*c+2*hh,2)}, {va} offset:{hh*512+c*32}')
                a.waitall(vm=False)
            with a.skip_if(f's_cmp_eq_u32 {sPmode}, 1', 's_cbranch_scc0'):
                for c in range(4):
                    for hh in range(2): a.e(f'ds_read_b64_tr_b16 {ar(PB+4*c+2*hh,2)}, {vb} offset:{hh*2048+(c//2)*64+(c%2)*8}')
                a.waitall(vm=False)
            if not stores: return
            for c in range(4):
                e = a.e(f'buffer_store_dwordx4 {ar(PB+4*c)}, {vL16}, {SWS}, {sPdst} offen sc1')
                if c < 3: a.e(f's_add_u32 {sPdst}, {sPdst}, {sPstr}')
            return e
        s.fs('S')
        D['x'] = xloop(nx1, 16)
        a.e(f's_mov_b32 {sT0}, 0')
        a.raw('Lcl:')
        a.e(f"""s_lshl_b32 s54, {sT0}, 12
            s_add_u32 m0, s54, {sCl}
            s_lshr_b32 s54, {sT0}, 2
            s_lshl_b32 s55, {sJ}, 1
            s_add_u32 s54, s54, s55
            s_and_b32 s54, s54, 7
            s_lshl_b32 s54, s54, 1
            s_and_b32 s55, {sT0}, 1
            s_add_u32 s54, s54, s55
            s_mul_i32 s54, s54, {32*3072}
            s_and_b32 s55, {sT0}, 2
            s_lshl_b32 s55, s55, 9
            s_add_u32 s54, s54, s55
            s_add_u32 s54, s54, {sCs}
            s_add_u32 {sT0}, {sT0}, 1
            s_cmp_lt_u32 {sT0}, 12""")
        eC = a.e(f'buffer_load_dwordx4 v40, {SQ}, s54 offen lds')
        a.raw('s_cbranch_scc1 Lcl')
        fake = [Ent(set(), a.opt, 'vm') for _ in range(11)]
        a.q['vm'][-1:-1] = fake
        D[('c', 0)], D[('c', 1)], D[('c', 2)] = fake[3], fake[7], eC
        OA = [41, 45, 46, 47]
        for q in range(4): a.e(f'v_add_u32 v{OA[q]}, s57, v{XA+q}')
        pz = s.poison(100, '', 1, sU0, sU1); pz[-1] = Nm(pz[-1], D, 'pz')
        def tagpart():
            a.e(f"""v_readfirstlane_b32 {sT}, v43
            s_add_u32 {sT}, {sT}, 0x9E3779B0
            s_and_b32 {sT}, {sT}, -16
            s_getreg_b32 {sXt}, hwreg(HW_REG_XCC_ID, 0, 4)
            s_add_u32 {sXt}, {sXt}, {sT}
            v_mov_b32 {vTag}, {sT}
            v_mov_b32 v48, {sXt}""")
            with a.skip_if(f's_cmp_lg_u32 {sW}, 0', 's_cbranch_scc1'):
                a.e(f's_lshl_b32 {sT1}, {sR}, 2\n s_add_u32 {sT0}, {sXFa}, {sT1}')
                a.e(f'buffer_store_dword v48, {vFlagOff}, {SWS}, {sT0} offen sc1')
        late1 = [f's_lshl_b32 {sWQm}, {sM}, 17', f's_lshl_b32 {sTch}, {sJ}, 2', f's_add_u32 {sTch}, {sTch}, {sW}', f's_lshl_b32 {sTch}, {sTch}, 12',
                 f's_mul_i32 {sW2m}, {sM}, {W2S}', f's_add_u32 {sW2m}, {sW2m}, {W2F}',
                 lambda: a.e(f's_add_u32 {sH5}, {sHe}, 5120\n s_cmp_eq_u32 {sW}, 3\n s_cselect_b32 {sH5}, 0x40000000, {sH5}')]
        s.fs('S')
        AK = 56; XB = [128, 160]; SS = 120; SQ2 = 124
        so = {0: [0,1,2], 1: [3,4,5], 2: [6,7,8], 3: [9,10,11], 4: [12,13,14,15]}
        def xo(ks): return vr(96 + 4*(ks % 4)) if ks < 12 or True else None
        def reads(c):
            L = []
            for t in range(2):
                ks = 2*c+t
                for hh in range(2):
                    L.append(f'ds_read_b64_tr_b16 {ar(WK+4*ks+2*hh,2)}, v51 offset:{(c%4)*16384+t*4096+hh*512}')
                    L.append(f'ds_read_b64_tr_b16 {vr(WV+4*ks+2*hh,2)}, v51 offset:{(c%4)*16384+8192+t*4096+hh*512}')
                L += [f'ds_read_b128 {vr(XB[c%2]+16*t+4*rt)}, v{XA+ks%4} offset:{rt*16384+(ks//4)*4096}' for rt in range(4)]
            L += [At(9)] + [f'ds_read_b128 {xo(ks)}, v{OA[ks%4]} offset:{(ks//4)*4096}' for ks in so.get(c, [])]
            return L
        def mfs(c):
            L = []
            for ks in so.get(c, []):
                L += [f'{MF} {vr(SS)}, {xo(ks)}, v[112:115], {"0" if ks == 0 else vr(SS)}', f'{MF} {vr(SQ2)}, {xo(ks)}, {xo(ks)}, {"0" if ks == 0 else vr(SQ2)}']
            def main(t, rt):
                ks = 2*c+t; z = ks == 0; x = vr(XB[c%2]+16*t+4*rt)
                return [f'{MF} {vr(AK+8*rt)}, {x}, {ar(WK+4*ks)}, {"0" if z else vr(AK+8*rt)}', f'{MF} {vr(AK+8*rt+4)}, {x}, {vr(WV+4*ks)}, {"0" if z else vr(AK+8*rt+4)}']
            def cs(t):
                ks = 2*c+t; z = ks == 0
                return [f'{MF} v[88:91], v[112:115], {ar(WK+4*ks)}, {"0" if z else "v[88:91]"}', f'{MF} v[92:95], v[112:115], {vr(WV+4*ks)}, {"0" if z else "v[92:95]"}']
            if c == 7: return cs(0) + cs(1) + sum([main(0, rt) + main(1, rt) for rt in range(4)], [])
            for t in range(2): L += sum([main(t, rt) for rt in range(4)], []) + cs(t)
            return L
        for c in range(9):
            if c == 8: a.waitall(vm=False); a.raw('s_barrier')
            if c < 8:
                a.wait(D[('c', c)] , D['x']); a.waitall(vm=False)
                if not (s.o('x_kl', 0) & 4 and c > 0): a.raw('s_barrier')
            if c in (0, 1, 2, 4, 6, 8): s.fs('S')
            rd = reads(c) if c < 8 else []
            if s.o('x_kl', 0) & 2 and c > 0: rd = [r for r in rd if ('tr' in r) == bool(s.o('x_kl', 0) & 8)][:(99 if s.o('x_kl', 0) & 16 else 0)]
            if c == 0:
                s.run(rd + ['ds_read_b128 v[32:35], v55', 'ds_read_b128 v[36:39], v55 offset:32768'] + sum(chunk_dma(3), [])); tagpart()
                continue
            vm = []; va = []; pin = {}; pace = 4
            if c+3 < 8: vm = sum(chunk_dma(c+3), [])
            if c+3 < 8 and s.o('x_kl', 0) & 1: vm = []; D[('c', c+3)] = None
            if c == 1:
                va = sum([[f'v_lshlrev_b32 v{RES+2*i}, 16, v{32+i}', f'v_and_b32 v{RES+2*i+1}, 0xffff0000, v{32+i}'] for i in range(8)], [])
                a.e(f's_cmp_eq_u32 {sW}, 0\n s_cselect_b32 s56, {sPdst}, 0x40000000\n s_cselect_b32 s57, {sPF}, 0x40000000')
                with a.skip_if(f's_cmp_lg_u32 {sW}, 0', 's_cbranch_scc1'): a.wait(eP); prep(0, False)
                est = sum([[f'buffer_store_dwordx4 {ar(4*k)}, {vL16}, {SWS}, s56 offen sc1', f's_add_u32 s56, s56, {sPstr}'] for k in range(4)], [])
                est[-2] = Nm(est[-2], D, 'es')
            if c == 1: vm = est + vm; pace = 3
            if c == 2: pin[22] = [lambda: (a.wait(D['es']), a.e(f'buffer_store_dword {vTag}, {vFlagOff}, {SWS}, s57 offen sc1'))]
            if c == 3: va = late1 + ['s_mov_b32 s52, 0xAAAAAAAA', 's_mov_b32 s53, 0xAAAAAAAA', f's_mov_b32 {sSpin}, 0x40000', f's_lshr_b32 {sHd}, {sW}, 1', f's_mul_i32 {sHd}, {sHd}, {2*HRT}', f's_sub_u32 {sHd}, {HRT}, {sHd}']
            if c == 4: vm += pld[0] + pld[1]; pace = 3
            if c == 5:
                s.run([f'v_mov_b32 v{32+i}, 0' for i in range(4)])
                pz = s.poison(32, '', 1, sU0, sU1); pz[-1] = Nm(pz[-1], D, 'pz'); pz = groups(pz)
                vm = pld[2] + pld[3] + sum(pz[:3], []); pace = 4
            if c == 6:
                a.e(f"""s_min_u32 {t2}, {sM}, 3
            s_mul_i32 {t3}, {sM}, 5
            s_add_u32 {t2}, {t2}, {t3}
            s_add_u32 {sHst}, {t2}, {sW}
            s_lshl_b32 {sHst}, {sHst}, 10
            s_add_u32 {sHst}, {sHst}, {sGA}
            s_lshr_b32 {sT1}, {sW}, 1
            s_add_u32 {sHst2}, {t2}, {sT1}
            s_add_u32 {sHst2}, {sHst2}, 4
            s_lshl_b32 {sHst2}, {sHst2}, 10
            s_cmp_ge_u32 {sM}, 3
            s_cselect_b32 {t2}, {sT1}, 0
            s_cmp_lg_u32 {t2}, 0
            s_cselect_b32 {sHst2}, 0x40000000, {sHst2}
            s_add_u32 {sHst2}, {sHst2}, {sGA}
                    s_lshl_b32 {sCb}, {sW4}, 1
                    s_cmp_eq_u32 {sW}, 3
                    s_cselect_b32 {sT0}, {LC-4096}, 0
                    s_cselect_b32 {sT1}, 0, {LC}
                    s_add_u32 {sCb}, {sCb}, {sT0}
                    s_add_u32 {sCb}, {sCb}, {sT1}
                    s_mov_b32 {sNeg}, 0x80008000
                    s_lshr_b32 {sSTw}, {sW4}, 2
                    s_add_u32 {sSTw}, {sSTw}, {sGA}
                    s_sub_u32 {sW26}, {sW2l}, 4096
                    s_sub_u32 {sW262}, {sW2l2}, 4096
                    s_sub_u32 {sH6}, {sHl}, 1024
                    s_sub_u32 {sT0}, {sPi}, 32
                    s_cmp_ge_u32 {sT0}, 91
                    s_cselect_b32 {sPdst}, 0x40000000, {sPdst}
                    s_cselect_b32 {sPF}, 0x40000000, {sPF}""")
            if c == 6:
                vm = [f'buffer_load_dword v36, {vFl}, {SWS}, {sXFa} offen sc1'] + s.touch_kv1(0, 0) + sum(pz[3:], []); pace = 4
            if c == 8: va0 = [f's_lshl_b32 {sFm}, {sM}, 2', f's_add_u32 {sFm}, {sFm}, {sW}', f's_lshl_b32 {sFm}, {sFm}, 2', f's_add_u32 {sGW}, {sGA}, {A_FL}', f's_add_u32 {sFm}, {sFm}, {sGW}']
            if c == 7:
                a.wait(D['pld']); prep(16, False)
                pst = sum([[f'buffer_store_dwordx4 {ar(16+4*k)}, {vL16}, {SWS}, {sPdst} offen sc1', f's_add_u32 {sPdst}, {sPdst}, {sPstr}'] for k in range(4)], [])
                pst[-2] = Nm(pst[-2], D, 'pl')
                vm = pst[:6]; pace = 6
            if c == 8: vm = pst[6:]; pace = 6
            if c == 6:
                def sel(d, b): return [f'v_cndmask_b32 {d}, v{b}, v{b+1}, s[54:55]', f'v_cndmask_b32 v{b+2}, v{b+2}, v{b+3}, s[54:55]', f'v_cndmask_b32 {d}, {d}, v{b+2}, s[56:57]']
                a.e('s_mov_b32 s54, 0xAAAAAAAA\n s_mov_b32 s55, 0xAAAAAAAA\n s_mov_b32 s56, 0xCCCCCCCC\n s_mov_b32 s57, 0xCCCCCCCC')
                va = sel('v48', SS) + sel('v49', SQ2) + s.stats_fin('v48', 'v49', 'v50', 'v54', 0)
            if c == 8:
                def chk():
                    a.e(f'v_subrev_u32 v37, {sT}, v36\n v_cmp_le_u32 vcc, 16, v37\n s_nop 3')
                    with a.rare(None, 's_cbranch_vccnz'):
                        l = a.label('Lxf'); a.raw(f'{l}:'); s.spin_guard()
                        a.e(f'buffer_load_dword v36, {vFl}, {SWS}, {sXFa} offen sc1'); a.waitall(lg=False)
                        a.e(f'v_subrev_u32 v37, {sT}, v36\n v_cmp_le_u32 vcc, 16, v37'); a.raw(f's_cbranch_vccnz {l}')
                    a.e(f'v_cmp_ne_u32 vcc, {sXt}, v36')
                va = va0 + ['v_mov_b32 v108, v53', 'v_mov_b32 v109, v52', chk] + [f'ds_read_b128 {vr(32+4*i)}, {vG16} offset:{o}' for i, o in enumerate((ST_RL, ST_RSTD, ST_NB))] + [At(8), f'v_mul_f32 {vCsk}, {sLog2e}, v88', f'v_mov_b32 {vCsv}, v92']
            sched(a, mfs(c-1), pin, ([Stream(vm, 0, pace=pace), Stream(rd, 0, one=True)] if s.o('s_one', 1) else [Stream(rd, 0), Stream(vm, 0, pace=pace)]), [Stream(va, 4 if c < 8 else 0)])
        s.fs('S')
        TMP=96; PK=120; VP=124; KVA=88; ZA=92
        W = []
        for sb in range(4):
            ac = AK+8*sb; S = 32+12*(sb%2); RL, R, NB = S, S+4, S+8; o = 2*(sb%2)
            if sb < 3:
                S2 = 32+12*((sb+1)%2)
                W += [f'ds_read_b128 {vr(S2+4*i)}, {vG16} offset:{oo+(sb+1)*64}' for i, oo in enumerate((ST_RL, ST_RSTD, ST_NB))]
            W += s.kv_tail(ac, RL, R, NB, TMP, PK+o, VP+o)
            if sb % 2 == 1:
                c = "0" if sb == 1 else None
                W += [f'{MF} {vr(ZA)}, {vr(PK)}, v[112:115], {c or vr(ZA)}', f'{MF} {vr(KVA)}, {vr(PK)}, {vr(VP)}, {c or vr(KVA)}']
        s.wql = 0; nwq = s.o('wq0', 0)
        mix(W, groups(s.wq_loads(0, nwq)) if nwq else [], 3)
        s.st0 = {'nwq': nwq, 'won': 0, 'pz': D['pz'], 'pl': D.get('pl'), 'pld': D['pld']}; s.prep = prep
        s.fs('S')
        if s.kw.get('fine') == 'S':
            a.waitall()
            for k in range(13): a.e(f'v_readlane_b32 s{sPR+2*k}, v30, {2*k}')
            a.raw('s_nop 4'); a.raw('s_branch Lfin')
        s.stamp(1)
        if s.force == 'slow': a.raw('s_branch Lslow')
        elif s.force != 'fast': a.raw('s_cbranch_vccnz Lslow')

    def pf_check(s, vp, late):
        a = s.a
        l = a.label('Lpf'); a.raw(f'{l}:'); s.spin_guard()
        a.e(f'v_lshrrev_b32 v{vp+2}, 2, {vL16}\n s_lshl_b32 {sT0}, {sM}, 9\n s_add_u32 {sT0}, {sT0}, {PF}')
        if late:
            a.e(f'buffer_load_dword v{vp}, v{vp+2}, {SWS}, {sT0} offen offset:128 sc1')
            a.e(f'buffer_load_dword v{vp+1}, {vFl}, {SWS}, {sT0} offen offset:364 sc1')
            a.waitall(lg=False)
            a.e(f'v_cmp_ne_u32 vcc, {sT}, v{vp}\n v_cmp_ne_u32 {sCm}, {sT}, v{vp+1}\n s_or_b64 vcc, vcc, {sCm}')
        else:
            a.e(f'buffer_load_dword v{vp}, {vFl}, {SWS}, {sT0} offen sc1'); a.waitall(lg=False)
            a.e(f'v_cmp_ne_u32 vcc, {sT}, v{vp}')
        a.raw(f's_cbranch_vccnz {l}')

    def barrier(s, *ents):
        def f():
            s.a.wait(*[e() if callable(e) else e for e in ents]); s.a.raw('s_barrier')
        return f

    def arrivals(s, st, pin, mem, valu, buf, b, VB, reg, L):
        a = s.a
        for rt, gv, G, extra in L:
            rdv, vv = s.ver('b128', VB, rt*16384, b)
            mem.insert(0, Stream([lambda rt=rt: a.wait(st[('dma', rt)])] + rdv, gv, deadline=G-4))
            valu.insert(0, Stream(vv, gv+8, deadline=G-1))
            def f(rt=rt, extra=extra):
                s.ver_branch(s.tile_dma(buf, rt, {}, sT0, reg), 'b128', VB, rt*16384, b)
                s.barrier(*[st[k] for k in extra])()
            pin.setdefault(G, []).insert(0, f)
    def P1(s, l, prev):
        a = s.a; st = prev; s.wql = l
        RING=32; NR=6; ACC=[56,64]; STR=72; TMP=84; PK=96; VP=100; KVA=104; ZA=108; ONES=112; SL=120; VB=176
        def rd(n): return f'ds_read_b128 {vr(RING+4*(n%NR))}, v{XA+n%4} offset:{(n//16)*16384+((n%16)//4)*4096}'
        mf = []; pin = {}
        for n in range(64):
            sb, ks = divmod(n, 16); ac = ACC[sb%2]
            mf.append(f'{MF} {vr(ac)}, {vr(RING+4*(n%NR))}, {ar(WK+4*ks)}, {"0" if ks==0 else vr(ac)}')
            mf.append(f'{MF} {vr(ac+4)}, {vr(RING+4*(n%NR))}, {vr(WV+4*ks)}, {"0" if ks==0 else vr(ac+4)}')
        def epi(sb):
            ac = ACC[sb%2]; RL, R, NB = STR, STR+4, STR+8
            L = [f'ds_read_b128 {vr(NB)}, {vG16} offset:{ST_NB+sb*64}', f'ds_read_b128 {vr(RL)}, {vG16} offset:{ST_RL+sb*64}',
                 f'ds_read_b128 {vr(R)}, {vG16} offset:{ST_RSTD+sb*64}']
            o = 2*(sb%2)
            B = [f'v_fma_f32 v{TMP+r}, v{NB+r}, {vCsk}, {sDelta}' for r in range(4)]
            B += [f'v_fma_f32 v{TMP+r}, v{ac+r}, v{RL+r}, v{TMP+r}' for r in range(4)]
            for r in range(4): B += [f'v_exp_f32 v{TMP+4+r}, v{TMP+r} clamp', f'v_max_f32 v{TMP+r}, {sDelta}, v{TMP+r}']
            B += [f'v_fma_f32 v{TMP+r}, v{TMP+r}, {sLn2}, v{TMP+4+r}' for r in range(4)]
            B += [f'v_cvt_pk_bf16_f32 v{PK+o}, v{TMP}, v{TMP+1}', f'v_cvt_pk_bf16_f32 v{PK+o+1}, v{TMP+2}, v{TMP+3}']
            V = [f'v_mul_f32 v{TMP+8+r}, v{NB+r}, {vCsv}' for r in range(4)]
            V += [f'v_fma_f32 v{TMP+8+r}, v{ac+4+r}, v{R+r}, v{TMP+8+r}' for r in range(4)]
            V += [f'v_cvt_pk_bf16_f32 v{VP+o}, v{TMP+8}, v{TMP+9}', f'v_cvt_pk_bf16_f32 v{VP+o+1}, v{TMP+10}, v{TMP+11}']
            B = (B, V)
            T = []
            if sb % 2 == 1:
                c = "0" if sb == 1 else None
                T = [f'{MF} {vr(ZA)}, {vr(PK)}, {vr(ONES)}, {c or vr(ZA)}', f'{MF} {vr(KVA)}, {vr(PK)}, {vr(VP)}, {c or vr(KVA)}']
            return L, B, T
        s.fs('P1')
        mem = []; valu = []
        if l == 1:
            for i in range(4): a.e(f'v_mov_b32 v{ONES+i}, {sOnes}')
            for q in range(4): a.e(f'v_add_u32 v{XA+q}, {LB+1024*q}, {vL16}')
            a.e(f's_add_u32 {sT0}, {sW4}, {LB}\n v_add_u32 {vS0}, {sT0}, {vL16}')
            s.fs('P1')
            rdv, vv = s.ver('b128', VB, 0, 0)
            a.wait(st[('dma',0)]); s.run(rdv + vv); a.raw('s_nop 1')
            s.ver_branch(s.tile_dma(s.bX2(), 0, {}, sT0, LB), 'b128', VB, 0, 0)
            s.barrier()()
        s.fs('P1')
        for n in range(NR-1): a.e(rd(n))
        for n in range(64-NR+1): pin.setdefault(2*n+1, []).append(rd(n+NR-1))
        G1, G2, G3 = [2*(16*sb-NR+1) for sb in (1,2,3)]
        if l == 1:
            s.arrivals(st, pin, mem, valu, s.bX2(), 0, VB, LB, [(1, s.o('p1v1', 2), G1, []), (2, s.o('p1v2', 36), G2, []), (3, s.o('p1v3', 60), G3, ['sw1'])])
            GS = s.o('p1gs', 28)
            valu.insert(0, Stream(s.stats_chk(0, 1, 0, SL) + s.stats_use(1, 0, SL, st, 'sw0'), s.o('p1s0', 4), deadline=GS-2))
            pin.setdefault(GS, []).insert(0, s.barrier(lambda: st['sw0']))
            nwq = s.o('wq1', 16); w0 = st.get('wqpre', 0)
            q = [At(s.o('p1d2', 6))] + s.tile_dma(s.bX2(), 2, st, sU0, LB) + s.stats_ld(0, 1, 1, SL+4, sU0) + s.tile_dma(s.bX2(), 3, st, sU0, LB) + (s.t2(0) if s.o('tw2', 0) else []) + s.wq_loads(w0, 12) + (s.t2(1) if s.o('tw2', 0) else []) + s.wo_dma(st, 0, s.o('wo1', 1)) + [At(G3+1)] + s.wq_loads(12, nwq)
            mem.append(Stream(q, 0, pace=s.o('pace1', 3)))
            valu.append(Stream(s.stats_chk(0, 1, 1, SL+4) + s.stats_use(1, 1, SL+4, st, 'sw1'), s.o('p1s1', 44), deadline=G3))
        st['nwq'] = nwq
        for k in (19, 31, 51, 63, 83, 95): pin.setdefault(k, []).append(s.F('P1'))
        for sb in range(3):
            L, B, T = epi(sb); b0 = 32*(sb+1)
            mem.insert(0, Stream([At(b0-4 if sb == 0 else b0-1)] + L, 0))
            B, V = B
            valu.append(Stream([At(b0+1)] + B[:4] + [At(b0+3)] + B[4:], 0, deadline=b0+30))
            valu.append(Stream([At(b0+1)] + V[:4] + [At(b0+4)] + V[4:], 0, deadline=b0+30))
            pin.setdefault(b0+30, []).extend(T)
        L3, B3, T3 = epi(3)
        pin.setdefault(126, []).extend(L3[:2]); pin.setdefault(127, []).extend(L3[2:])
        left = sched(a, mf, pin, mem, valu); s.lefts.append(left)
        s.fs('P1')
        B3, V3 = B3
        s.run(s.kv_tail(ACC[1], STR, STR+4, STR+8, TMP, PK+2, VP+2) + T3)
        s.kv_publish(l, 84, KVA, ZA)
        s.fs('P1')
        st['won'] = s.o('wo1', 1)
        return st

    def kv_tail(s, ac, RL, R, NB, TMP, PK, VP):
        p = lambda r: vr(r, 2)
        L = [f'v_pk_fma_f32 {p(TMP+r)}, {p(NB+r)}, v[10:11], s[48:49] op_sel_hi:[1,0,0]' for r in (0, 2)]
        L += [f'v_pk_mul_f32 {p(TMP+8+r)}, {p(NB+r)}, v[10:11] op_sel:[0,1] op_sel_hi:[1,1]' for r in (0, 2)]
        L += [f'v_pk_fma_f32 {p(TMP+r)}, {p(ac+r)}, {p(RL+r)}, {p(TMP+r)}' for r in (0, 2)]
        for r in range(4): L += [f'v_exp_f32 v{TMP+4+r}, v{TMP+r} clamp', f'v_max_f32 v{TMP+r}, {sDelta}, v{TMP+r}']
        L += [f'v_pk_fma_f32 {p(TMP+8+r)}, {p(ac+4+r)}, {p(R+r)}, {p(TMP+8+r)}' for r in (0, 2)]
        L += [f'v_pk_fma_f32 {p(TMP+r)}, {p(TMP+r)}, s[48:49], {p(TMP+4+r)} op_sel:[0,1,0] op_sel_hi:[1,1,1]' for r in (0, 2)]
        L += [f'v_cvt_pk_bf16_f32 v{VP}, v{TMP+8}, v{TMP+9}', f'v_cvt_pk_bf16_f32 v{VP+1}, v{TMP+10}, v{TMP+11}',
              f'v_cvt_pk_bf16_f32 v{PK}, v{TMP}, v{TMP+1}', f'v_cvt_pk_bf16_f32 v{PK+1}, v{TMP+2}, v{TMP+3}']
        return L
    def kv_publish(s, l, G0, KVA, ZA):
        a = s.a
        a.e(f'''v_mov_b32 v{G0+3}, {vTag}
            s_lshl_b32 {sT0}, {sJ}, 10
            s_add_u32 {sT0}, {sT0}, {sKV1}
            s_add_u32 {sT0}, {sT0}, {l*0x100000}
            v_cvt_pk_bf16_f32 v{G0+4}, v{ZA}, v{ZA+1}
            v_cvt_pk_bf16_f32 v{G0+5}, v{ZA+2}, v{ZA+3}
            v_cvt_pk_bf16_f32 v{G0}, v{KVA}, v{KVA+1}
            v_cvt_pk_bf16_f32 v{G0+1}, v{KVA+2}, v{KVA+3}
            v_cndmask_b32 v{G0+2}, v{G0+4}, v{G0+5}, {sOdd}''')
        a.e(f'buffer_store_dwordx4 {vr(G0)}, {vL16}, {SWS}, {sT0} offen{s.sc}')

    def kv_tags(s, base, n):
        a = s.a
        for i in range(n):
            if i == 0: a.e(f'v_cmp_ne_u32 {sAcc}, {sT}, v{base+3}')
            else: a.e(f'v_cmp_ne_u32 {sCm}, {sT}, v{base+4*i+3}\n s_or_b64 {sAcc}, {sAcc}, {sCm}')
    def kv_add(s, base, n, acc):
        a = s.a
        for i in range(n):
            g = base + 4*i
            for k in range(3):
                if i == 0: a.e(f'v_lshlrev_b32 {acc[2*k]}, 16, v{g+k}\n v_and_b32 {acc[2*k+1]}, 0xffff0000, v{g+k}')
                else: a.e(f'v_dot2_f32_bf16 {acc[2*k]}, v{g+k}, {sLo}, {acc[2*k]}\n v_dot2_f32_bf16 {acc[2*k+1]}, v{g+k}, {sHi}, {acc[2*k+1]}')
    def kv_sum(s, base, n, acc):
        a = s.a
        for i in range(n):
            g = base + 4*i
            for k, (src, sel) in enumerate([(0,sLo),(0,sHi),(1,sLo),(1,sHi),(2,sLo),(2,sHi)]):
                a.e(f'v_dot2_f32_bf16 v{acc+k}, v{g+src}, {sel}, {"0" if i == 0 else f"v{acc+k}"}')
            if i == 0: a.e(f'v_cmp_ne_u32 {sAcc}, {sT}, v{g+3}')
            else: a.e(f'v_cmp_ne_u32 {sCm}, {sT}, v{g+3}\n s_or_b64 {sAcc}, {sAcc}, {sCm}')

    def woreg(s, ks, sl):
        if ks % 4 == 3: return 64 + 8*(ks//4) + 4*sl
        return 96 + 8*((ks//4)*3 + ks%4) + 4*sl
    def Q(s, l, st):
        a = s.a; s.wql = l
        RING=32; NR=8; QA=96; CS=92; T=120; PQ=64; ONES=112; EPS=72; SUM=76; KT=82; ZT=84; NBR=88; OUT=88
        s.fs('Q')
        R1 = 68; RA = ['v84', 'v85', 'v86', 'v87', vS0, vS1]
        def red_ld():
            a.e(f's_add_u32 {sT0}, {sKV1}, {l*0x100000}')
            for i in range(4): a.e(f'buffer_load_dwordx4 {vr(R1+4*i)}, {vL16}, {SWS}, {sT0} offen offset:{i*1024} sc1')
        def red1():
            with a.skip_if(f's_cmp_lg_u32 {sW}, {sJ}', 's_cbranch_scc1'): red_ld()
        def red2():
            with a.skip_if(f's_cmp_lg_u32 {sW}, {sJ}', 's_cbranch_scc1'):
                s.kv_tags(R1, 4)
                with a.rare(f's_cmp_lg_u64 {sAcc}, 0', 's_cbranch_scc1'):
                    lb = a.label('Lred'); a.raw(f'{lb}:'); s.spin_guard()
                    red_ld(); s.kv_tags(R1, 4)
                    a.e(f's_cmp_lg_u64 {sAcc}, 0'); a.raw(f's_cbranch_scc1 {lb}')
                s.kv_add(R1, 4, RA)
                a.e(f'''s_lshl_b32 {sT0}, {sXC}, 10
                    s_add_u32 {sT0}, {sT0}, {sKV2}
                    s_add_u32 {sT0}, {sT0}, {l*0x40000}
                    v_cvt_pk_bf16_f32 v{R1}, {RA[0]}, {RA[1]}
                    v_cvt_pk_bf16_f32 v{R1+1}, {RA[2]}, {RA[3]}
                    v_cvt_pk_bf16_f32 v{R1+2}, {RA[4]}, {RA[5]}''')
                a.e(f'buffer_store_dwordx4 {vr(R1)}, {vL16}, {SWS}, {sT0} offen sc1')
            s.fs('Q')
        order = [(rt, ks) for rt in range(4) for ks in range(16)]
        def rd(n): rt, ks = order[n]; return f'ds_read_b128 {vr(RING+4*(n%NR))}, v{XA+ks%4} offset:{rt*16384+(ks//4)*4096}'
        mf = []; pin = {}; gend = {}
        for n, (rt, ks) in enumerate(order):
            mf.append(f'{MF} {vr(QA+4*rt)}, {vr(128+4*ks)}, {vr(RING+4*(n%NR))}, {"0" if ks==0 else vr(QA+4*rt)} ; ?v{128+4*ks}=wq{l}')
            if n+NR-1 < 64: pin.setdefault(len(mf)-1, []).append(rd(n+NR-1))
            if l == 0 and n < 16: mf.append(f'{MF} {vr(CS)}, {vr(128+4*ks)}, {vr(ONES)}, {"0" if ks==0 else vr(CS)}')
            gend[rt] = len(mf)
        wql = Stream(s.wq_loads(st['nwq'], 16)).items
        if l == 0:
            if s.o('r0s', 2): a.raw(f"s_sleep {s.o('r0s', 2)}")
            red1(); s.pf_check(124, False)
            a.e(f'buffer_store_dword {vTag}, {vFlagOff}, {SWS}, {sPF} offen sc1'); a.e(s.flag_st(0, 0, 0))
            red2()
        s.run(wql)
        a.e(f's_lshl_b32 {sT0}, {sW}, 6\n v_add_u32 {vS2}, {sT0}, {vG16}')
        if l == 1: a.e(f'ds_read_b128 {vr(CS)}, {vS2} offset:{CSQ}')
        for n in range(NR-1): a.e(rd(n))
        def epi(rt):
            nb, rl = f'v{NBR+2*(rt%2)}', f'v{NBR+1+2*(rt%2)}'
            R = [f'ds_read_b32 {nb}, {vR4} offset:{ST_NB+rt*64}', f'ds_read_b32 {rl}, {vR4} offset:{ST_RL+rt*64}']
            L = [f'v_fma_f32 v{T+r}, {nb}, v{CS+r}, {sDelta}' for r in range(4)]
            L += [f'v_fma_f32 v{T+r}, v{QA+4*rt+r}, {rl}, v{T+r}' for r in range(4)]
            for r in range(4): L += [f'v_exp_f32 v{T+4+r}, v{T+r} clamp', f'v_max_f32 v{T+r}, {sDelta}, v{T+r}']
            L += [f'v_fma_f32 v{T+r}, v{T+r}, {sLn2}, v{T+4+r}' for r in range(4)]
            L += [f'v_cvt_pk_bf16_f32 v{PQ+2*rt}, v{T}, v{T+1}', f'v_cvt_pk_bf16_f32 v{PQ+2*rt+1}, v{T+2}, v{T+3}']
            return R, L
        s.run(epi(0)[0] + epi(1)[0])
        S2 = 32
        def st2_loads():
            for i in range(8):
                if i % 4 == 0: a.e(f's_add_u32 {sT0}, {sKV2}, {l*0x40000+i*1024}')
                a.e(f'buffer_load_dwordx4 {vr(S2+4*i)}, {vL16}, {SWS}, {sT0} offen offset:{(i%4)*1024} sc1')
        valu = []
        for rt in range(3):
            pre = []
            if rt == 0 and l == 0: pre = [f'v_mul_f32 v{CS+r}, {sLog2e}, v{CS+r}' for r in range(4)] + [f'ds_write_b128 {vS2}, {vr(CS)} offset:{CSQ}']
            R, L = epi(rt)
            post = epi(rt+2)[0] if rt < 2 else []
            valu.append(Stream(pre + L + post, gend[rt]+3, deadline=(gend[rt+1]+2 if rt < 2 else None)))
        n0 = 0
        wo = [s.wo_dma(st, i, i+1) for i in range(st['won'], 4)]
        if l == 0: q = wo[0] + wo[1] + ([lambda: (a.wait(st['pl2']), a.e(f'buffer_store_dword {vTag}, {vFlagOff}, {SWS}, {sPF} offen sc1'), a.wait(st['pz']), a.e(s.flag_st(0, 0, 0)))] if 'pl2' in st else []) + wo[2] + wo[3] + (s.touch_oxs(127) if s.o('tch', 1) else [])
        else: q = (s.touch_oxs(0) if s.o('tch1', 1) else []) + sum(wo, []) + (s.t2(2) if s.o('tw2', 0) else [])
        q = Stream(q).items
        g = 0
        for it in q:
            pin.setdefault(g, []).insert(len([x for x in pin.get(g, []) if not (isinstance(x, str) and x.startswith('ds_read'))]), it)
            t = it.text if isinstance(it, Nm) else it
            if isinstance(t, str) and t.startswith('buffer'): g += (3 if l == 0 else 4)
        assert g < len(mf) - 8, g
        ga, gb = s.o('rga', 4), s.o('rgb', 22)
        assert gb < gend[2]

        if l == 1: pin.setdefault(ga, []).insert(0, red1); pin.setdefault(gb, []).insert(0, red2)
        for k in (gend[2]-1,): pin.setdefault(k, []).append(s.F('Q'))
        s.lefts.append(sched(a, mf, pin, [], valu, over=True))
        p2 = lambda r: vr(r, 2)
        L3 = [f'v_pk_fma_f32 {p2(T+r)}, {p2(CS+r)}, {p2(NBR+2)}, s[48:49] op_sel_hi:[1,0,0]' for r in (0, 2)]
        L3 += [f'v_pk_fma_f32 {p2(T+r)}, {p2(QA+12+r)}, {p2(NBR+2)}, {p2(T+r)} op_sel:[0,1,0] op_sel_hi:[1,1,1]' for r in (0, 2)]
        L3 += epi(3)[1][8:16]
        L3 += [f'v_pk_fma_f32 {p2(T+r)}, {p2(T+r)}, s[48:49], {p2(T+4+r)} op_sel:[0,1,0] op_sel_hi:[1,1,1]' for r in (0, 2)] + epi(3)[1][20:]
        s.run(L3 + [f'v_mov_b32 v{EPS+r}, 0x{f2u(1e-6):x}' for r in range(4)])
        a.e(f's_and_b32 {sT0}, {sW}, 1\n s_lshl_b32 {sT0}, {sT0}, 11\n s_add_u32 {sT0}, {sT0}, {RW(l)}\n v_add_u32 {vS2}, {sT0}, {vL16}')
        def wo_rd(ks): return [f'ds_read_b128 {vr(s.woreg(ks, sl))}, {vS2} offset:{ks*4096+sl*1024} ; @wo{l}' for sl in range(2)]
        early = [ks for ks in range(16) if not (64 <= s.woreg(ks, 0) < 96 or S2 <= s.woreg(ks, 0) < S2+32)]
        late = [ks for ks in range(16) if ks not in early]
        s.fs('Q')
        a.wait(st['wo'])
        s.barrier()()
        if s.o('qsleep', 0): a.raw(f"s_sleep {s.o('qsleep', 0)}")
        s.fs('Q')
        if l == 0: s.pf_check(124, True)
        st2_loads()
        for ks in early: s.run(wo_rd(ks))
        st['w2'] = {}
        if l == 0: s.run([s.poll_ld(0, 0, 0)])
        for i in range(1, 1+(s.o('w2q', 3) if l else s.o('w2q0', 0))): s.run(s.w2_dma(i, st['w2']))
        n1 = s.o('w1a', 8)
        if l == 0:
            s.run(s.w1_loads(0, n1))
        st['w1n'] = n1
        s.stamp(3); s.fs('Q')
        s.kv_sum(S2, 8, SUM)
        a.e(f's_cmp_lg_u64 {sAcc}, 0')
        s.fs('Q')
        with a.rare(None, 's_cbranch_scc1'):
            lo = a.label('Lst2o'); a.raw(f'{lo}:'); s.spin_guard()
            for i in range(8):
                a.e(f'v_cmp_ne_u32 vcc, {sT}, v{S2+4*i+3}\n s_nop 1')
                with a.skip_if(None, 's_cbranch_vccz'):
                    a.e(f's_add_u32 {sT0}, {sKV2}, {l*0x40000+i*1024}')
                    a.e(f'buffer_load_dwordx4 {vr(S2+4*i)}, {vL16}, {SWS}, {sT0} offen sc1')
            a.waitall(lg=False)
            s.kv_tags(S2, 8)
            a.e(f's_cmp_lg_u64 {sAcc}, 0'); a.raw(f's_cbranch_scc1 {lo}')
            s.kv_sum(S2, 8, SUM)
        s.stamp(4); s.fs('Q')
        a.e(f'''v_cvt_pk_bf16_f32 v86, v{SUM+4}, v{SUM+5}
            v_cvt_pk_bf16_f32 v{KT}, v{SUM}, v{SUM+1}
            v_cvt_pk_bf16_f32 v{KT+1}, v{SUM+2}, v{SUM+3}
            v_mov_b32_dpp v{ZT}, v86 quad_perm:[0,0,2,2] {DPPF}
            v_mov_b32_dpp v{ZT+1}, v86 quad_perm:[1,1,3,3] {DPPF}
            s_add_u32 {sT0}, {sOme}, {s.bO(l)}''')
        for rt in range(4):
            a.e(f'{MF16} {vr(32+4*rt)}, {vr(ZT,2)}, {vr(PQ+2*rt,2)}, {vr(EPS)}')
            a.e(f'{MF16} {vr(48+4*rt)}, {vr(KT,2)}, {vr(PQ+2*rt,2)}, 0')
        a.e('v_rcp_f32 v32, v32')
        for rt in range(4):
            if rt < 3: a.e(f'v_rcp_f32 v{36+4*rt}, v{36+4*rt}')
            for r in (0, 2): a.e(f'v_pk_mul_f32 {vr(48+4*rt+r,2)}, {vr(48+4*rt+r,2)}, {vr(32+4*rt,2)} op_sel_hi:[1,0]')
            a.e(f'v_cvt_pk_bf16_f32 v{OUT+2*rt}, v{48+4*rt}, v{49+4*rt}\n v_cvt_pk_bf16_f32 v{OUT+1+2*rt}, v{50+4*rt}, v{51+4*rt}')
            a.e(f'v_or_b32 v{OUT+2*rt}, 1, v{OUT+2*rt}' if l == 0 else f'v_and_b32 v{OUT+2*rt}, -2, v{OUT+2*rt}')
            e = a.e(f'buffer_store_dwordx2 {vr(OUT+2*rt,2)}, {vO8}, {SWS}, {sT0} offen{s.sc}')
            if rt < 3: a.e(f's_add_u32 {sT0}, {sT0}, 16384')
        s.fs('Q')
        for ks in late: s.run(wo_rd(ks))
        if l == 0:
            s.poll_check(0, 0, 0)
        s.fs('Q')
        if l == 0: s.run(s.w1_loads(n1, n1 + s.o('w1b', 8))); st['w1n'] = n1 + s.o('w1b', 8)
        s.stamp(5); s.fs('Q')
        return st

    def P2(s, l, st):
        a = s.a
        RING=32; NR=6; VB=56; PKO=96; b = 1 - l
        s.fs('P2')
        n2 = st['w1n']; n3 = min(48, n2 + s.o('w1c', 10))
        def chunk(c, t, d):
            hf, kh = divmod(c, 2)
            L = [f's_add_u32 m0, {sOW}, {RW(l)+hf*32768+kh*8192}', f's_add_u32 {t}, {sGO}, {s.bO(l)+hf*32768+kh*8192}']
            L += [f'buffer_load_dwordx4 {vL16}, {SWS}, {t} offen offset:{i*1024}{s.lc} lds' for i in range(4)]
            L[-1] = Nm(L[-1], d, ('c', c))
            return L
        coff = lambda c: (c//2)*32768 + (c%2)*8192
        a.waitall(vm=False); a.raw('s_barrier')
        if s.kw.get('fine') == 'X' and l == s.o('fl', 1):
            a.waitall()
            for rep_ in range(2):
                for i in (1, 2, 3, 4):
                    s.fs('X'); d = {}; s.run(s.w2_dma(i, d)); a.waitall()
            s.fs('X')
            s.run(s.wq_loads(0, 4)); a.waitall(); s.fs('X')
            s.run(s.wq_loads(0, 4)); a.waitall(); s.fs('X')
            a.raw('s_branch Lfin')
        if s.o('opoll', 1):
            a.e(f'v_lshlrev_b32 {vS0}, 7, {vFl}\n v_and_b32 {vS0}, 0x3c00, {vS0}\n v_and_b32 {vS1}, 4, {vFl}\n v_lshl_add_u32 {vS0}, {vS1}, 1, {vS0}\n s_add_u32 {sT0}, {sGA}, {s.bO(l)+3*16384}')
            lb = a.label('Lop'); a.raw(f'{lb}:'); s.spin_guard()
            a.e(f'buffer_load_dword {vP}, {vS0}, {SWS}, {sT0} offen offset:1008 sc1'); a.waitall(lg=False)
            a.e(f'v_and_b32 {vP}, 1, {vP}\n v_cmp_ne_u32 vcc, {b}, {vP}'); a.raw(f's_cbranch_vccnz {lb}')
        s.fs('P2')
        if s.kw.get('fine') == 'Y' and l == s.o('fl', 1):
            for rep_ in range(2):
                d = {}
                s.fs('Y')
                s.run(sum([chunk(c, sT0, d) for c in range(4)], [])); s.fs('Y')
                for c in range(4): a.wait(d[('c', c)]); s.fs('Y')
                a.raw('s_barrier')
            a.raw('s_branch Lfin')
        s.run(sum([chunk(c, sT0, st) for c in range(4)], []))
        s.stamp(6); s.fs('P2')
        a.e(f's_and_b32 {sT0}, {sOW}, 0x4000\n s_add_u32 {sT0}, {sT0}, {RW(l)}\n v_add_u32 {vS2}, {sT0}, {vL16}\n s_add_u32 {sT0}, {sOW}, {RW(l)}\n v_add_u32 {vS0}, {sT0}, {vL16}\n v_add_u32 {vS1}, 8, {vS0}')
        def rd(n): hf, ks = divmod(n, 16); return f'ds_read_b128 {vr(RING+4*(n%NR))}, {vS2} offset:{hf*32768+ks*1024}'
        mf = []; pin = {}; mem = []; valu = []
        for n in range(32):
            hf, ks = divmod(n, 16)
            for sl in range(2):
                ac = RES+8*hf+4*sl
                mf.append(f'{MF} {vr(ac)}, {vr(s.woreg(ks, sl))}, {vr(RING+4*(n%NR))}, {vr(ac)} ; ?v{s.woreg(ks, sl)}=wo{l}')
        r0, v0 = s.ver('b128', 32, coff(0), b); r1, v1 = s.ver('b128', 48, coff(1), b)
        a.wait(st[('c',0)]); s.run(r0); a.wait(st[('c',1)]); s.fs('P2'); s.run(r1 + v0); a.raw('s_nop 1')
        s.ver_branch(chunk(0, sT0, {}), 'b128', 32, coff(0), b)
        s.run(v1); a.raw('s_nop 1')
        s.ver_branch(chunk(1, sT0, {}), 'b128', 48, coff(1), b)
        a.raw('s_barrier')
        s.fs('P2')
        for n in range(NR-1): a.e(rd(n))
        for n in range(32-NR+1): pin.setdefault(2*n+1, []).append(rd(n+NR-1))
        G = 2*(16-NR+1)
        for c, g0, g1 in ((2, 0, 10), (3, 10, G)):
            rdv, vv = s.ver('r2', VB, coff(c), b)
            mem.append(Stream([lambda c=c: a.wait(st[('c', c)])] + rdv, g0, deadline=g1-5))
            valu.append(Stream(vv, g1-5, deadline=g1-2))
            def f(c=c):
                s.ver_branch(chunk(c, sT0, {}), 'r2', VB, coff(c), b)
                if c == 3: a.raw('s_barrier')
            pin.setdefault(g1, []).insert(0, f)
        pin.setdefault(40, []).insert(0, s.barrier())
        extra = (s.touch_h(0) if s.o('tchh', 1) else []) + (s.w1_loads(n2, n3) if l == 0 else [])
        xp = s.x_pub(l, 0, 0, PKO, 'v104', 'v105', st, 'p0', False, sV0)
        mem.append(Stream(xp[:8], 35, deadline=44))
        mem.append(Stream(extra, s.o('p2x', 20), pace=s.o('pace2', 4)))
        valu.append(Stream(xp[8:], 44))
        for k in (5, 15, 31, 47): pin.setdefault(k, []).append(s.F('P2'))
        s.lefts.append(sched(a, mf, pin, mem, valu))
        s.fs('P2')
        s.run(s.x_pub(l, 0, 1, PKO+4, vS0, vS1, st, 'p1', True, sT0))
        s.fs('P2')
        st['w1n'] = n3
        s.stamp(7)
        return st

    def P3(s, l, st):
        a = s.a; w2 = st['w2']
        RING=32; NR=6; ACC=[56,68]; CS=80; NM=92; PKD=[144,150]; SL=156; ONES=164; HELD=176
        VB = 128
        s.fs('P3')
        s.run(s.tile_dma(s.bX1(l), 0, st, sT0, RW(l)) + s.tile_dma(s.bX1(l), 1, st, sT0, RW(l)))
        n4 = min(48, st['w1n'] + s.o('w1d', 6))
        if l == 0: s.run(s.w1_loads(st['w1n'], n4))
        else: s.run(s.held()); st['held'] = 1
        s.fs('P3')
        a.e(f's_mul_i32 {sT0}, {sW}, 192\n v_add_u32 {vS2}, {sT0}, {vG16}\n s_add_u32 {sT0}, {sW4}, {RW(l)}\n v_add_u32 {vS0}, {sT0}, {vL16}\n v_add_u32 v94, {RW(l)}, {vL16}')
        if l == 1:
            for sl in range(3): a.e(f'ds_read_b128 {vr(CS+4*sl)}, {vS2} offset:{CSW1+sl*64}')
        rdv, vv = s.ver('b128', VB, 0, 1)
        a.wait(st[('dma',0)]); s.run(rdv + vv); a.raw('s_nop 1')
        s.ver_branch(s.tile_dma(s.bX1(l), 0, {}, sT0, RW(l)), 'b128', VB, 0, 1)
        if l == 0:
            for i in range(4): a.e(f'v_mov_b32 v{ONES+i}, {sOnes}')
        s.stamp(8); s.fs('P3')
        def rd(n): return f'ds_read_b128 {vr(RING+4*(n%NR))}, v94 offset:{n*1024}'
        mf = []; pin = {}; gp = {}
        for n in range(64):
            sb, ks = divmod(n, 16)
            gp[n] = len(mf)
            for sl in range(3):
                ac = ACC[sb%2]+4*sl
                mf.append(f'{MF} {vr(ac)}, {ar(64*sl+4*ks)}, {vr(RING+4*(n%NR))}, {"0" if ks==0 else vr(ac)} ; ?a{64*sl+4*ks}=w1')
            if l == 0 and sb == 0: mf += [s.colsum_w1(sl, CS, ONES)[ks] for sl in range(3)]
        gp[64] = len(mf); X = gp[16] - 48
        s.barrier()()
        s.fs('P3')
        for n in range(NR-1): a.e(rd(n))
        for n in range(64-NR+1): pin.setdefault(gp[n]+2, []).append(rd(n+NR-1))
        G1, G2, G3 = [gp[16*sb-NR+1] for sb in (1,2,3)]
        G4 = gp[51]
        mem = []; valu = []
        s.arrivals(st, pin, mem, valu, s.bX1(l), 1, VB, RW(l), [(1, 6, G1, []), (2, 54+X, G2, ['sw0']), (3, 100+X, G3, ['sw1'])])
        pin.setdefault(G4, []).insert(0, s.barrier())
        valu.append(Stream(s.stats_chk(l, 0, 0, SL) + s.stats_use(0, 0, SL, st, 'sw0') + s.stats_chk(l, 0, 1, SL+4) + [By(G2-2)] + s.stats_use(0, 1, SL+4, st, 'sw1'), 36+X, deadline=G3-2))
        if l == 0: valu.append(Stream([f'ds_write_b128 {vS2}, {vr(CS+4*sl)} offset:{CSW1+sl*64}' for sl in range(3)], gp[16]+6))
        todo = [i for i in range(1, 5) if i not in w2]
        q = []
        if l == 0:
            for n in range(n4, 48, 2): q += s.w1_loads(n, n+2) + [By(max(0, gp[4*(n//12)] - 1))]
        q += s.stats_ld(l, 0, 0, SL, sU0) + s.tile_dma(s.bX1(l), 2, st, sU0, RW(l)) + s.stats_ld(l, 0, 1, SL+4, sU0) + s.tile_dma(s.bX1(l), 3, st, sU0, RW(l))
        for i in todo: q += s.w2_dma(i, w2)
        if 'held' not in st: q += s.held()
        if l == 0:
            def five():
                with a.skip_if(f's_cmp_eq_u32 {sW}, 3', 's_cbranch_scc1'): s.run(s.w2_dma(5, w2))
            q += [five] + s.w2_dma(6, w2)
        q += [At(G2+1)] + s.w2_dma(7, w2)
        nl = s.o('late0', 10) if l == 0 else 10
        if nl > 8: q += [At(G3+1)] + s.w2_dma(8, w2)
        if nl > 9: q += [At(G4+1)] + s.w2_dma(9, w2)
        st['nA'] = s.o('p3a', 5) if l == 1 else s.o('p3a0', 4)
        if l == 0:
            mem.append(Stream([lambda: a.wait(st[('hs',1)]), s.flag_st(0, 1, 0)], s.o('p3f', 146)+X))
            q += [At(s.o('p3h0', 172)-10+X), s.poll_ld(0, 1, 0), At(s.o('p3h0', 172)+X), lambda: s.poll_check(0, 1, 0)]
        al = [At(s.o('p3h', 138))] + sum([s.aload(l, n) for n in range(st['nA'])], [])
        k9 = [k for k, it in enumerate(q) if isinstance(it, At) and it.g == G4+1]
        if k9 and l == 1: q = q[:k9[0]] + al[:8] + q[k9[0]:] + al[8:]
        else: q += al
        def epi(sb):
            ac = ACC[sb%2]; p = PKD[sb%2]
            R = [f'ds_read_b32 v{NM+sb%2}, {vR4} offset:{1024+ST_NM+sb*64}']
            ng = '-' if l == 0 else ''
            B = [f'v_fma_f32 v{ac+i}, {ng}v{NM+sb%2}, v{CS+i}, {ng}v{ac+i}' for i in range(12)]
            B += [f'v_cvt_pk_bf16_f32 v{p+i}, v{ac+2*i}, v{ac+2*i+1}' for i in range(6)]
            B += [(f'v_pk_max_u16 v{p+i}, v{p+i}, {sNeg}' if l == 0 else f'v_pk_max_i16 v{p+i}, v{p+i}, 0') for i in range(6)]
            B += [f's_add_u32 {sV0}, {sHst}, {s.bH(l)+sb*HRT}', f's_add_u32 {sV1}, {sHst2}, {s.bH(l)+sb*HRT}',
                  f'buffer_store_dwordx4 {vr(p)}, {vL16}, {SWS}, {sV0} offen{s.sc}',
                  Nm(f'buffer_store_dwordx2 {vr(p+4,2)}, {vO8}, {SWS}, {sV1} offen{s.sc}', st, ('hs', sb))]
            return R, B
        for sb in range(3):
            R, B = epi(sb); b0 = gp[16*(sb+1)]
            if sb == 0:
                mem.append(Stream(R, G2)); valu.insert(0, Stream([At(G2+3)] + B[:18] + [By(95+X)] + B[18:], 0, deadline=104+X))
            else:
                mem.append(Stream(R, b0-3)); valu.insert(sb, Stream(B, b0+4, deadline=b0+40))
        mem.append(Stream(epi(3)[0], gp[64]-6))
        mq = Stream(q, 0, pace=s.o('pace3', 4)); mem.append(mq)
        for k_ in (10, 15, 21, 26, 31, 42, 47): pin.setdefault(gp[k_+1]-1, []).append(s.F('P3'))
        left = sched(a, mf, pin, mem, valu, keep=[mq]); s.lefts.append((left, len(mq.items)-mq.k))
        s.fs('P3')
        R, B = epi(3)
        s.barrier(w2[6] if l == 0 else None)()
        ngp = ' neg_lo:[0,1,1] neg_hi:[0,1,1]' if l == 0 else ''
        Bp = [f'v_pk_fma_f32 {vr(ACC[1]+i,2)}, {vr(CS+i,2)}, {vr(NM,2)}, {vr(ACC[1]+i,2)} op_sel:[0,1,0] op_sel_hi:[1,1,1]{ngp}' for i in range(0, 12, 2)]
        s.run(Bp + B[12:]); s.run(mq.items[mq.k:])
        s.stamp(9); s.fs('P3')
        return st

    def aload(s, l, n, sA0=sA0, sA1=sA1, force=False):
        AR=96; NA=6
        ps, i = divmod(n, 11); r = AR + 8*(n % NA)
        base, j = (sHe, i) if i <= 4 else ((sH5, 0) if i == 5 else ((sH6, 0) if i == 6 else (sHl, i-7)))
        L = []
        if j % 4 == 0 or force: L += [f's_add_u32 {sA0}, {base}, {s.bH(l)+ps*2*HRT+(j//4)*4096}', f's_add_u32 {sA1}, {sA0}, {sHd}']
        return L + [f'buffer_load_dwordx4 {vr(r)}, {vL16}, {SWS}, {sA0} offen offset:{(j%4)*1024}{s.lc} ; @h{l}_{n}',
                    f'buffer_load_dwordx4 {vr(r+4)}, {vL16}, {SWS}, {sA1} offen offset:{(j%4)*1024}{s.lc} ; @h{l}_{n}']

    def P4(s, l, st):
        a = s.a; nxt = {}; w2 = st['w2']
        ACC=[32,64]; AR=96; NA=6; BR=[144,160]; HELD=176
        def breg(n):
            ps, i = divmod(n, 11); return HELD if i == 0 else BR[(ps*10+i) % 2]
        def bread(n):
            ps, i = divmod(n, 11)
            if i == 0: return []
            L = []
            if ps == 0 and i in w2: L.append(lambda: a.wait(w2[i]))
            v, o = (vS0, (i-1)*4096) if i <= 4 else ((vS2, (i-5)*4096) if i <= 6 else (vS1, (i-7)*16384))
            return L + [f'ds_read_b128 {vr(breg(n)+4*c)}, {v} offset:{o+c*1024} ; @b{l}_{n}' for c in range(4)]
        s.fs('P4')
        a.e(f'''s_lshl_b32 {sT0}, {sW4}, 2
            s_add_u32 {sT0}, {sT0}, {RX(l)}
            v_add_u32 {vS0}, {sT0}, {vL16}
            s_add_u32 {sT0}, {sW4}, {RW(l)}
            v_add_u32 {vS1}, {sT0}, {vL16}
            v_add_u32 {vS2}, {sCb}, {vL16}''')
        nA = st['nA']
        for n in range(nA, 2): s.run(s.aload(l, n))
        nA = max(nA, 2)
        s.stamp(10); s.fs('P4')
        def xwrite(ps): return [f'ds_write_b128 {vS0}, {vr(ACC[ps]+8*t+4*sl)} offset:{ps*8192+t*2048+sl*1024}' for t in (1,2,3) for sl in (0,1)]
        def xread(ps, tmp, sx):
            return [f'v_xor_b32 v{tmp+t}, {t<<14}, {vS0}' for t in (1,2,3)] + [f's_and_b32 {sx}, {sW}, 2', f's_lshl_b32 {sx}, {sx}, 5', f'v_add_u32 v{tmp}, {sx}, {vR4}']
        def xread2(ps, tmp):
            L = [f'ds_read_b32 v{tmp}, v{tmp} offset:{1024+ST_RSTD+ps*128}']
            for t in (1,2): L += [f'ds_read_b128 {vr(ACC[ps]+8*t+4*sl)}, v{tmp+t} offset:{ps*8192+t*2048+sl*1024}' for sl in (0,1)]
            L += [f'ds_read_b128 {vr(ACC[ps]+24+4*sl)}, v{tmp+3} offset:{ps*8192+3*2048+sl*1024}' for sl in (0,1)]
            return L
        def xsum(ps, tmp):
            ac = ACC[ps]; L = []
            for i in range(8): L.append(f'v_add_f32 v{ac+i}, v{ac+i}, v{ac+8+i}')
            for i in range(8): L.append(f'v_add_f32 v{ac+16+i}, v{ac+16+i}, v{ac+24+i}')
            for i in range(8): L.append(f'v_add_f32 v{ac+i}, v{ac+i}, v{ac+16+i}')
            for i in range(8): L.append(f'v_fma_f32 v{RES+8*ps+i}, {"-" if l == 0 else ""}v{ac+i}, v{tmp}, v{RES+8*ps+i}')
            return L
        def publish(ps, dot, sx):
            ac = ACC[ps]
            if l == 0: return s.x_pub(0, 1, ps, ac+8, f'v{ac+12}', f'v{ac+13}', nxt, ('pub', ps), dot, sx)
            r = RES + 8*ps
            return [f'v_cvt_pk_bf16_f32 v{ac+8+i}, v{r+2*i}, v{r+2*i+1}' for i in range(4)] + [
                f'v_bfe_u32 v{ac+12}, {vL16}, 4, 4', f'v_lshrrev_b32 v{ac+13}, 8, {vL16}', f'v_lshlrev_b32 v{ac+12}, 10, v{ac+12}',
                f'v_lshl_add_u32 v{ac+12}, v{ac+13}, 4, v{ac+12}', f's_add_u32 {sx}, {sOutO}, {ps*32768}',
                f'buffer_store_dwordx4 {vr(ac+8)}, v{ac+12}, {SOUT}, {sx} offen' + (' sc1' if s.o('osc', 0) else '')]
        mf = []; pin = {}; q = []; rds = []
        for n in range(22):
            ps, i = divmod(n, 11); r = AR + 8*(n % NA); grp = []
            for c in range(4):
                for t2 in range(2):
                    ac = ACC[ps] + 16*t2 + 4*c
                    grp.append(f'{MF} {vr(ac)}, {vr(breg(n)+4*c)}, {vr(r+4*t2)}, {"0" if i==0 else vr(ac)} ; ?v{r+4*t2}=h{l}_{n} ?v{breg(n)+4*c}={"held"+str(l) if i == 0 else f"b{l}_{n}"}')
            if n == 21: grp = [grp[k] for k in (4, 5, 6, 7, 1, 3, 0, 2)]
            mf += grp
            if n+1 < 22: rds.append(Stream(bread(n+1), 8*n, deadline=8*(n+1)))
        def hchk(n):
            ps, i = divmod(n, 11); r = AR + 8*(n % NA)
            if l == 0:
                c = [f'v_bitop3_b32 {vP}, v{r}, v{r+2}, v{r+4} bitop3:0x80',
                     f'v_bitop3_b32 {vP}, {vP}, v{r+6}, {sM5} bitop3:0xea' if i == 5 else f'v_and_b32 {vP}, {vP}, v{r+6}',
                     f'v_cmp_le_i32 vcc, 0, {vP}']
            else:
                c = [f'v_or3_b32 {vP}, v{r}, v{r+2}, v{r+4}', f'v_or_b32 {vP}, {vP}, v{r+6}', f'v_cmp_gt_i32 vcc, 0, {vP}']
            def br():
                with a.rare(None, 's_cbranch_vccnz'):
                    lb = a.label('Lhv'); a.raw(f'{lb}:'); s.spin_guard()
                    s.run(s.aload(l, n, sT0, sT1, True)); a.waitall(lg=False); s.run(c)
                    a.raw(f's_cbranch_vccnz {lb}')
            return c, br
        for n in range(nA, 22):
            for i in (8, 9, 10):
                if n == i - 2 and i not in w2 and not (l == 1 and s.o('x_nos10', 0)): q += s.w2_dma(i, w2)
            if l == 0 and n == 6: q += [lambda: a.wait(st[('hs',3)]), s.flag_st(0, 2, 0)]
            if l == 0 and n == 9: q.append(s.poll_ld(0, 2, 0))
            if l == 0 and n == 11: q.append(lambda: s.poll_check(0, 2, 0))
            if l == 0 and s.o('tq4', 0) and n in (12, 17): q += s.tq((n-12)//5)
            q.append(At(max(0, 8*(n-NA+1))))
            if not (l == 1 and s.o('x_nold', 0)): q += s.aload(l, n) + [By(max(0, 8*n - 10))]
        if l == 1: c, br = hchk(0); s.run(c); br()
        for n in range(1, 22):
            c, br = hchk(n)
            if l == 1 and s.o('x_nochk', 0): c = ['s_nop 0', 's_nop 0', 's_nop 0']; br = lambda: None
            if l == 1: pin.setdefault(8*n-5, []).extend(c[:2]); pin.setdefault(8*n-4, []).append(c[2]); pin.setdefault(8*n-s.o('brg', 2), []).insert(0, br)
            def wb(n, lo):
                def f():
                    regs = set(regs_of(vr(breg(n)+lo, 8)))
                    a.wait(*[e for e in a.q['lg'] if not e.done and (e.defs & regs)])
                f.pre = True
                return f
            br.pre = True
            pin.setdefault(8*n-1, []).insert(0, wb(n, 0)); pin.setdefault(8*n+2, []).insert(0, wb(n, 8))
        if l == 0 and s.o('tsm', 1): q += s.touch_kv1(1, 190) + (s.touch_kv2(1, 189) if s.o('tkv2', 0) else [])
        TM = HELD
        xw = xwrite(0); xw[-1] = Nm(xw[-1], nxt, 'xw')
        red = [At(8*12)] + xread(0, TM, sV0) + [At(8*13)] + xw[:2] + [At(8*14)] + xw[2:]
        GB = 8*14+7
        redS = Stream(red, 0, deadline=GB)
        pin.setdefault(GB, []).append(s.barrier(lambda: nxt['xw']) if not (l == 1 and s.o('x_nobar', 0)) else (lambda: None))
        red2 = Stream(xread2(0, TM), GB, deadline=8*16)
        red3 = Stream(xsum(0, TM) + publish(0, False, sV0) + xread(1, TM+4, sV0), 8*15+6)
        if l == 1 and s.o('wb', 0):
            def wbl():
                with a.skip_if(f's_lshr_b32 {sT0}, s2, 3\n s_or_b32 {sT0}, {sT0}, {sW}\n s_cmp_lg_u32 {sT0}, 0', 's_cbranch_scc1'): a.e('buffer_wbl2 sc1')
            pin.setdefault(s.o('wb', 0), []).append(wbl)
        for n in (0, 2, 5, 8, 11, 14, 17): pin.setdefault(8*n+7, []).append(s.F('P4'))
        left = sched(a, mf, pin, rds + [red2, Stream(q, 0, pace=s.o('pace4', 2))], [redS, red3]); s.lefts.append(left)
        s.stamp(11); s.fs('P4')
        xw1 = xwrite(1); s.run([xw1[k] for k in (0, 4, 1, 5, 2, 3)])
        a.waitall(vm=False); a.raw('s_barrier')
        s.fs('P4')
        s.run(xread2(1, TM+4))
        ac = ACC[1]
        tail = [f'v_pk_add_f32 {vr(ac+i,2)}, {vr(ac+i,2)}, {vr(ac+8+i,2)}' for i in range(0, 8, 2)]
        tail += [f'v_pk_add_f32 {vr(ac+16+i,2)}, {vr(ac+16+i,2)}, {vr(ac+24+i,2)}' for i in range(0, 8, 2)]
        tail += [f'v_pk_add_f32 {vr(ac+i,2)}, {vr(ac+i,2)}, {vr(ac+16+i,2)}' for i in range(0, 8, 2)]
        tail += [f'v_pk_fma_f32 {vr(RES+8+i,2)}, {vr(ac+i,2)}, {vr(TM+4,2)}, {vr(RES+8+i,2)} op_sel_hi:[1,0,1]' + (' neg_lo:[1,0,0] neg_hi:[1,0,0]' if l == 0 else '') for i in range(0, 8, 2)]
        tail += publish(1, True, sT0)
        if l == 0:
            d = Stream(s.tile_dma(s.bX2(), 0, nxt, sU0, LB) + s.stats_ld(0, 1, 0, 120, sU1) + s.tile_dma(s.bX2(), 1, nxt, sU0, LB)).items
            k = 0
            for n, it in enumerate(tail):
                if n % 4 == 0 and n < 24:
                    while k < len(d):
                        t = d[k].text if isinstance(d[k], Nm) else d[k]
                        s.run([d[k]]); k += 1
                        if t.startswith('buffer'): break
                s.run([it])
            s.run(d[k:])
            s.wql = 1; nxt['wqpre'] = s.o('wqpre', 4); s.run(s.wq_loads(0, nxt['wqpre']))
        else: s.run(tail)
        s.fs('P4')
        return nxt

    def main(s, fast):
        a = s.a; s.sc = '' if fast else ' sc1'; s.nfs = 0; s.pl = {}
        s.lc = '' if (fast and s.o('plainl', 0)) else ' sc1'; s.wc = '' if s.o('plainw', 0) else ' sc1'
        prev = {}
        s.l = 0
        s.kv_publish(0, 96, 88, 92)
        if not fast:
            for i in range(4): a.e(f'v_mov_b32 v{32+i}, 0')
            s.run(s.poison(32, ' sc1', 1)); a.waitall(); a.raw('s_barrier')
        for l in range(2):
            s.l = l
            if l == 1 and s.o('x_sc', 0): s.sc = ' sc1'
            st = s.P1(l, prev) if l else dict(s.st0)
            s.stamp(2)
            if s.stop == 'P1': break
            st = s.Q(l, st)
            if s.stop == 'Q': break
            st = s.P2(l, st)
            if s.stop == 'P2': break
            st = s.P3(l, st)
            if s.stop == 'P3': break
            prev = s.P4(l, st); s.stamp(12)
            if s.stop == 'P4': break
        a.q = {'vm': [], 'lg': []}
        a.raw('s_branch Lfin')

    def build(s):
        a = s.a
        s.sc = ''; s.lc = ' sc1'; s.wc = ' sc1'; s.pl = {}
        s.startup()
        import copy
        q0 = {k: list(v) for k, v in a.q.items()}; tg0 = dict(a.tags)
        s.main(True)
        a.ins += a.cold; a.cold = []
        a.raw('Lslow:')
        a.q = {k: list(v) for k, v in q0.items()}; a.tags = tg0
        for k in a.q:
            for e in a.q[k]: e.done = False
        s.main(False)
        a.raw('Lfin:')
        a.e(f's_or_b32 {sT0}, s2, {sW}')
        with a.skip_if(f's_cmp_lg_u32 {sT0}, 0', 's_cbranch_scc1'):
            a.e(f'buffer_store_dword {vTag}, {vFlagOff}, {SWS}, 0 offen sc1')
        if s.prof:
            a.raw('s_waitcnt vmcnt(0)')
            a.raw(f's_memrealtime s[74:75]'); a.raw('s_waitcnt lgkmcnt(0)')
            if not s.kw.get('fine'):
                a.e(f's_mov_b32 s{sPR+25}, s74')
                a.raw(f's_memtime s[74:75]'); a.raw('s_waitcnt lgkmcnt(0)'); a.e(f's_sub_u32 s{sPR+13}, s74, s23')
            a.e(f's_lshl_b32 {sT0}, s2, 2\n s_add_u32 {sT0}, {sT0}, {sW}\n s_lshl_b32 {sT0}, {sT0}, 7\n s_add_u32 {sT0}, {sT0}, {PROF}')
            for i in range(26):
                a.e(f'v_mov_b32 v32, s{sPR+i}')
                a.e(f'buffer_store_dword v32, {vFlagOff}, {SWS}, {sT0} offen offset:{4*i}')
        a.raw('Lbail:'); a.raw('Lend:'); a.raw('s_endpgm'); a.ins += a.cold
        hdr = open('interleave_layers__linear_attn_block__dense_activation_relu__prompt.s.ref').read().split('\n')
        top = [l for l in hdr if l.startswith(';') and '@launch' not in l]
        txt = '\n'.join(top) + f'\n; @launch grid=(256,1,1) block=(256,1,1) lds={LDSZ}\n'
        txt += f'.amdgcn_target "amdgcn-amd-amdhsa--gfx950"\n.text\n.globl {KNAME}\n.p2align 8\n.type {KNAME},@function\n{KNAME}:\n'
        txt += a.text()
        txt += f'''.section .rodata,"a"
.p2align 6
.amdhsa_kernel {KNAME}
  .amdhsa_next_free_vgpr 512
  .amdhsa_next_free_sgpr 102
  .amdhsa_accum_offset 256
  .amdhsa_group_segment_fixed_size 0
  .amdhsa_kernarg_size 72
  .amdhsa_user_sgpr_count 2
  .amdhsa_user_sgpr_kernarg_segment_ptr 1
  .amdhsa_system_sgpr_workgroup_id_x 1
.end_amdhsa_kernel
'''
        return txt


if __name__ == '__main__':
    import argparse
    p = argparse.ArgumentParser(); p.add_argument('-o', default='k.s'); p.add_argument('--prof', action='store_true'); p.add_argument('--stop'); p.add_argument('--force'); p.add_argument('--opts', default='')
    x = p.parse_args()
    kw = dict(kv.split('=') for kv in x.opts.split(',') if kv)
    g = G(x.prof, x.stop, x.force, **kw)
    open(x.o, 'w').write(g.build())
    print('forced', getattr(g.a, 'forced', 0), 'left', g.lefts)
```

```python
import sys, math, struct
sys.path.insert(0, 'dev')
from asmlib import *
KNAME = "interleave_layers__linear_attn_block__dense_activation_relu__prompt_kernel"
EPOCH=0x0; XF=0x1000; PF=0x2000
KV1=0x200000; KV2=0x400000
WQF=0x500000; WOF=0x510000; W1F=0x600000; W2F=0x800000
W2S=43*4096
GA0=0x1000000; GAS=0x100000
A_O=0x00000; A_X1=0x20000; A_X2=0x40000; A_H=0x50000; A_HL=0x30000; A_ST=0xB0000; A_FL=0xB8000; A_JUNK=0xC0000
HRT=43*1024
PROF=0x4000000
LA=0; LB=0x10000; LC=0x20000; MISC=0x27000; LDSZ=0x28000
ST_RSTD=0; ST_NB=256; ST_RL=512; ST_NM=768
CSW1=2048; CSQ=2816
SWS='s[4:7]'; SOUT='s[8:11]'; SX='s[12:15]'; SQ='s[16:19]'; SP='s[20:23]'
sW,sM,sG,sXC,sJ,sT = 's24','s25','s26','s27','s28','s29'
sT0,sT1,sT2,sT3 = 's31','s3','s0','s1'
sU0,sU1 = 's30','s51'
sV0,sV1 = 's35','s36'
sGA='s32'; sFL='s33'; sFLme='s34'; sGW='s37'; sGO='s38'; sKV1='s39'; sKV2='s40'
sW4='s41'; sOW='s42'; sXme='s43'; sSTme='s44'
sOnes='s45'; sLo='s46'; sHi='s47'; sDelta='s48'; sLn2='s49'; sLog2e='s50'
sOdd='s[52:53]'; sAcc='s[54:55]'; sCm='s[56:57]'
sHst='s58'; sHst2='s59'; sHe='s60'; sHl='s61'; sW2e='s62'; sW2l='s63'
sA0='s64'; sA1='s65'; sSpin='s66'; sOme='s67'; sW2e2='s68'; sW2l2='s69'; sOutO='s70'; sWQ='s71'; sW1='s72'; sHd='s73'
sTch='s12'; sWQm='s13'; sW2m='s14'; sH5='s15'; sH6='s20'; sW26='s21'; sW262='s22'; sCb='s16'
sNeg='s17'; sM5='s18'; sSTw='s19'
sPdst='s64'; sPstr='s65'; sPmode='s35'; sPi='s36'; sPsrc='s58'; sPstep='s59'; sJ4='s33'; sGWr='s34'; sFm='s18'; sJr='s67'; sPF='s101'; sCs='s98'; sCl='s99'; sXt='s100'; sR='s79'; sXFa='s78'
def RX(l): return LA if l == 0 else LB
def RW(l): return LB if l == 0 else LA
sPR=76
vL16,vG16,vR4,vFl,vFlagOff,vTag,vStatLd,vStatSt,vStatW,vO8 = [f'v{i}' for i in range(0,10)]
vCsk,vCsv='v10','v11'; vT32='v6'; JUNK=MISC+3584
RES=12
vS0,vS1,vS2,vP='v28','v29','v30','v31'
WV=192; WK=192
XA=116
def vr(b,n=4): return f'v[{b}:{b+n-1}]'
def ar(b,n=4): return f'a[{b}:{b+n-1}]'
MF='v_mfma_f32_16x16x32_bf16'; MF16='v_mfma_f32_16x16x16_bf16'
def f2u(x): return struct.unpack('<I', struct.pack('<f', x))[0]
DPPF='row_mask:0xf bank_mask:0xf'

class G:
    def __init__(s, prof=False, stop=None, force=None, **kw):
        s.a = Asm(); s.prof = prof; s.stop = stop; s.force = force; s.kw = kw; s.nfs = 0; s.l = 0; s.lefts = []
        s.a.notags = bool(s.o('x_nold', 0))
        s.nt1 = ' nt' if s.o('nt1', 0) else ''; s.nt0 = ' nt' if s.o('nt0', 0) else ''
    def o(s, k, d): return int(s.kw.get(k, d))
    def bO(s, l): return A_O + (0 if s.o('alias', 1) else l*0x10000)
    def bX1(s, l): return A_X1 + (0 if s.o('alias', 1) else l*0x10000)
    def bX2(s): return A_X1 if s.o('alias', 1) else A_X2
    def bH(s, l): return A_H + (0 if s.o('alias', 1) else l*A_HL)
    def bST(s, l, kind): return A_ST + (0 if s.o('alias', 1) else kind*8192 + l*16384)
    def bKV1(s, l): return l*0x100000
    def fs(s, ph):
        if s.kw.get('fine') != ph or (ph != 'S' and s.l != s.o('fl', 1)): return
        k = s.nfs; s.nfs += 1
        assert k < 13
        if ph == 'S':
            s.a.raw('s_memrealtime s[74:75]' if s.o('rt', 0) else 's_memtime s[74:75]'); s.a.waitall(vm=False); s.a.e(f'v_writelane_b32 v30, s74, {2*k}'); return
        s.a.raw(f's_memtime s[{sPR+2*k}:{sPR+2*k+1}]')
    def F(s, ph): return lambda: s.fs(ph)
    def stamp(s, idx):
        if not s.prof or s.kw.get('fine'): return
        a = s.a
        if s.o('spins', 0):
            a.e(f's_mov_b32 s{sPR+idx+(12*s.l if idx >= 2 else 0)}, {sSpin}'); return
        a.raw(f's_memrealtime s[74:75]'); a.waitall(vm=False)
        if idx < 2:
            a.e(f's_mov_b32 s{sPR+idx}, s74')
            a.raw(f's_memtime s[74:75]'); a.waitall(vm=False); a.e('s_mov_b32 s23, s74')
        else: a.e(f's_mov_b32 s{sPR+idx+12*s.l}, s74')
    def spin_guard(s):
        s.a.e(f's_sub_u32 {sSpin}, {sSpin}, 1'); s.a.raw('s_cbranch_scc1 Lbail')
    def floff(s, l, hop, half): return l*1024 + hop*256 + half*128
    def poll_ld(s, l, hop, half): return Nm(f'buffer_load_dword {vP}, {vFl}, {SWS}, {sGW} offen offset:{hop*128} sc1', s.pl, (l,hop,half))
    def poll_check(s, l, hop, half):
        a = s.a
        assert list(s.pl)[-1] == (l,hop,half), (list(s.pl), l, hop, half)
        a.e(f'v_cmp_ne_u32 vcc, {sT}, {vP}')
        with a.rare(None, 's_cbranch_vccnz'):
            lb = a.label('Lpoll'); a.raw(f'{lb}:'); s.spin_guard()
            a.e(s.poll_ld(l, hop, half).text); a.waitall(lg=False)
            a.e(f'v_cmp_ne_u32 vcc, {sT}, {vP}'); a.raw(f's_cbranch_vccnz {lb}')
    def flag_st(s, l, hop, half): return f'buffer_store_dword {vTag}, {vFlagOff}, {SWS}, {sFm} offen offset:{hop*128}{s.sc}'
    def stats_fin(s, u, t0, t1, vaddr, off, d=None, key=None):
        last = f'ds_write_b32 {vaddr}, {t0} offset:{off+ST_RL}'
        return [f'v_mul_f32 {u}, 0x{f2u(-1/512):x}, {u}', f'v_mul_f32 {t0}, 0x{f2u(1/512):x}, {t0}',
                f'v_fma_f32 {t0}, -{u}, {u}, {t0}', f'ds_write_b32 {vaddr}, {u} offset:{off+ST_NM}', f'v_max_f32 {t0}, 0, {t0}', f'v_add_f32 {t0}, 0x{f2u(1e-5):x}, {t0}',
                f'v_rsq_f32 {t0}, {t0}', f'v_mul_f32 {t1}, {u}, {t0}',
                f'ds_write_b32 {vaddr}, {t0} offset:{off+ST_RSTD}', f'v_mul_f32 {t0}, {sLog2e}, {t0}',
                f'ds_write_b32 {vaddr}, {t1} offset:{off+ST_NB}', Nm(last, d, key) if d is not None else last]
    def stats_ld(s, l, kind, hf, b, st):
        return [f's_add_u32 {st}, {sSTw}, {s.bST(l,kind)+hf*4096}', f'buffer_load_dwordx4 {vr(b)}, {vL16}, {SWS}, {st} offen sc1']
    def stats_use(s, kind, hf, b, d, key):
        x, y, t = f'v{b}', f'v{b+1}', f'v{b+2}'
        L = [f'v_add_f32 {x}, v{b}, v{b+2}', f'v_add_f32 {y}, v{b+1}, v{b+3}', 's_nop 0']
        for m in ('quad_perm:[1,0,3,2]', 'quad_perm:[2,3,0,1]', 'row_half_mirror'):
            L += [f'v_add_f32_dpp {x}, {x}, {x} {m} {DPPF}', f'v_add_f32_dpp {y}, {y}, {y} {m} {DPPF}']
        return L + s.stats_fin(x, y, t, vStatW, (1-kind)*1024 + hf*128, d, key)
    def tile_dma(s, off, rt, d, st, reg, x2=False):
        L = [f's_add_u32 m0, {sW4}, {reg+rt*16384}', f's_add_u32 {st}, {sGWr}, {off+rt*16384}']
        if x2 and not s.o('rot1', 0): L = [L[0], f's_add_u32 {st}, {sGA}, m0', f's_add_u32 {st}, {st}, {(off-reg) & 0xffffffff}']
        L += [f'buffer_load_dwordx4 {vL16}, {SWS}, {st} offen offset:{i*1024}{s.lc} lds' for i in range(3)]
        L.append(Nm(f'buffer_load_dwordx4 {vL16}, {SWS}, {st} offen offset:3072{s.lc} lds', d, ('dma', rt)))
        return L
    def x_pub(s, l, kind, hf, pk, t0, t1, d, key, usedot, st):
        r = RES + 8*hf
        L = [f'v_cvt_pk_bf16_f32 v{pk+i}, v{r+2*i}, v{r+2*i+1}' for i in range(4)]
        b = 1 - kind
        tag = lambda v: f'v_or_b32 {v}, 1, {v}' if b else f'v_and_b32 {v}, -2, {v}'
        L += [tag(f'v{pk}'), tag(f'v{pk+2}')]
        L.append(f's_add_u32 {st}, {sXme}, {(s.bX2() if kind else s.bX1(l)) + hf*32768}')
        L.append(f'buffer_store_dwordx4 {vr(pk)}, {vL16}, {SWS}, {st} offen{s.sc}')
        if usedot:
            L += [f'v_dot2_f32_bf16 {t0}, v{pk}, {sOnes}, 0', f'v_dot2_f32_bf16 {t1}, v{pk}, v{pk}, 0']
            for i in range(1,4): L += [f'v_dot2_f32_bf16 {t0}, v{pk+i}, {sOnes}, {t0}', f'v_dot2_f32_bf16 {t1}, v{pk+i}, v{pk+i}, {t1}']
        else:
            L += [f'v_add_f32 {t0}, v{r}, v{r+1}', f'v_mul_f32 {t1}, v{r}, v{r}', f'v_fmac_f32 {t1}, v{r+1}, v{r+1}']
            for i in range(2,8): L += [f'v_add_f32 {t0}, {t0}, v{r+i}', f'v_fmac_f32 {t1}, v{r+i}, v{r+i}']
        L.append(f's_add_u32 {st}, {sSTme}, {s.bST(l,kind)+hf*4096}')
        L += [f'v_permlane16_swap_b32 {t0}, {t1}', f'v_add_f32 {t0}, {t0}, {t1}', f'v_mov_b32 {t1}, {t0}',
              f'v_permlane32_swap_b32 {t0}, {t1}', f'v_add_f32 {t0}, {t0}, {t1}', tag(t0),
              Nm(f'buffer_store_dword {t0}, {vStatSt}, {SWS}, {st} offen{s.sc}', d, key)]
        return L
    def comb8(s, R, t, b):
        op = '0x80' if b else '0xfe'
        return [f'v_bitop3_b32 {R[0]}, {R[0]}, {R[1]}, {R[2]} bitop3:{op}', f'v_bitop3_b32 {R[3]}, {R[3]}, {R[4]}, {R[5]} bitop3:{op}',
                f'v_bitop3_b32 {R[0]}, {R[0]}, {R[3]}, {R[6]} bitop3:{op}', f'v_bitop3_b32 {R[0]}, {R[0]}, {R[7]}, 1 bitop3:{"0x80" if b else "0xa8"}',
                f'v_cmp_ne_u32 {sCm}, {b}, {R[0]}']
    def ver(s, mode, VB, off, b):
        if mode == 'b128':
            rd = [f'ds_read_b128 {vr(VB+4*i)}, {vS0} offset:{off+i*1024}' for i in range(4)]
            R = [f'v{VB+4*i+k}' for i in range(4) for k in (0, 2)]
        else:
            o = off // 256
            rd = [f'ds_read2st64_b32 {vr(VB+2*i,2)}, {(vS0,vS1)[i%2]} offset0:{o+8*(i//2)} offset1:{o+8*(i//2)+4}' for i in range(4)]
            R = [f'v{VB+i}' for i in range(8)]
        return rd, s.comb8(R, None, b)
    def ver_branch(s, dma, mode, VB, off, b):
        a = s.a
        with a.rare(f's_cmp_lg_u64 {sCm}, 0', 's_cbranch_scc1'):
            a.e(f's_mov_b32 {sT3}, m0')
            lb = a.label('Lver'); a.raw(f'{lb}:'); s.spin_guard()
            for it in dma: a.e(it.text if isinstance(it, Nm) else it)
            a.waitall(lg=False)
            rd, va = s.ver(mode, VB, off, b)
            s.run(rd + va)
            a.e(f's_nop 1\n s_cmp_lg_u64 {sCm}, 0'); a.raw(f's_cbranch_scc1 {lb}')
            a.e(f's_mov_b32 m0, {sT3}')
    def stats_chk(s, l, kind, hf, b):
        a = s.a; t = 1 - kind; x = vP
        chk = [f'v_bitop3_b32 {x}, v{b}, v{b+1}, v{b+2} bitop3:{"0x80" if t else "0xfe"}', f'v_bitop3_b32 {x}, {x}, v{b+3}, 1 bitop3:{"0x80" if t else "0xa8"}']
        def br():
            a.e(f'v_cmp_ne_u32 vcc, {t}, {x}')
            with a.rare(None, 's_cbranch_vccnz'):
                lb = a.label('Lstc'); a.raw(f'{lb}:'); s.spin_guard()
                s.run(s.stats_ld(l, kind, hf, b, sT0)); a.waitall(lg=False); s.run(chk)
                a.e(f'v_cmp_ne_u32 vcc, {t}, {x}'); a.raw(f's_cbranch_vccnz {lb}')
        return chk + [br]
    def poison(s, z, sc, part=3, t0=sT0, t1=sT1):
        x = f'buffer_store_dwordx4 {vr(z)}, {vL16}, {SWS}, {t0} offen{sc}'
        L = []
        if part & 1:
            L += [f's_and_b32 {t1}, {sW}, 1', f's_lshl_b32 {t1}, {t1}, 15', f's_add_u32 {t0}, {sOme}, {t1}', x, f's_add_u32 {t0}, {t0}, 16384', x,
                  f's_add_u32 {t0}, {sXme}, {A_X1}', x, f's_add_u32 {t0}, {sXme}, {A_X1+32768}', x]
            for hf in range(2): L += [f's_add_u32 {t0}, {sSTme}, {A_ST+hf*4096}', f'buffer_store_dword v{z}, {vStatSt}, {SWS}, {t0} offen{sc}']
        if part & 2:
            for rt in range(4): L += [f's_add_u32 {t0}, {sHst}, {A_H+rt*HRT}', x]
            L += [f's_and_b32 {t1}, {sW}, 1', f's_mul_i32 {t1}, {t1}, {2*HRT}', f's_add_u32 {t0}, {sHst2}, {t1}', f's_add_u32 {t0}, {t0}, {A_H}', x, f's_add_u32 {t0}, {t0}, {HRT}', x]
        return L
    def run(s, L):
        for it in L:
            if isinstance(it, Nm): it.d[it.key] = s.a.e(it.text)
            elif isinstance(it, (At, By)): pass
            elif callable(it): it()
            else: s.a.e(it)
    def wq_loads(s, lo=0, hi=16):
        L = []
        for ks in range(lo, hi):
            if ks % 4 == 0 or ks == lo: L += ([f's_add_u32 {sU0}, {sJ4}, {(ks//4)*4096}', f's_and_b32 {sU0}, {sU0}, 0x3fff', f's_add_u32 {sU0}, {sU0}, {sWQ}'] if s.o('rot1', 0) else [f's_add_u32 {sU0}, {sWQ}, {(ks//4)*4096}'])
            L.append(f'buffer_load_dwordx4 {vr(128+4*ks)}, {vL16}, {SWS}, {sU0} offen offset:{(ks%4)*1024}{s.wc} ; @wq{s.wql}')
        return L
    def wo_dma(s, d, lo=0, hi=4):
        if s.l == 1 and s.o('x_nowo', 0): return [Nm('ds_read_b32 v31, v0', d, 'wo')]
        L = []
        for i in range(lo, hi):
            L += [f's_add_u32 {sU1}, {sJ4}, {i*4096}', f's_and_b32 {sU1}, {sU1}, 0x3fff', f's_lshl_b32 {sU0}, {sW4}, 2', f's_add_u32 {sU0}, {sU0}, {sU1}',
                  f's_add_u32 m0, {sU0}, {RW(s.wql)}', f's_add_u32 {sU0}, {sWQ}, {sU1}', f's_add_u32 {sU0}, {sU0}, {WOF-WQF}']
            L += [f'buffer_load_dwordx4 {vL16}, {SWS}, {sU0} offen offset:{k*1024}{s.wc} lds' for k in range(4)]
        if L: L[-1] = Nm(L[-1], d, 'wo')
        return L
    def w1_loads(s, lo, hi):
        L = []
        for n in range(lo, hi):
            kq, r = divmod(n, 12); slot, k4 = divmod(r, 4); ks = 4*kq + k4
            if ks % 4 == 0 or n == lo:
                L += [f's_add_u32 {sU1}, {sJ4}, {(ks//4)*4096}', f's_and_b32 {sU1}, {sU1}, 0x3fff', f's_lshl_b32 {sU0}, {sW4}, {3 if slot < 2 else 2}',
                      f's_add_u32 {sU0}, {sU0}, {sU1}', f's_add_u32 {sU0}, {sU0}, {sW1}', f's_add_u32 {sU0}, {sU0}, {(slot if slot < 2 else 8)*16384}']
            L.append(f'buffer_load_dwordx4 {ar(64*slot+4*ks)}, {vL16}, {SWS}, {sU0} offen offset:{(ks%4)*1024}{s.wc}{s.nt1} ; @w1')
        return L
    def w2_dma(s, i, d):
        if s.l == 1 and s.o('x_now2', 0): return [Nm('ds_read_b32 v31, v0', d, i)]
        if i <= 4:   m = [f's_lshl_b32 {sU0}, {sW4}, 2', f's_add_u32 m0, {sU0}, {RX(s.l)+(i-1)*4096}']
        elif i <= 6: m = [f's_add_u32 m0, {sCb}, {(i-5)*4096}']
        else:        m = [f's_add_u32 m0, {sW4}, {RW(s.l)+(i-7)*16384}']
        b1, b2, o = (sW2e, sW2e2, i*4096) if i <= 5 else ((sW26, sW262, 0) if i == 6 else (sW2l, sW2l2, (i-7)*4096))
        x = f'buffer_load_dwordx4 {vL16}, {SWS}, '
        return m + [f's_add_u32 {sU0}, {b1}, {o}', f's_add_u32 {sU1}, {b2}, {o}', x+f'{sU0} offen{s.wc} lds', x+f'{sU0} offen offset:1024{s.wc} lds',
                    x+f'{sU1} offen offset:2048{s.wc} lds', Nm(x+f'{sU1} offen offset:3072{s.wc} lds', d, i)]
    def touch(s, base_s, off, junk, lim=None, nt=''):
        L = [f's_add_u32 {sU0}, {sTch}, {base_s}', f's_add_u32 {sU0}, {sU0}, {off}']
        if lim is not None: L.append(f's_cmp_ge_u32 {sTch}, {lim*8192}\ns_cselect_b32 {sU0}, 0x40000000, {sU0}')
        L = [lambda L=L: s.run(L)]
        return L + [f'v_lshlrev_b32 v{junk}, 3, {vL16}', f'buffer_load_dword v{junk}, v{junk}, {SWS}, {sU0} offen{s.wc}{nt}']
    def t4(s, base_s, off, k, npieces):
        L = [f's_add_u32 {sU0}, {sTch}, {base_s}', f's_add_u32 {sU0}, {sU0}, {off + k*65536}', f's_mov_b32 m0, {JUNK}']
        if 16*k + 16 > npieces:
            L = [lambda L=L: s.run(L + [f's_cmp_ge_u32 {sTch}, {(npieces-16*k)*4096}', f's_cselect_b32 {sU0}, 0x40000000, {sU0}'])]
        return L + [f'buffer_load_dword {vT32}, {SWS}, {sU0} offen lds']
    def tq(s, k): return s.t4(sWQm, WQF, k, 32)
    def t1(s, k): return s.t4(sW1, 0, k, 48)
    def t2(s, k): return s.t4(sW2m, 0, k, 43)
    def touch_s(s, setup, junk):
        return [lambda: s.run(setup + [f's_mov_b32 m0, {JUNK}']), f'v_lshlrev_b32 {vP}, 3, {vL16}', f'buffer_load_dword {vP}, {SWS}, {sU0} offen lds']
    def touch_oxs(s, junk):
        return s.touch_s([f's_lshl_b32 {sU0}, {sM}, 13', f's_add_u32 {sU0}, {sU0}, {sGA}', f's_cmp_eq_u32 {sW}, 1', f's_cselect_b32 {sU1}, {A_X1}, 0',
                          f's_cmp_eq_u32 {sW}, 2', f's_cselect_b32 {sU1}, {A_ST}, {sU1}', f's_add_u32 {sU0}, {sU0}, {sU1}',
                          f's_cmp_ge_u32 {sM}, 2', f's_cselect_b32 {sU1}, 2, 9', f's_cmp_eq_u32 {sW}, {sU1}', f's_cselect_b32 {sU0}, 0x40000000, {sU0}',
                          f's_cmp_eq_u32 {sW}, 3', f's_cselect_b32 {sU0}, 0x40000000, {sU0}'], junk)
    def touch_h(s, junk):
        return s.touch_s([f's_lshl_b32 {sU0}, {sW}, 3', f's_add_u32 {sU0}, {sU0}, {sM}', f's_cmp_ge_u32 {sU0}, 22', f's_cselect_b32 {sU1}, 0x40000000, {sGA}',
                          f's_lshl_b32 {sU0}, {sU0}, 13', f's_add_u32 {sU0}, {sU0}, {sU1}', f's_add_u32 {sU0}, {sU0}, {A_H}'], junk)
    def touch_small(s, junk):
        return [f'v_lshlrev_b32 v{junk}, 5, {vFl}', f'v_cmp_gt_u32 vcc, 64, {vFl}', f's_lshl_b32 {sU0}, {sW}, 11', f's_add_u32 {sU0}, {sU0}, {A_ST-2048}',
                f'v_mov_b32 v{junk+1}, {sU0}', f'v_mov_b32 v{junk+2}, {A_FL}', f'v_cndmask_b32 v{junk+1}, v{junk+1}, v{junk+2}, vcc', f'v_add_u32 v{junk}, v{junk}, v{junk+1}',
                f'buffer_load_dword v{junk}, v{junk}, {SWS}, {sGA} offen sc1']
    def touch_kv2(s, l, junk):
        return s.touch_s([f's_add_u32 {sU0}, {sKV2}, {l*0x40000}'], junk)
    def touch_kv1(s, l, junk):
        return [lambda: s.run([f's_add_u32 {sU0}, {sKV1}, {l*0x100000}', f's_cmp_lg_u32 {sW}, {sJ}', f's_cselect_b32 {sU0}, 0x40000000, {sU0}', f's_mov_b32 m0, {JUNK}']),
                f'buffer_load_dword {vT32}, {SWS}, {sU0} offen lds']
    def held(s, HELD=176):
        return [f'buffer_load_dwordx4 {vr(HELD)}, {vL16}, {SWS}, {sW2e} offen{s.wc} ; @held{s.l}', f'buffer_load_dwordx4 {vr(HELD+4)}, {vL16}, {SWS}, {sW2e} offen offset:1024{s.wc} ; @held{s.l}',
                f'buffer_load_dwordx4 {vr(HELD+8)}, {vL16}, {SWS}, {sW2e2} offen offset:2048{s.wc} ; @held{s.l}', f'buffer_load_dwordx4 {vr(HELD+12)}, {vL16}, {SWS}, {sW2e2} offen offset:3072{s.wc} ; @held{s.l}']
    def colsum_w1(s, slot, CS, ONES):
        return [f'{MF} {vr(CS+4*slot)}, {ar(64*slot+4*ks)}, {vr(ONES)}, {"0" if ks==0 else vr(CS+4*slot)}' for ks in range(16)]

    def startup(s):
        a = s.a
        t2, t3 = 's54', 's55'
        a.e('s_cmp_ge_u32 s2, 256'); a.raw('s_cbranch_scc1 Lend')
        s.fs('S')
        a.raw('s_load_dwordx16 s[80:95], s[0:1], 0'); a.raw('s_load_dwordx2 s[96:97], s[0:1], 64')
        if s.prof: a.raw(f's_memrealtime s[74:75]')
        a.e(f's_getpc_b64 s[62:63]'); a.raw('Lpc0:')
        a.e(f"""s_lshr_b32 {sR}, s2, 3
            v_lshlrev_b32 v32, 4, v0
            s_lshl_b32 {sT1}, {sR}, 12
            s_and_b32 s62, s62, -16
            s_cmp_lt_u32 {sT1}, Lslow-Lpc0
            s_cselect_b32 {sT1}, {sT1}, 0
            v_add_u32 v32, {sT1}, v32
            global_load_dwordx4 v[144:147], v32, s[62:63]
            v_lshrrev_b32 v32, 6, v0
            v_and_b32 v33, 63, v0
            v_readfirstlane_b32 {sW}, v32
            s_and_b32 {sXC}, s2, 7
            s_lshr_b32 {sJ}, {sR}, 3
            s_and_b32 {sM}, {sR}, 7
            s_lshl_b32 {sG}, {sXC}, 2
            s_add_u32 {sG}, {sG}, {sJ}
            v_lshrrev_b32 v34, 4, v33
            v_and_b32 v35, 15, v33
            v_lshrrev_b32 v36, 3, v33
            v_and_b32 v37, 7, v33
            v_lshlrev_b32 v39, 7, v33
            v_min_u32 v38, 11, v35
            v_lshlrev_b32 v38, 7, v38
            v_and_b32 v42, 3, v33
            v_lshlrev_b32 v42, 7, v42
            v_xor_b32 v54, v34, v35
            v_lshlrev_b32 v54, 4, v54
            v_lshl_add_u32 v41, v34, 10, v54
            s_lshl_b32 s60, {sXC}, 18
            s_lshl_b32 s61, {sR}, 13
            s_add_u32 s60, s60, s61
            s_cmp_eq_u32 {sW}, 0
            s_cselect_b32 s60, s60, 0x40000000
            v_xor_b32 v45, 64, v41
            v_xor_b32 v46, 128, v41
            v_xor_b32 v47, 192, v41
            s_mov_b32 s63, 0
            s_lshl_b32 s61, s2, 2
            s_add_u32 s61, s61, {sW}
            s_lshr_b32 s62, s61, 1
            s_mul_i32 s62, s62, 3072
            s_lshl_b32 s59, s61, 9
            s_and_b32 s61, s61, 1
            s_mul_i32 s61, s61, 1536
            s_add_u32 s61, s62, s61
            s_mov_b32 s6, 0x10000000
            s_mov_b32 s7, 0x20000
            s_mov_b32 s22, 0x80000
            s_mov_b32 s23, 0x20000
            s_mov_b32 s18, 0x180000
            s_mov_b32 s19, 0x20000
            s_mov_b32 s14, 0x200000
            s_mov_b32 s15, 0x20000
            s_lshl_b32 s56, {sG}, 16
            s_lshl_b32 s57, {sW}, 14
            s_add_u32 s56, s56, s57
            s_mul_i32 {sCs}, {sW}, {8*3072}
            s_lshl_b32 {sT1}, {sM}, 7
            s_add_u32 {sCs}, {sCs}, {sT1}
            s_add_u32 {sCs}, {sCs}, 1024
            s_lshl_b32 {sCl}, {sW}, 10
            s_add_u32 {sCl}, {sCl}, {LB}
            v_bfe_u32 v40, v36, 1, 1
            s_and_b32 {sT1}, {sW}, 1
            s_lshl_b32 {sT0}, {sT1}, 1
            v_or_b32 v40, {sT0}, v40
            v_lshlrev_b32 v40, 1, v40
            v_xor_b32 v40, v40, v37
            v_lshlrev_b32 v40, 4, v40
            s_movk_i32 {sT0}, 3072
            v_mad_u32_u24 v40, v36, {sT0}, v40""")
        a.raw('s_waitcnt lgkmcnt(0)')
        if s.prof: a.e(f's_mov_b32 s{sPR}, s74')
        s.fs('S')
        D = {}
        def xq(q): return [[f's_add_u32 m0, s57, {q*4096+rq*1024}', f's_add_u32 {sU0}, s56, {rq*4096+q*256}',
                            f'buffer_load_dwordx4 {["v41","v45","v46","v47"][rq]}, {SX}, {sU0} offen lds'] for rq in range(4)]
        def chunk_dma(c):
            return [[f's_add_u32 m0, {sCl}, {(c%4)*16384 + t*4096}', f's_add_u32 {sU0}, {sCs}, {c*64*3072 + (t%2)*32*3072 + (t//2)*1024}',
                     Nm(f'buffer_load_dwordx4 v40, {SQ}, {sU0} offen lds', D, ('c', c))] for t in range(4)]
        a.e('s_mov_b32 s12, s80\n s_mov_b32 s13, s81\n s_mov_b32 s16, s82\n s_mov_b32 s17, s83')
        a.e(f'buffer_load_dword v141, v39, {SX}, s60 offen')
        a.e(f'buffer_load_dword v139, v38, {SQ}, s61 offen')
        a.e('s_mov_b32 s4, s96\n s_mov_b32 s5, s97\n s_mov_b32 s20, s84\n s_mov_b32 s21, s85')
        eE = a.e(f'buffer_load_dword v43, off, {SWS}, 0 sc1')
        s.run(sum(xq(0) + chunk_dma(0)[:s.o('s_c0', 2)], []))
        if s.o('s_two', 0): a.e(f'buffer_load_dword v138, v42, {SP}, s59 offen')
        s.fs('S')
        a.e(f"""s_mov_b32 s10, 0x200000
            s_mov_b32 s11, 0x20000
            v_lshlrev_b32 {vL16}, 4, v33
            s_lshl_b32 {sW4}, {sW}, 12
            s_lshl_b32 {sJ4}, {sJ}, 12
            v_mov_b32 v42, 0""")
        def groups(L):
            G = []; cur = []
            for x in Stream(L).items:
                cur.append(x); t = x.text if isinstance(x, Nm) else x
                if t.startswith('buffer'): G.append(cur); cur = []
            if cur: G[-1] += cur
            return G
        def mix(work, G, first=0):
            work = Stream(work).items; n = len(G); k = 0
            for idx, it in enumerate(work):
                while k < n and idx >= first + (len(work)-first)*k//n and not it.startswith('s_cselect'): s.run(G[k]); k += 1
                s.run([it])
            while k < n: s.run(G[k]); k += 1
        mix([f"""s_lshl_b32 {sGA}, {sG}, 20
            s_add_u32 {sGA}, {sGA}, {GA0}
            s_lshl_b32 {sT0}, {sM}, 2
            s_add_u32 {sT0}, {sT0}, {sW}
            s_lshl_b32 {sKV1}, {sXC}, 17
            s_lshl_b32 {sT1}, {sT0}, 12
            s_add_u32 {sKV1}, {sKV1}, {sT1}
            s_add_u32 {sKV1}, {sKV1}, {KV1}
            s_lshl_b32 {sKV2}, {sT0}, 13
            s_add_u32 {sKV2}, {sKV2}, {KV2}
            s_lshr_b32 {sT0}, {sW}, 1
            s_and_b32 {sT1}, {sW}, 1
            s_lshl_b32 {sOW}, {sT0}, 14
            s_lshl_b32 {t2}, {sM}, 1
            s_add_u32 {t2}, {t2}, {sT1}
            s_lshl_b32 {sXme}, {t2}, 10
            s_add_u32 {sXme}, {sXme}, {sOW}
            s_add_u32 {sXme}, {sXme}, {sGA}
            s_lshl_b32 {sSTme}, {sT0}, 11
            s_lshl_b32 {t3}, {t2}, 3
            s_add_u32 {sSTme}, {sSTme}, {t3}
            s_add_u32 {sSTme}, {sSTme}, {sGA}
            s_lshl_b32 {sOutO}, {sG}, 16
            s_add_u32 {sOutO}, {sOutO}, {sOW}
            s_lshl_b32 {t3}, {t2}, 6
            s_add_u32 {sOutO}, {sOutO}, {t3}
            v_lshl_add_u32 v{XA}, v35, 8, v54
            s_and_b32 {t3}, {t2}, 3
            s_lshl_b32 {t3}, {t3}, 6
            v_xor_b32 v55, {t3}, v{XA}
            s_lshr_b32 {t3}, {t2}, 2
            s_sub_u32 {t3}, {t3}, s63
            s_and_b32 {t3}, {t3}, 3
            s_lshl_b32 {t3}, {t3}, 12
            s_add_u32 {t3}, {t3}, {sOW}
            v_add_u32 v55, {t3}, v55
            s_lshl_b32 {t3}, {sT1}, 12
            s_add_u32 {sOW}, {sOW}, {t3}
            s_add_u32 {sGO}, {sGA}, {sOW}
            s_lshl_b32 {sOme}, {sM}, 1
            s_add_u32 {sOme}, {sOme}, {sT0}
            s_lshl_b32 {sOme}, {sOme}, 10
            s_add_u32 {sOme}, {sOme}, {sGA}
            v_mov_b32 v48, 0x40000000
            v_lshlrev_b32 v49, 2, v34
            v_lshl_add_u32 {vStatSt}, v35, 7, v49
            v_cmp_gt_u32 vcc, 32, v33
            v_cndmask_b32 {vStatSt}, v48, {vStatSt}, vcc
            v_cndmask_b32 {vT32}, v48, v39, vcc
            s_add_u32 {sGWr}, {sW4}, {sJ4}
            s_and_b32 {sGWr}, {sGWr}, 0x3fff
            s_add_u32 {sGWr}, {sGWr}, {sGA}
            s_mov_b32 s8, s92
            s_mov_b32 s9, s93
            v_xor_b32 v{XA+1}, 64, v{XA}
            v_xor_b32 v{XA+2}, 128, v{XA}
            v_xor_b32 v{XA+3}, 192, v{XA}
            s_and_b32 {sT1}, {sW}, 1
            v_lshlrev_b32 {vG16}, 4, v34
            v_add_u32 {vG16}, {MISC}, {vG16}
            v_lshlrev_b32 {vR4}, 2, v35
            v_add_u32 {vR4}, {MISC}, {vR4}
            v_and_b32 {vFl}, 31, v33
            v_lshlrev_b32 {vFl}, 2, {vFl}
            v_cmp_eq_u32 vcc, 0, v33
            s_lshl_b32 {sT0}, {sT1}, 3
            v_add_u32 {vO8}, {sT0}, {vL16}
            v_cndmask_b32 {vFlagOff}, v48, v42, vcc
            s_lshl_b32 {sT0}, {sW}, 3
            v_add_u32 {vStatW}, {sT0}, v36
            v_lshlrev_b32 {vStatW}, 2, {vStatW}
            v_add_u32 {vStatW}, {MISC}, {vStatW}
            v_lshrrev_b32 v50, 2, v35
            v_and_b32 v49, 3, v33
            v_lshl_add_u32 v51, v34, 3, v50
            v_lshlrev_b32 v51, 7, v51
            v_lshl_add_u32 v51, v49, 3, v51
            v_lshl_add_u32 v52, v34, 2, v50
            v_lshlrev_b32 v52, 7, v52
            v_lshl_add_u32 v52, v49, 4, v52
            s_add_u32 {sT0}, {sW4}, {LC}
            v_add_u32 v53, {sT0}, v51
            v_add_u32 v52, {sT0}, v52
            v_lshrrev_b32 v54, 1, v50
            v_and_b32 v56, 1, v34
            v_lshl_or_b32 v54, v56, 1, v54
            v_xor_b32 v54, {sW}, v54
            v_lshl_add_u32 v51, v54, 5, v51
            v_add_u32 v51, {LB}, v51
            s_mov_b32 {sOnes}, 0x3F803F80
            s_mov_b32 {sLo}, 0x00003F80
            s_mov_b32 {sHi}, 0x3F800000
            s_mov_b32 {sDelta}, 0x{f2u(1e-6*math.log2(math.e)):x}
            s_mov_b32 {sLn2}, 0x{f2u(math.log(2)):x}
            s_mov_b32 {sLog2e}, 0x{f2u(math.log2(math.e)):x}
            v_mov_b32 v112, {sOnes}
            v_mov_b32 v113, {sOnes}
            v_mov_b32 v114, {sOnes}
            v_mov_b32 v115, {sOnes}
            v_cmp_eq_u32 vcc, v34, v50
            s_lshl_b32 {sT0}, {sW}, 6
            v_add_u32 v54, {sT0}, {vR4}
            v_mov_b32 v56, {JUNK-768}
            v_cndmask_b32 v54, v56, v54, vcc"""], chunk_dma(0)[s.o('s_c0', 2):] + chunk_dma(1), 60)
        W = []
        a.e(f"""s_mul_i32 {sPi}, s2, 3
            s_add_u32 {sPi}, {sPi}, {sW}
            s_add_u32 {sPi}, {sPi}, 255
            s_cmp_eq_u32 {sW}, 0
            s_cselect_b32 {sPi}, s2, {sPi}
            s_and_b32 s63, {sPi}, 7
            s_lshr_b32 {sPi}, {sPi}, 3
            s_lshl_b32 s52, s63, 7""")
        la = [a.label('Lpp') for _ in range(4)]
        def arm(ptr, size, stride, body, dstride, mode):
            a.e(f's_mov_b32 s20, s{ptr}\n s_mov_b32 s21, s{ptr+1}\n s_mov_b32 s22, {size}\n s_movk_i32 s53, {stride}\n' + body + f'\n s_movk_i32 {sPstr}, {dstride}\n s_mov_b32 {sPmode}, {mode}')
        a.e(f's_cmp_lt_u32 {sPi}, 16'); a.raw(f's_cbranch_scc0 {la[0]}')
        arm(84, 0x80000, 1024, f's_mov_b32 s54, {sPi}\n s_lshl_b32 {sPdst}, s63, 17\n s_lshl_b32 s62, {sPi}, 12\n s_add_u32 {sPdst}, {sPdst}, s62\n s_add_u32 {sPdst}, {sPdst}, {WOF}', 1024, 1)
        a.raw(f's_branch {la[3]}'); a.raw(f'{la[0]}:')
        a.e(f's_cmp_lt_u32 {sPi}, 32'); a.raw(f's_cbranch_scc0 {la[1]}')
        arm(82, 0x180000, 3072, f's_sub_u32 s54, {sPi}, 16\n s_lshl_b32 {sPdst}, s63, 17\n s_lshl_b32 s62, s54, 10\n s_add_u32 {sPdst}, {sPdst}, s62\n s_add_u32 {sPdst}, {sPdst}, {WQF}', 16384, 0)
        a.raw(f's_branch {la[3]}'); a.raw(f'{la[1]}:')
        a.e(f's_cmp_lt_u32 {sPi}, 80'); a.raw(f's_cbranch_scc0 {la[2]}')
        arm(88, 512*1376*2, 2752, f"""s_sub_u32 s62, {sPi}, 32
            s_and_b32 s54, s62, 15
            s_lshr_b32 s62, s62, 4
            s_min_u32 s52, s63, 3
            s_mul_i32 s55, s63, 5
            s_add_u32 s52, s52, s55
            s_lshl_b32 s52, s52, 6
            s_lshl_b32 s55, s62, 7
            s_add_u32 s52, s52, s55
            s_mul_i32 {sPdst}, s63, {12*16384}
            s_lshl_b32 s62, s62, 16
            s_add_u32 {sPdst}, {sPdst}, s62
            s_lshl_b32 s62, s54, 10
            s_add_u32 {sPdst}, {sPdst}, s62
            s_add_u32 {sPdst}, {sPdst}, {W1F}""", 16384, 0)
        a.raw(f's_branch {la[3]}'); a.raw(f'{la[2]}:')
        arm(90, 512*1376*2, 1024, f's_sub_u32 s54, {sPi}, 80\n s_mul_i32 {sPdst}, s63, {W2S}\n s_lshl_b32 s62, s54, 12\n s_add_u32 {sPdst}, {sPdst}, s62\n s_add_u32 {sPdst}, {sPdst}, {W2F}', 1024, 1)
        a.raw(f'{la[3]}:')
        a.e(f"""v_mul_u32_u24 v44, s53, v36
            v_lshl_add_u32 v44, v37, 4, v44
            s_lshl_b32 s54, s54, 5
            s_mul_i32 {sPsrc}, s54, s53
            s_add_u32 {sPsrc}, {sPsrc}, s52
            s_lshl_b32 {sPstep}, s53, 3
            s_lshl_b32 {sPF}, s63, 9
            s_lshl_b32 {sT1}, {sPi}, 2
            s_add_u32 {sPF}, {sPF}, {sT1}
            s_add_u32 {sPF}, {sPF}, {PF}""")
        pld = [[f's_add_u32 m0, {sW4}, {LC+i*1024}', Nm(f'buffer_load_dwordx4 v44, {SP}, {sPsrc} offen nt lds', D, 'pld'), f's_add_u32 {sPsrc}, {sPsrc}, {sPstep}'] for i in range(4)]
        if s.o('s_pt', 0):
            a.e(f'v_mul_u32_u24 v46, s53, v33\n v_cmp_gt_u32 vcc, 32, v33\n v_mov_b32 v47, 0x40000000\n s_mov_b32 m0, {JUNK}\n v_cndmask_b32 v46, v47, v46, vcc')
            a.e(f'buffer_load_dword v46, {SP}, {sPsrc} offen lds')
        with a.skip_if(f's_cmp_lg_u32 {sW}, 0', 's_cbranch_scc1'):
            s.run(sum(pld, [])); eP = D['pld']
            a.e(f's_mov_b32 {sPsrc}, 0x40000000')
        mix([f"""s_lshr_b32 {sT1}, {sW}, 1
            s_mul_i32 {sT0}, {sW}, 11
            s_cmp_eq_u32 {sW}, 3
            s_cselect_b32 {sT2}, 6, 7
            s_add_u32 {sT2}, {sT2}, {sT0}
            s_mul_i32 {sT1}, {sT1}, {HRT}
            s_add_u32 {sT1}, {sT1}, {sGA}
            s_lshl_b32 {sHe}, {sT0}, 10
            s_add_u32 {sHe}, {sHe}, {sT1}
            s_lshl_b32 {sHl}, {sT2}, 10
            s_add_u32 {sHl}, {sHl}, {sT1}
            s_mul_i32 {sT1}, {sM}, {W2S}
            s_add_u32 {sT1}, {sT1}, {W2F}
            s_lshl_b32 {sW2e}, {sT0}, 12
            s_add_u32 {sW2e}, {sW2e}, {sT1}
            s_lshl_b32 {sW2l}, {sT2}, 12
            s_add_u32 {sW2l}, {sW2l}, {sT1}
            s_and_b32 {sT0}, {sW}, 1
            s_lshl_b32 {sT0}, {sT0}, 11
            s_sub_u32 {sW2e2}, {sW2e}, {sT0}
            s_add_u32 {sW2e}, {sW2e}, {sT0}
            s_sub_u32 {sW2l2}, {sW2l}, {sT0}
            s_add_u32 {sW2l}, {sW2l}, {sT0}
            s_lshl_b32 {sT0}, {sM}, 17
            s_lshl_b32 {sT1}, {sW}, 14
            s_add_u32 {sWQ}, {sT0}, {sT1}
            s_add_u32 {sWQ}, {sWQ}, {WQF}
            s_mul_i32 {sW1}, {sM}, {12*16384}
            s_add_u32 {sW1}, {sW1}, {W1F}
            s_lshl_b32 {sXFa}, {sXC}, 7
            s_add_u32 {sXFa}, {sXFa}, {XF}"""], xq(1)[:2])
        def prep(PB, stores=True, va='v53', vb='v52'):
            with a.skip_if(f's_cmp_eq_u32 {sPmode}, 1', 's_cbranch_scc1'):
                for c in range(4):
                    for hh in range(2): a.e(f'ds_read_b64_tr_b16 {ar(PB+4*c+2*hh,2)}, {va} offset:{hh*512+c*32}')
                a.waitall(vm=False)
            with a.skip_if(f's_cmp_eq_u32 {sPmode}, 1', 's_cbranch_scc0'):
                for c in range(4):
                    for hh in range(2): a.e(f'ds_read_b64_tr_b16 {ar(PB+4*c+2*hh,2)}, {vb} offset:{hh*2048+(c//2)*64+(c%2)*8}')
                a.waitall(vm=False)
            if not stores: return
            for c in range(4):
                e = a.e(f'buffer_store_dwordx4 {ar(PB+4*c)}, {vL16}, {SWS}, {sPdst} offen sc1')
                if c < 3: a.e(f's_add_u32 {sPdst}, {sPdst}, {sPstr}')
            return e
        OA = [28, 29, 31, 42]
        for q in range(4): a.e(f'v_add_u32 v{OA[q]}, s57, v{XA+q}')
        s.fs('S')
        pz = s.poison(100, '', 1, sU0, sU1); pz[-1] = Nm(pz[-1], D, 'pz')
        def tagpart():
            a.e(f"""v_readfirstlane_b32 {sT}, v43
            s_add_u32 {sT}, {sT}, 0x9E3779B0
            s_and_b32 {sT}, {sT}, -16
            s_getreg_b32 {sXt}, hwreg(HW_REG_XCC_ID, 0, 4)
            s_add_u32 {sXt}, {sXt}, {sT}
            v_mov_b32 {vTag}, {sT}
            v_mov_b32 v48, {sXt}""")
            with a.skip_if(f's_cmp_lg_u32 {sW}, 0', 's_cbranch_scc1'):
                a.e(f's_lshl_b32 {sT1}, {sR}, 2\n s_add_u32 {sT0}, {sXFa}, {sT1}')
                a.e(f'buffer_store_dword v48, {vFlagOff}, {SWS}, {sT0} offen sc1')
        late1 = [f's_lshl_b32 {sWQm}, {sM}, 17', f's_lshl_b32 {sTch}, {sJ}, 2', f's_add_u32 {sTch}, {sTch}, {sW}', f's_lshl_b32 {sTch}, {sTch}, 12',
                 f's_mul_i32 {sW2m}, {sM}, {W2S}', f's_add_u32 {sW2m}, {sW2m}, {W2F}',
                 lambda: a.e(f's_add_u32 {sH5}, {sHe}, 5120\n s_cmp_eq_u32 {sW}, 3\n s_cselect_b32 {sH5}, 0x40000000, {sH5}')]
        AK = 56; XB = [128, 160]; SS = 120; SQ2 = 124
        so = {0: [0,1], 1: [2,3], 2: [4,5,6], 3: [7], 4: [8,9,10,11], 5: [12,13,14,15]}
        def xo(ks): return vr(96 + 4*(ks % 4)) if ks < 12 or True else None
        def reads(c):
            L = []
            for t in range(2):
                ks = 2*c+t
                for hh in range(2):
                    L.append(f'ds_read_b64_tr_b16 {ar(WK+4*ks+2*hh,2)}, v51 offset:{(c%4)*16384+t*4096+hh*512}')
                    L.append(f'ds_read_b64_tr_b16 {vr(WV+4*ks+2*hh,2)}, v51 offset:{(c%4)*16384+8192+t*4096+hh*512}')
                L += [f'ds_read_b128 {vr(XB[c%2]+16*t+4*rt)}, v{XA+ks%4} offset:{rt*16384+(ks//4)*4096}' for rt in range(4)]
            L += [At(9)] + [f'ds_read_b128 {xo(ks)}, v{OA[ks%4]} offset:{(ks//4)*4096}' for ks in so.get(c, [])]
            return L
        def mfs(c):
            L = []
            for ks in so.get(c, []):
                L += [f'{MF} {vr(SS)}, {xo(ks)}, v[112:115], {"0" if ks == 0 else vr(SS)}', f'{MF} {vr(SQ2)}, {xo(ks)}, {xo(ks)}, {"0" if ks == 0 else vr(SQ2)}']
            def main(t, rt):
                ks = 2*c+t; z = ks == 0; x = vr(XB[c%2]+16*t+4*rt)
                return [f'{MF} {vr(AK+8*rt)}, {x}, {ar(WK+4*ks)}, {"0" if z else vr(AK+8*rt)}', f'{MF} {vr(AK+8*rt+4)}, {x}, {vr(WV+4*ks)}, {"0" if z else vr(AK+8*rt+4)}']
            def cs(t):
                ks = 2*c+t; z = ks == 0
                return [f'{MF} v[88:91], v[112:115], {ar(WK+4*ks)}, {"0" if z else "v[88:91]"}', f'{MF} v[92:95], v[112:115], {vr(WV+4*ks)}, {"0" if z else "v[92:95]"}']
            if c == 7: return cs(0) + cs(1) + sum([main(0, rt) + main(1, rt) for rt in range(4)], [])
            for t in range(2): L += sum([main(t, rt) for rt in range(4)], []) + cs(t)
            return L
        for c in range(9):
            if c == 8: a.waitall(vm=False); a.raw('s_barrier')
            if c < 8:
                a.wait(D[('c', c)]); a.waitall(vm=False)
                if not (s.o('x_kl', 0) & 4 and c > 0): a.raw('s_barrier')
            if c in [int(x) for x in s.kw.get('sc', '0.1.2.4.6.8').split('.')]: s.fs('S')
            rd = reads(c) if c < 8 else []
            if s.o('x_kl', 0) & 2 and c > 0: rd = [r for r in rd if ('tr' in r) == bool(s.o('x_kl', 0) & 8)][:(99 if s.o('x_kl', 0) & 16 else 0)]
            if c == 0:
                s.run(rd + sum(xq(1)[2:] + chunk_dma(2) + chunk_dma(3), [])); tagpart()
                continue
            vm = []; va = []; pin = {}; pace = 4
            if c+3 < 8: vm = sum((xq(c+1) if c in (1, 2) else []) + chunk_dma(c+3), [])
            if c+3 < 8 and s.o('x_kl', 0) & 1: vm = []; D[('c', c+3)] = None
            if c == s.o('s_ep', 1):
                a.e(f's_cmp_eq_u32 {sW}, 0\n s_cselect_b32 {sT2}, {sPdst}, 0x40000000\n s_cselect_b32 {sT3}, {sPF}, 0x40000000')
                with a.skip_if(f's_cmp_lg_u32 {sW}, 0', 's_cbranch_scc1'): a.wait(eP); prep(0, False)
                est = sum([[f'buffer_store_dwordx4 {ar(4*k)}, {vL16}, {SWS}, {sT2} offen sc1', f's_add_u32 {sT2}, {sT2}, {sPstr}'] for k in range(4)], [])
                est[-2] = Nm(est[-2], D, 'es')
            if c in (1, 2): pace = 3
            if c == s.o('s_ep', 1): vm = vm + est; pace = 3
            if c == s.o('s_ep', 1)+2: pin[12] = [lambda: (a.wait(D['es']), a.e(f'buffer_store_dword {vTag}, {vFlagOff}, {SWS}, {sT3} offen sc1'))]
            if c == 3: va = late1 + ['s_mov_b32 s52, 0xAAAAAAAA', 's_mov_b32 s53, 0xAAAAAAAA', f's_mov_b32 {sSpin}, 0x40000', f's_lshr_b32 {sHd}, {sW}, 1', f's_mul_i32 {sHd}, {sHd}, {2*HRT}', f's_sub_u32 {sHd}, {HRT}, {sHd}']
            if c == 4: vm += pld[0] + pld[1]; pace = 3
            if c == 5:
                s.run([f'v_mov_b32 v{32+i}, 0' for i in range(4)])
                pz = s.poison(32, '', 1, sU0, sU1); pz[-1] = Nm(pz[-1], D, 'pz'); pz = groups(pz)
                vm = pld[2] + pld[3] + sum(pz[:3], []); pace = 4
            if c == 6:
                a.e(f"""s_min_u32 {t2}, {sM}, 3
            s_mul_i32 {t3}, {sM}, 5
            s_add_u32 {t2}, {t2}, {t3}
            s_add_u32 {sHst}, {t2}, {sW}
            s_lshl_b32 {sHst}, {sHst}, 10
            s_add_u32 {sHst}, {sHst}, {sGA}
            s_lshr_b32 {sT1}, {sW}, 1
            s_add_u32 {sHst2}, {t2}, {sT1}
            s_add_u32 {sHst2}, {sHst2}, 4
            s_lshl_b32 {sHst2}, {sHst2}, 10
            s_cmp_ge_u32 {sM}, 3
            s_cselect_b32 {t2}, {sT1}, 0
            s_cmp_lg_u32 {t2}, 0
            s_cselect_b32 {sHst2}, 0x40000000, {sHst2}
            s_add_u32 {sHst2}, {sHst2}, {sGA}
                    s_lshl_b32 {sCb}, {sW4}, 1
                    s_cmp_eq_u32 {sW}, 3
                    s_cselect_b32 {sT0}, {LC-4096}, 0
                    s_cselect_b32 {sT1}, 0, {LC}
                    s_add_u32 {sCb}, {sCb}, {sT0}
                    s_add_u32 {sCb}, {sCb}, {sT1}
                    s_mov_b32 {sNeg}, 0x80008000
                    s_lshr_b32 {sSTw}, {sW4}, 2
                    s_add_u32 {sSTw}, {sSTw}, {sGA}
                    s_sub_u32 {sW26}, {sW2l}, 4096
                    s_sub_u32 {sW262}, {sW2l2}, 4096
                    s_sub_u32 {sH6}, {sHl}, 1024
                    s_sub_u32 {sT0}, {sPi}, 32
                    s_cmp_ge_u32 {sT0}, 91
                    s_cselect_b32 {sPdst}, 0x40000000, {sPdst}
                    s_cselect_b32 {sPF}, 0x40000000, {sPF}""")
            if c == 6:
                vm = [f'buffer_load_dword v36, {vFl}, {SWS}, {sXFa} offen sc1'] + s.touch_kv1(0, 0) + sum(pz[3:], []); pace = 4
            if c == 7 and s.o('s_pfe', 1): vm = vm + [At(10), f's_lshl_b32 {sU0}, {sM}, 9', f's_add_u32 {sU0}, {sU0}, {PF}', f'buffer_load_dword v38, {vFl}, {SWS}, {sU0} offen sc1']
            if c == 8: va0 = [f's_lshl_b32 {sFm}, {sM}, 2', f's_add_u32 {sFm}, {sFm}, {sW}', f's_lshl_b32 {sFm}, {sFm}, 2', f's_add_u32 {sGW}, {sGA}, {A_FL}', f's_add_u32 {sFm}, {sFm}, {sGW}']
            if c == 7 and s.o('s_lpk', 0):
                a.wait(D['pld']); prep(16, False)
                pst = sum([[f'buffer_store_dwordx4 {ar(16+4*k)}, {vL16}, {SWS}, {sPdst} offen sc1', f's_add_u32 {sPdst}, {sPdst}, {sPstr}'] for k in range(4)], [])
                pst[-2] = Nm(pst[-2], D, 'pl')
                vm = pst[:6]; pace = 6
            if c == 8 and s.o('s_lpk', 0): vm = pst[6:]; pace = 6
            if c == 6: rd = rd + ['ds_read_b128 v[104:107], v55', 'ds_read_b128 v[108:111], v55 offset:32768']
            if c == 7:
                def sel(d, b): return [f'v_cndmask_b32 {d}, v{b}, v{b+1}, s[54:55]', f'v_cndmask_b32 v{b+2}, v{b+2}, v{b+3}, s[54:55]', f'v_cndmask_b32 {d}, {d}, v{b+2}, s[56:57]']
                a.e('s_mov_b32 s54, 0xAAAAAAAA\n s_mov_b32 s55, 0xAAAAAAAA\n s_mov_b32 s56, 0xCCCCCCCC\n s_mov_b32 s57, 0xCCCCCCCC')
                va = sel('v48', SS) + sel('v49', SQ2) + s.stats_fin('v48', 'v49', 'v50', 'v54', 0)
            if c == 8:
                def chk():
                    a.e(f'v_subrev_u32 v37, {sT}, v36\n v_cmp_le_u32 vcc, 16, v37\n s_nop 3')
                    with a.rare(None, 's_cbranch_vccnz'):
                        l = a.label('Lxf'); a.raw(f'{l}:'); s.spin_guard()
                        a.e(f'buffer_load_dword v36, {vFl}, {SWS}, {sXFa} offen sc1'); a.waitall(lg=False)
                        a.e(f'v_subrev_u32 v37, {sT}, v36\n v_cmp_le_u32 vcc, 16, v37'); a.raw(f's_cbranch_vccnz {l}')
                    if s.o('s_pfe', 1):
                        a.e(f'v_cmp_ne_u32 vcc, {sT}, v38\n s_nop 3')
                        with a.rare(None, 's_cbranch_vccnz'): s.pf_check(38, False)
                        s.run(s.tq(0))
                    a.e(f'v_cmp_ne_u32 vcc, {sXt}, v36')
                va = va0 + [chk] + [f'ds_read_b128 {vr(32+4*i)}, {vG16} offset:{o}' for i, o in enumerate((ST_RL, ST_RSTD, ST_NB))] + [At(8), f'v_mul_f32 {vCsk}, {sLog2e}, v88', f'v_mov_b32 {vCsv}, v92'] + sum([[f'v_lshlrev_b32 v{RES+2*i}, 16, v{104+i}', f'v_and_b32 v{RES+2*i+1}, 0xffff0000, v{104+i}'] for i in range(8)], []) + ['v_mov_b32 v108, v53', 'v_mov_b32 v109, v52']
            sched(a, mfs(c-1), pin, ([Stream(vm, 0, pace=pace), Stream(rd, 0, one=True)] if s.o('s_one', 1) else [Stream(rd, 0), Stream(vm, 0, pace=pace)]), [Stream(va, 4 if c < 8 else 0)])
        s.fs('S')
        TMP=96; PK=120; VP=124; KVA=88; ZA=92
        W = []
        for sb in range(4):
            ac = AK+8*sb; S = 32+12*(sb%2); RL, R, NB = S, S+4, S+8; o = 2*(sb%2)
            if sb < 3:
                S2 = 32+12*((sb+1)%2)
                W += [f'ds_read_b128 {vr(S2+4*i)}, {vG16} offset:{oo+(sb+1)*64}' for i, oo in enumerate((ST_RL, ST_RSTD, ST_NB))]
            W += s.kv_tail(ac, RL, R, NB, TMP, PK+o, VP+o)
            if sb % 2 == 1:
                c = "0" if sb == 1 else None
                W += [f'{MF} {vr(ZA)}, {vr(PK)}, v[112:115], {c or vr(ZA)}', f'{MF} {vr(KVA)}, {vr(PK)}, {vr(VP)}, {c or vr(KVA)}']
        s.wql = 0; nwq = s.o('wq0', 0)
        mix(W, ([s.tq(1)] if s.o('s_pfe', 1) else []) + (groups(s.wq_loads(0, nwq)) if nwq else []), 30)
        s.st0 = {'nwq': nwq, 'won': 0, 'pz': D['pz'], 'pl': D.get('pl'), 'pld': D['pld']}; s.prep = prep
        s.fs('S')
        if s.kw.get('fine') == 'S':
            a.waitall()
            for k in range(13): a.e(f'v_readlane_b32 s{sPR+2*k}, v30, {2*k}')
            a.raw('s_nop 4'); a.raw('s_branch Lfin')
        s.stamp(1)
        if s.force == 'slow': a.raw('s_branch Lslow')
        elif s.force != 'fast': a.raw('s_cbranch_vccnz Lslow')

    def pf_check(s, vp, late):
        a = s.a
        l = a.label('Lpf'); a.raw(f'{l}:'); s.spin_guard()
        a.e(f'v_lshrrev_b32 v{vp+2}, 2, {vL16}\n s_lshl_b32 {sT0}, {sM}, 9\n s_add_u32 {sT0}, {sT0}, {PF}')
        if late:
            a.e(f'buffer_load_dword v{vp}, v{vp+2}, {SWS}, {sT0} offen offset:128 sc1')
            a.e(f'buffer_load_dword v{vp+1}, {vFl}, {SWS}, {sT0} offen offset:364 sc1')
            a.waitall(lg=False)
            a.e(f'v_cmp_ne_u32 vcc, {sT}, v{vp}\n v_cmp_ne_u32 {sCm}, {sT}, v{vp+1}\n s_or_b64 vcc, vcc, {sCm}')
        else:
            a.e(f'buffer_load_dword v{vp}, {vFl}, {SWS}, {sT0} offen sc1'); a.waitall(lg=False)
            a.e(f'v_cmp_ne_u32 vcc, {sT}, v{vp}')
        a.raw(f's_cbranch_vccnz {l}')

    def barrier(s, *ents):
        def f():
            s.a.wait(*[e() if callable(e) else e for e in ents]); s.a.raw('s_barrier')
        return f

    def arrivals(s, st, pin, mem, valu, buf, b, VB, reg, L):
        a = s.a
        for rt, gv, G, extra in L:
            rdv, vv = s.ver('b128', VB, rt*16384, b)
            mem.insert(0, Stream([lambda rt=rt: a.wait(st[('dma', rt)])] + rdv, gv, deadline=G-4))
            valu.insert(0, Stream(vv, gv+8, deadline=G-1))
            def f(rt=rt, extra=extra):
                s.ver_branch(s.tile_dma(buf, rt, {}, sT0, reg, b == 0), 'b128', VB, rt*16384, b)
                s.barrier(*[st[k] for k in extra])()
            pin.setdefault(G, []).insert(0, f)
    def P1(s, l, prev):
        a = s.a; st = prev; s.wql = l
        RING=32; NR=6; ACC=[56,64]; STR=72; TMP=84; PK=96; VP=100; KVA=104; ZA=108; ONES=112; SL=120; VB=176
        def rd(n): return f'ds_read_b128 {vr(RING+4*(n%NR))}, v{XA+n%4} offset:{(n//16)*16384+((n%16)//4)*4096}'
        mf = []; pin = {}
        for n in range(64):
            sb, ks = divmod(n, 16); ac = ACC[sb%2]
            mf.append(f'{MF} {vr(ac)}, {vr(RING+4*(n%NR))}, {ar(WK+4*ks)}, {"0" if ks==0 else vr(ac)}')
            mf.append(f'{MF} {vr(ac+4)}, {vr(RING+4*(n%NR))}, {vr(WV+4*ks)}, {"0" if ks==0 else vr(ac+4)}')
        def epi(sb):
            ac = ACC[sb%2]; RL, R, NB = STR, STR+4, STR+8
            L = [f'ds_read_b128 {vr(NB)}, {vG16} offset:{ST_NB+sb*64}', f'ds_read_b128 {vr(RL)}, {vG16} offset:{ST_RL+sb*64}',
                 f'ds_read_b128 {vr(R)}, {vG16} offset:{ST_RSTD+sb*64}']
            o = 2*(sb%2)
            B = [f'v_fma_f32 v{TMP+r}, v{NB+r}, {vCsk}, {sDelta}' for r in range(4)]
            B += [f'v_fma_f32 v{TMP+r}, v{ac+r}, v{RL+r}, v{TMP+r}' for r in range(4)]
            for r in range(4): B += [f'v_exp_f32 v{TMP+4+r}, v{TMP+r} clamp', f'v_max_f32 v{TMP+r}, {sDelta}, v{TMP+r}']
            B += [f'v_fma_f32 v{TMP+r}, v{TMP+r}, {sLn2}, v{TMP+4+r}' for r in range(4)]
            B += [f'v_cvt_pk_bf16_f32 v{PK+o}, v{TMP}, v{TMP+1}', f'v_cvt_pk_bf16_f32 v{PK+o+1}, v{TMP+2}, v{TMP+3}']
            V = [f'v_mul_f32 v{TMP+8+r}, v{NB+r}, {vCsv}' for r in range(4)]
            V += [f'v_fma_f32 v{TMP+8+r}, v{ac+4+r}, v{R+r}, v{TMP+8+r}' for r in range(4)]
            V += [f'v_cvt_pk_bf16_f32 v{VP+o}, v{TMP+8}, v{TMP+9}', f'v_cvt_pk_bf16_f32 v{VP+o+1}, v{TMP+10}, v{TMP+11}']
            B = (B, V)
            T = []
            if sb % 2 == 1:
                c = "0" if sb == 1 else None
                T = [f'{MF} {vr(ZA)}, {vr(PK)}, {vr(ONES)}, {c or vr(ZA)}', f'{MF} {vr(KVA)}, {vr(PK)}, {vr(VP)}, {c or vr(KVA)}']
            return L, B, T
        s.fs('P1')
        mem = []; valu = []
        if l == 1:
            for i in range(4): a.e(f'v_mov_b32 v{ONES+i}, {sOnes}')
            for q in range(4): a.e(f'v_add_u32 v{XA+q}, {LB+1024*q}, {vL16}')
            a.e(f's_add_u32 {sT0}, {sW4}, {LB}\n v_add_u32 {vS0}, {sT0}, {vL16}')
            s.fs('P1')
            rdv, vv = s.ver('b128', VB, 0, 0)
            a.wait(st[('dma',0)]); s.run(rdv + vv); a.raw('s_nop 1')
            s.ver_branch(s.tile_dma(s.bX2(), 0, {}, sT0, LB, True), 'b128', VB, 0, 0)
            s.barrier()()
        s.fs('P1')
        for n in range(NR-1): a.e(rd(n))
        for n in range(64-NR+1): pin.setdefault(2*n+1, []).append(rd(n+NR-1))
        G1, G2, G3 = [2*(16*sb-NR+1) for sb in (1,2,3)]
        if l == 1:
            s.arrivals(st, pin, mem, valu, s.bX2(), 0, VB, LB, [(1, s.o('p1v1', 2), G1, []), (2, s.o('p1v2', 36), G2, []), (3, s.o('p1v3', 60), G3, ['sw1'])])
            GS = s.o('p1gs', 28)
            valu.insert(0, Stream(s.stats_chk(0, 1, 0, SL) + s.stats_use(1, 0, SL, st, 'sw0'), s.o('p1s0', 4), deadline=GS-2))
            pin.setdefault(GS, []).insert(0, s.barrier(lambda: st['sw0']))
            nwq = s.o('wq1', 16); w0 = st.get('wqpre', 0)
            q = [At(s.o('p1d2', 6))] + s.tile_dma(s.bX2(), 2, st, sU0, LB, True) + s.stats_ld(0, 1, 1, SL+4, sU0) + s.tile_dma(s.bX2(), 3, st, sU0, LB, True) + (s.t2(0) if s.o('tw2', 0) else []) + s.wq_loads(w0, 12) + (s.t2(1) if s.o('tw2', 0) else []) + s.wo_dma(st, 0, s.o('wo1', 0)) + [At(G3+1)] + s.wq_loads(12, nwq)
            mem.append(Stream(q, 0, pace=s.o('pace1', 3)))
            valu.append(Stream(s.stats_chk(0, 1, 1, SL+4) + s.stats_use(1, 1, SL+4, st, 'sw1'), s.o('p1s1', 44), deadline=G3))
        st['nwq'] = nwq
        for k in (19, 31, 51, 63, 83, 95): pin.setdefault(k, []).append(s.F('P1'))
        for sb in range(3):
            L, B, T = epi(sb); b0 = 32*(sb+1)
            mem.insert(0, Stream([At(b0-4 if sb == 0 else b0-1)] + L, 0))
            B, V = B
            valu.append(Stream([At(b0+1)] + B[:4] + [At(b0+3)] + B[4:], 0, deadline=b0+30))
            valu.append(Stream([At(b0+1)] + V[:4] + [At(b0+4)] + V[4:], 0, deadline=b0+30))
            pin.setdefault(b0+30, []).extend(T)
        L3, B3, T3 = epi(3)
        pin.setdefault(126, []).extend(L3[:2]); pin.setdefault(127, []).extend(L3[2:])
        left = sched(a, mf, pin, mem, valu); s.lefts.append(left)
        s.fs('P1')
        B3, V3 = B3
        s.run(s.kv_tail(ACC[1], STR, STR+4, STR+8, TMP, PK+2, VP+2) + T3)
        s.kv_publish(l, 84, KVA, ZA)
        s.fs('P1')
        st['won'] = s.o('wo1', 0)
        return st

    def kv_tail(s, ac, RL, R, NB, TMP, PK, VP):
        p = lambda r: vr(r, 2)
        L = [f'v_pk_fma_f32 {p(TMP+r)}, {p(NB+r)}, v[10:11], s[48:49] op_sel_hi:[1,0,0]' for r in (0, 2)]
        L += [f'v_pk_mul_f32 {p(TMP+8+r)}, {p(NB+r)}, v[10:11] op_sel:[0,1] op_sel_hi:[1,1]' for r in (0, 2)]
        L += [f'v_pk_fma_f32 {p(TMP+r)}, {p(ac+r)}, {p(RL+r)}, {p(TMP+r)}' for r in (0, 2)]
        for r in range(4): L += [f'v_exp_f32 v{TMP+4+r}, v{TMP+r} clamp', f'v_max_f32 v{TMP+r}, {sDelta}, v{TMP+r}']
        L += [f'v_pk_fma_f32 {p(TMP+8+r)}, {p(ac+4+r)}, {p(R+r)}, {p(TMP+8+r)}' for r in (0, 2)]
        L += [f'v_pk_fma_f32 {p(TMP+r)}, {p(TMP+r)}, s[48:49], {p(TMP+4+r)} op_sel:[0,1,0] op_sel_hi:[1,1,1]' for r in (0, 2)]
        L += [f'v_cvt_pk_bf16_f32 v{VP}, v{TMP+8}, v{TMP+9}', f'v_cvt_pk_bf16_f32 v{VP+1}, v{TMP+10}, v{TMP+11}',
              f'v_cvt_pk_bf16_f32 v{PK}, v{TMP}, v{TMP+1}', f'v_cvt_pk_bf16_f32 v{PK+1}, v{TMP+2}, v{TMP+3}']
        return L
    def kv_publish(s, l, G0, KVA, ZA):
        a = s.a
        a.e(f'''v_mov_b32 v{G0+3}, {vTag}
            s_lshl_b32 {sT0}, {sJ}, 10
            s_add_u32 {sT0}, {sT0}, {sKV1}
            s_add_u32 {sT0}, {sT0}, {l*0x100000}
            v_cvt_pk_bf16_f32 v{G0+4}, v{ZA}, v{ZA+1}
            v_cvt_pk_bf16_f32 v{G0+5}, v{ZA+2}, v{ZA+3}
            v_cvt_pk_bf16_f32 v{G0}, v{KVA}, v{KVA+1}
            v_cvt_pk_bf16_f32 v{G0+1}, v{KVA+2}, v{KVA+3}
            v_cndmask_b32 v{G0+2}, v{G0+4}, v{G0+5}, {sOdd}''')
        a.e(f'buffer_store_dwordx4 {vr(G0)}, {vL16}, {SWS}, {sT0} offen{s.sc}')

    def kv_tags(s, base, n):
        a = s.a
        for i in range(n):
            if i == 0: a.e(f'v_cmp_ne_u32 {sAcc}, {sT}, v{base+3}')
            else: a.e(f'v_cmp_ne_u32 {sCm}, {sT}, v{base+4*i+3}\n s_or_b64 {sAcc}, {sAcc}, {sCm}')
    def kv_add(s, base, n, acc):
        a = s.a
        for i in range(n):
            g = base + 4*i
            for k in range(3):
                if i == 0: a.e(f'v_lshlrev_b32 {acc[2*k]}, 16, v{g+k}\n v_and_b32 {acc[2*k+1]}, 0xffff0000, v{g+k}')
                else: a.e(f'v_dot2_f32_bf16 {acc[2*k]}, v{g+k}, {sLo}, {acc[2*k]}\n v_dot2_f32_bf16 {acc[2*k+1]}, v{g+k}, {sHi}, {acc[2*k+1]}')
    def kv_sum(s, base, n, acc):
        a = s.a
        for i in range(n):
            g = base + 4*i
            for k, (src, sel) in enumerate([(0,sLo),(0,sHi),(1,sLo),(1,sHi),(2,sLo),(2,sHi)]):
                a.e(f'v_dot2_f32_bf16 v{acc+k}, v{g+src}, {sel}, {"0" if i == 0 else f"v{acc+k}"}')
            if i == 0: a.e(f'v_cmp_ne_u32 {sAcc}, {sT}, v{g+3}')
            else: a.e(f'v_cmp_ne_u32 {sCm}, {sT}, v{g+3}\n s_or_b64 {sAcc}, {sAcc}, {sCm}')

    def woreg(s, ks, sl):
        if ks % 4 == 3: return 64 + 8*(ks//4) + 4*sl
        return 96 + 8*((ks//4)*3 + ks%4) + 4*sl
    def Q(s, l, st):
        a = s.a; s.wql = l
        RING=32; NR=8; QA=96; CS=92; T=120; PQ=64; ONES=112; EPS=72; SUM=76; KT=82; ZT=84; NBR=88; OUT=88
        s.fs('Q')
        R1 = 68; RA = ['v84', 'v85', 'v86', 'v87', vS0, vS1]
        def red_ld():
            a.e(f's_add_u32 {sT0}, {sKV1}, {l*0x100000}')
            for i in range(4): a.e(f'buffer_load_dwordx4 {vr(R1+4*i)}, {vL16}, {SWS}, {sT0} offen offset:{i*1024} sc1')
        def red1():
            with a.skip_if(f's_cmp_lg_u32 {sW}, {sJ}', 's_cbranch_scc1'): red_ld()
        def red2():
            with a.skip_if(f's_cmp_lg_u32 {sW}, {sJ}', 's_cbranch_scc1'):
                s.kv_tags(R1, 4)
                with a.rare(f's_cmp_lg_u64 {sAcc}, 0', 's_cbranch_scc1'):
                    lb = a.label('Lred'); a.raw(f'{lb}:'); s.spin_guard()
                    red_ld(); s.kv_tags(R1, 4)
                    a.e(f's_cmp_lg_u64 {sAcc}, 0'); a.raw(f's_cbranch_scc1 {lb}')
                s.kv_add(R1, 4, RA)
                a.e(f'''s_lshl_b32 {sT0}, {sXC}, 10
                    s_add_u32 {sT0}, {sT0}, {sKV2}
                    s_add_u32 {sT0}, {sT0}, {l*0x40000}
                    v_cvt_pk_bf16_f32 v{R1}, {RA[0]}, {RA[1]}
                    v_cvt_pk_bf16_f32 v{R1+1}, {RA[2]}, {RA[3]}
                    v_cvt_pk_bf16_f32 v{R1+2}, {RA[4]}, {RA[5]}''')
                a.e(f'buffer_store_dwordx4 {vr(R1)}, {vL16}, {SWS}, {sT0} offen sc1')
            s.fs('Q')
        order = [(rt, ks) for rt in range(4) for ks in range(16)]
        def rd(n): rt, ks = order[n]; return f'ds_read_b128 {vr(RING+4*(n%NR))}, v{XA+ks%4} offset:{rt*16384+(ks//4)*4096}'
        mf = []; pin = {}; gend = {}
        for n, (rt, ks) in enumerate(order):
            mf.append(f'{MF} {vr(QA+4*rt)}, {vr(128+4*ks)}, {vr(RING+4*(n%NR))}, {"0" if ks==0 else vr(QA+4*rt)} ; ?v{128+4*ks}=wq{l}')
            if n+NR-1 < 64: pin.setdefault(len(mf)-1, []).append(rd(n+NR-1))
            if l == 0 and n < 16: mf.append(f'{MF} {vr(CS)}, {vr(128+4*ks)}, {vr(ONES)}, {"0" if ks==0 else vr(CS)}')
            gend[rt] = len(mf)
        wql = Stream(s.wq_loads(st['nwq'], 16)).items
        if l == 0:
            if s.o('r0s', 2): a.raw(f"s_sleep {s.o('r0s', 2)}")
            red1()
            if not s.o('s_pfe', 1): s.pf_check(124, False)
            else: a.wait(st['pz'], st['pld'], st['pl'])
            if st['pl']: a.e(f'buffer_store_dword {vTag}, {vFlagOff}, {SWS}, {sPF} offen sc1')
            a.e(s.flag_st(0, 0, 0))
            red2()
        s.run(wql[:len(wql)//2])
        if l == 0 and not st['pl']: st['pl2'] = s.prep(16, True, 'v108', 'v109')
        s.run(wql[len(wql)//2:])
        a.e(f's_lshl_b32 {sT0}, {sW}, 6\n v_add_u32 {vS2}, {sT0}, {vG16}')
        if l == 1: a.e(f'ds_read_b128 {vr(CS)}, {vS2} offset:{CSQ}')
        for n in range(NR-1): a.e(rd(n))
        def epi(rt):
            nb, rl = f'v{NBR+2*(rt%2)}', f'v{NBR+1+2*(rt%2)}'
            R = [f'ds_read_b32 {nb}, {vR4} offset:{ST_NB+rt*64}', f'ds_read_b32 {rl}, {vR4} offset:{ST_RL+rt*64}']
            L = [f'v_fma_f32 v{T+r}, {nb}, v{CS+r}, {sDelta}' for r in range(4)]
            L += [f'v_fma_f32 v{T+r}, v{QA+4*rt+r}, {rl}, v{T+r}' for r in range(4)]
            for r in range(4): L += [f'v_exp_f32 v{T+4+r}, v{T+r} clamp', f'v_max_f32 v{T+r}, {sDelta}, v{T+r}']
            L += [f'v_fma_f32 v{T+r}, v{T+r}, {sLn2}, v{T+4+r}' for r in range(4)]
            L += [f'v_cvt_pk_bf16_f32 v{PQ+2*rt}, v{T}, v{T+1}', f'v_cvt_pk_bf16_f32 v{PQ+2*rt+1}, v{T+2}, v{T+3}']
            return R, L
        s.run(epi(0)[0] + epi(1)[0])
        S2 = 32
        def st2_loads():
            for i in range(8):
                if i % 4 == 0: a.e(f's_add_u32 {sT0}, {sKV2}, {l*0x40000+i*1024}')
                a.e(f'buffer_load_dwordx4 {vr(S2+4*i)}, {vL16}, {SWS}, {sT0} offen offset:{(i%4)*1024} sc1')
        valu = []
        for rt in range(3):
            pre = []
            if rt == 0 and l == 0: pre = [f'v_mul_f32 v{CS+r}, {sLog2e}, v{CS+r}' for r in range(4)] + [f'ds_write_b128 {vS2}, {vr(CS)} offset:{CSQ}']
            R, L = epi(rt)
            post = epi(rt+2)[0] if rt < 2 else []
            valu.append(Stream(pre + L + post, gend[rt]+3, deadline=(gend[rt+1]+2 if rt < 2 else None)))
        n0 = 0
        wo = [s.wo_dma(st, i, i+1) for i in range(st['won'], 4)]
        if l == 0: q = wo[0] + wo[1] + ([lambda: (a.wait(st['pl2']), a.e(f'buffer_store_dword {vTag}, {vFlagOff}, {SWS}, {sPF} offen sc1'))] if 'pl2' in st else []) + wo[2] + wo[3] + (s.touch_oxs(127) if s.o('tch', 1) else [])
        else: q = (s.touch_oxs(0) if s.o('tch1', 1) else []) + sum(wo, []) + (s.t2(2) if s.o('tw2', 0) else [])
        q = Stream(q).items
        g = 0 if l == 0 else 1
        for it in q:
            pin.setdefault(g, []).insert(len([x for x in pin.get(g, []) if not (isinstance(x, str) and x.startswith('ds_read'))]), it)
            t = it.text if isinstance(it, Nm) else it
            if isinstance(t, str) and t.startswith('buffer'): g += (3 if l == 0 or not st['won'] else 4)
        assert g < len(mf) + 4, g
        ga, gb = s.o('rga', 0), s.o('rgb', 20)
        assert gb < gend[2]

        if l == 1: pin.setdefault(ga, []).insert(0, red1); pin.setdefault(gb, []).insert(0, red2)
        for k in (gend[2]-1,): pin.setdefault(k, []).append(s.F('Q'))
        s.lefts.append(sched(a, mf, pin, [], valu, over=True))
        p2 = lambda r: vr(r, 2)
        L3 = [f'v_pk_fma_f32 {p2(T+r)}, {p2(CS+r)}, {p2(NBR+2)}, s[48:49] op_sel_hi:[1,0,0]' for r in (0, 2)]
        L3 += [f'v_pk_fma_f32 {p2(T+r)}, {p2(QA+12+r)}, {p2(NBR+2)}, {p2(T+r)} op_sel:[0,1,0] op_sel_hi:[1,1,1]' for r in (0, 2)]
        L3 += epi(3)[1][8:16]
        L3 += [f'v_pk_fma_f32 {p2(T+r)}, {p2(T+r)}, s[48:49], {p2(T+4+r)} op_sel:[0,1,0] op_sel_hi:[1,1,1]' for r in (0, 2)] + epi(3)[1][20:]
        s.run(L3 + [f'v_mov_b32 v{EPS+r}, 0x{f2u(1e-6):x}' for r in range(4)])
        a.e(f's_and_b32 {sT0}, {sW}, 1\n s_lshl_b32 {sT0}, {sT0}, 11\n s_add_u32 {sT0}, {sT0}, {RW(l)}\n v_add_u32 {vS2}, {sT0}, {vL16}')
        def wo_rd(ks): return [f'ds_read_b128 {vr(s.woreg(ks, sl))}, {vS2} offset:{ks*4096+sl*1024} ; @wo{l}' for sl in range(2)]
        early = [ks for ks in range(16) if not (64 <= s.woreg(ks, 0) < 96 or S2 <= s.woreg(ks, 0) < S2+32)]
        late = [ks for ks in range(16) if ks not in early]
        s.fs('Q')
        a.wait(st['wo'])
        s.barrier()()
        if s.o('qsleep', 0): a.raw(f"s_sleep {s.o('qsleep', 0)}")
        s.fs('Q')
        if l == 0 and s.o('w1a', 0) + s.o('w2q0', 0): s.pf_check(124, True)
        st2_loads()
        for ks in early: s.run(wo_rd(ks))
        st['w2'] = {}
        if l == 0: s.run([s.poll_ld(0, 0, 0)])
        for i in range(1, 1+(s.o('w2q', 3) if l else s.o('w2q0', 0))): s.run(s.w2_dma(i, st['w2']))
        n1 = s.o('w1a', 0)
        if l == 0:
            s.run(s.w1_loads(0, n1))
        st['w1n'] = n1
        s.stamp(3); s.fs('Q')
        s.kv_sum(S2, 8, SUM)
        a.e(f's_cmp_lg_u64 {sAcc}, 0')
        s.fs('Q')
        with a.rare(None, 's_cbranch_scc1'):
            lo = a.label('Lst2o'); a.raw(f'{lo}:'); s.spin_guard()
            for i in range(8):
                a.e(f'v_cmp_ne_u32 vcc, {sT}, v{S2+4*i+3}\n s_nop 1')
                with a.skip_if(None, 's_cbranch_vccz'):
                    a.e(f's_add_u32 {sT0}, {sKV2}, {l*0x40000+i*1024}')
                    a.e(f'buffer_load_dwordx4 {vr(S2+4*i)}, {vL16}, {SWS}, {sT0} offen sc1')
            a.waitall(lg=False)
            s.kv_tags(S2, 8)
            a.e(f's_cmp_lg_u64 {sAcc}, 0'); a.raw(f's_cbranch_scc1 {lo}')
            s.kv_sum(S2, 8, SUM)
        s.stamp(4); s.fs('Q')
        a.e(f'''v_cvt_pk_bf16_f32 v86, v{SUM+4}, v{SUM+5}
            v_cvt_pk_bf16_f32 v{KT}, v{SUM}, v{SUM+1}
            v_cvt_pk_bf16_f32 v{KT+1}, v{SUM+2}, v{SUM+3}
            v_mov_b32_dpp v{ZT}, v86 quad_perm:[0,0,2,2] {DPPF}
            v_mov_b32_dpp v{ZT+1}, v86 quad_perm:[1,1,3,3] {DPPF}
            s_add_u32 {sT0}, {sOme}, {s.bO(l)}''')
        for rt in range(4):
            a.e(f'{MF16} {vr(32+4*rt)}, {vr(ZT,2)}, {vr(PQ+2*rt,2)}, {vr(EPS)}')
            a.e(f'{MF16} {vr(48+4*rt)}, {vr(KT,2)}, {vr(PQ+2*rt,2)}, 0')
        a.e('v_rcp_f32 v32, v32')
        for rt in range(4):
            if rt < 3: a.e(f'v_rcp_f32 v{36+4*rt}, v{36+4*rt}')
            for r in (0, 2): a.e(f'v_pk_mul_f32 {vr(48+4*rt+r,2)}, {vr(48+4*rt+r,2)}, {vr(32+4*rt,2)} op_sel_hi:[1,0]')
            a.e(f'v_cvt_pk_bf16_f32 v{OUT+2*rt}, v{48+4*rt}, v{49+4*rt}\n v_cvt_pk_bf16_f32 v{OUT+1+2*rt}, v{50+4*rt}, v{51+4*rt}')
            a.e(f'v_or_b32 v{OUT+2*rt}, 1, v{OUT+2*rt}' if l == 0 else f'v_and_b32 v{OUT+2*rt}, -2, v{OUT+2*rt}')
            e = a.e(f'buffer_store_dwordx2 {vr(OUT+2*rt,2)}, {vO8}, {SWS}, {sT0} offen{s.sc}')
            if rt < 3: a.e(f's_add_u32 {sT0}, {sT0}, 16384')
        s.fs('Q')
        for ks in late: s.run(wo_rd(ks))
        if l == 0:
            s.poll_check(0, 0, 0)
        s.fs('Q')
        if l == 0 and not s.o('w1a', 0) + s.o('w2q0', 0): s.pf_check(32, True)
        if l == 0 and s.o('t1l', 0): s.run(s.t1(1) + s.t1(2))
        if l == 0: s.run(s.w1_loads(n1, n1 + s.o('w1b', 16))); st['w1n'] = n1 + s.o('w1b', 16)
        s.stamp(5); s.fs('Q')
        return st

    def P2(s, l, st):
        a = s.a
        RING=32; NR=6; VB=56; PKO=96; b = 1 - l
        s.fs('P2')
        n2 = st['w1n']; n3 = min(48, n2 + s.o('w1c', 10))
        def chunk(c, t, d):
            hf, kh = divmod(c, 2)
            L = [f's_add_u32 m0, {sOW}, {RW(l)+hf*32768+kh*8192}', f's_add_u32 {t}, {sGO}, {s.bO(l)+hf*32768+kh*8192}']
            L += [f'buffer_load_dwordx4 {vL16}, {SWS}, {t} offen offset:{i*1024}{s.lc} lds' for i in range(4)]
            L[-1] = Nm(L[-1], d, ('c', c))
            return L
        coff = lambda c: (c//2)*32768 + (c%2)*8192
        a.waitall(vm=False); a.raw('s_barrier')
        if s.kw.get('fine') == 'X' and l == s.o('fl', 1):
            a.waitall()
            for rep_ in range(2):
                for i in (1, 2, 3, 4):
                    s.fs('X'); d = {}; s.run(s.w2_dma(i, d)); a.waitall()
            s.fs('X')
            s.run(s.wq_loads(0, 4)); a.waitall(); s.fs('X')
            s.run(s.wq_loads(0, 4)); a.waitall(); s.fs('X')
            a.raw('s_branch Lfin')
        if s.o('opoll', 1):
            a.e(f'v_lshlrev_b32 {vS0}, 7, {vFl}\n v_and_b32 {vS0}, 0x3c00, {vS0}\n v_and_b32 {vS1}, 4, {vFl}\n v_lshl_add_u32 {vS0}, {vS1}, 1, {vS0}\n s_add_u32 {sT0}, {sGA}, {s.bO(l)+3*16384}')
            lb = a.label('Lop'); a.raw(f'{lb}:'); s.spin_guard()
            a.e(f'buffer_load_dword {vP}, {vS0}, {SWS}, {sT0} offen offset:1008 sc1'); a.waitall(lg=False)
            a.e(f'v_and_b32 {vP}, 1, {vP}\n v_cmp_ne_u32 vcc, {b}, {vP}'); a.raw(f's_cbranch_vccnz {lb}')
        s.fs('P2')
        if s.kw.get('fine') == 'Y' and l == s.o('fl', 1):
            for rep_ in range(2):
                d = {}
                s.fs('Y')
                s.run(sum([chunk(c, sT0, d) for c in range(4)], [])); s.fs('Y')
                for c in range(4): a.wait(d[('c', c)]); s.fs('Y')
                a.raw('s_barrier')
            a.raw('s_branch Lfin')
        s.run(sum([chunk(c, sT0, st) for c in range(4)], []))
        s.stamp(6); s.fs('P2')
        a.e(f's_and_b32 {sT0}, {sOW}, 0x4000\n s_add_u32 {sT0}, {sT0}, {RW(l)}\n v_add_u32 {vS2}, {sT0}, {vL16}\n s_add_u32 {sT0}, {sOW}, {RW(l)}\n v_add_u32 {vS0}, {sT0}, {vL16}\n v_add_u32 {vS1}, 8, {vS0}')
        def rd(n): hf, ks = divmod(n, 16); return f'ds_read_b128 {vr(RING+4*(n%NR))}, {vS2} offset:{hf*32768+ks*1024}'
        mf = []; pin = {}; mem = []; valu = []
        for n in range(32):
            hf, ks = divmod(n, 16)
            for sl in range(2):
                ac = RES+8*hf+4*sl
                mf.append(f'{MF} {vr(ac)}, {vr(s.woreg(ks, sl))}, {vr(RING+4*(n%NR))}, {vr(ac)} ; ?v{s.woreg(ks, sl)}=wo{l}')
        r0, v0 = s.ver('b128', 32, coff(0), b); r1, v1 = s.ver('b128', 48, coff(1), b)
        a.wait(st[('c',0)]); s.run(r0); a.wait(st[('c',1)]); s.fs('P2'); s.run(r1 + v0); a.raw('s_nop 1')
        s.ver_branch(chunk(0, sT0, {}), 'b128', 32, coff(0), b)
        s.run(v1); a.raw('s_nop 1')
        s.ver_branch(chunk(1, sT0, {}), 'b128', 48, coff(1), b)
        a.raw('s_barrier')
        s.fs('P2')
        for n in range(NR-1): a.e(rd(n))
        for n in range(32-NR+1): pin.setdefault(2*n+1, []).append(rd(n+NR-1))
        G = 2*(16-NR+1)
        for c, g0, g1 in ((2, 0, 10), (3, 10, G)):
            rdv, vv = s.ver('r2', VB, coff(c), b)
            mem.append(Stream([lambda c=c: a.wait(st[('c', c)])] + rdv, g0, deadline=g1-5))
            valu.append(Stream(vv, g1-5, deadline=g1-2))
            def f(c=c):
                s.ver_branch(chunk(c, sT0, {}), 'r2', VB, coff(c), b)
                if c == 3: a.raw('s_barrier')
            pin.setdefault(g1, []).insert(0, f)
        pin.setdefault(40, []).insert(0, s.barrier())
        extra = (s.touch_h(0) if s.o('tchh', 1) else []) + (s.w1_loads(n2, n3) if l == 0 else [])
        xp = s.x_pub(l, 0, 0, PKO, 'v104', 'v105', st, 'p0', False, sV0)
        mem.append(Stream(xp[:8], 35, deadline=44))
        mem.append(Stream(extra, s.o('p2x', 20), pace=s.o('pace2', 4)))
        valu.append(Stream(xp[8:], 44))
        for k in (5, 15, 31, 47): pin.setdefault(k, []).append(s.F('P2'))
        s.lefts.append(sched(a, mf, pin, mem, valu))
        s.fs('P2')
        s.run(s.x_pub(l, 0, 1, PKO+4, vS0, vS1, st, 'p1', True, sT0))
        s.fs('P2')
        st['w1n'] = n3
        s.stamp(7)
        return st

    def P3(s, l, st):
        a = s.a; w2 = st['w2']
        RING=32; NR=6; ACC=[56,68]; CS=80; NM=92; PKD=[144,150]; SL=156; ONES=164; HELD=176
        VB = 128
        s.fs('P3')
        s.run(s.tile_dma(s.bX1(l), 0, st, sT0, RW(l)) + s.tile_dma(s.bX1(l), 1, st, sT0, RW(l)))
        n4 = min(48, st['w1n'] + s.o('w1d', 10))
        if l == 0: s.run(s.w1_loads(st['w1n'], n4))
        else: s.run(s.held()); st['held'] = 1
        s.fs('P3')
        a.e(f's_mul_i32 {sT0}, {sW}, 192\n v_add_u32 {vS2}, {sT0}, {vG16}\n s_add_u32 {sT0}, {sW4}, {RW(l)}\n v_add_u32 {vS0}, {sT0}, {vL16}\n v_add_u32 v94, {RW(l)}, {vL16}')
        if l == 1:
            for sl in range(3): a.e(f'ds_read_b128 {vr(CS+4*sl)}, {vS2} offset:{CSW1+sl*64}')
        rdv, vv = s.ver('b128', VB, 0, 1)
        a.wait(st[('dma',0)]); s.run(rdv + vv); a.raw('s_nop 1')
        s.ver_branch(s.tile_dma(s.bX1(l), 0, {}, sT0, RW(l)), 'b128', VB, 0, 1)
        if l == 0:
            for i in range(4): a.e(f'v_mov_b32 v{ONES+i}, {sOnes}')
        s.stamp(8); s.fs('P3')
        def rd(n): return f'ds_read_b128 {vr(RING+4*(n%NR))}, v94 offset:{n*1024}'
        mf = []; pin = {}; gp = {}
        for n in range(64):
            sb, ks = divmod(n, 16)
            gp[n] = len(mf)
            for sl in range(3):
                ac = ACC[sb%2]+4*sl
                mf.append(f'{MF} {vr(ac)}, {ar(64*sl+4*ks)}, {vr(RING+4*(n%NR))}, {"0" if ks==0 else vr(ac)} ; ?a{64*sl+4*ks}=w1')
            if l == 0 and sb == 0: mf += [s.colsum_w1(sl, CS, ONES)[ks] for sl in range(3)]
        gp[64] = len(mf); X = gp[16] - 48
        s.barrier()()
        s.fs('P3')
        for n in range(NR-1): a.e(rd(n))
        for n in range(64-NR+1): pin.setdefault(gp[n]+2, []).append(rd(n+NR-1))
        G1, G2, G3 = [gp[16*sb-NR+1] for sb in (1,2,3)]
        G4 = gp[51]
        mem = []; valu = []
        s.arrivals(st, pin, mem, valu, s.bX1(l), 1, VB, RW(l), [(1, 6, G1, []), (2, 54+X, G2, ['sw0']), (3, 100+X, G3, ['sw1'])])
        pin.setdefault(G4, []).insert(0, s.barrier())
        valu.append(Stream(s.stats_chk(l, 0, 0, SL) + s.stats_use(0, 0, SL, st, 'sw0') + s.stats_chk(l, 0, 1, SL+4) + [By(G2-2)] + s.stats_use(0, 1, SL+4, st, 'sw1'), 36+X, deadline=G3-2))
        if l == 0: valu.append(Stream([f'ds_write_b128 {vS2}, {vr(CS+4*sl)} offset:{CSW1+sl*64}' for sl in range(3)], gp[16]+6))
        todo = [i for i in range(1, 5) if i not in w2]
        q = []
        if l == 0:
            for n in range(n4, 48, 2): q += s.w1_loads(n, n+2) + [By(max(0, gp[4*(n//12)] - 1))]
        q += s.stats_ld(l, 0, 0, SL, sU0) + s.tile_dma(s.bX1(l), 2, st, sU0, RW(l)) + s.stats_ld(l, 0, 1, SL+4, sU0) + s.tile_dma(s.bX1(l), 3, st, sU0, RW(l))
        for i in todo: q += s.w2_dma(i, w2)
        if 'held' not in st: q += s.held()
        if l == 0:
            def five():
                with a.skip_if(f's_cmp_eq_u32 {sW}, 3', 's_cbranch_scc1'): s.run(s.w2_dma(5, w2))
            q += [five] + s.w2_dma(6, w2)
        q += [At(G2+1)] + s.w2_dma(7, w2)
        nl = s.o('late0', 10) if l == 0 else 10
        if nl > 8: q += [At(G3+1)] + s.w2_dma(8, w2)
        if nl > 9: q += [At(G4+1)] + s.w2_dma(9, w2)
        st['nA'] = s.o('p3a', 5) if l == 1 else s.o('p3a0', 4)
        hfl = l == 0 or s.o('hfl', 0)
        if hfl: mem.append(Stream([lambda: a.wait(st[('hs',1)]), s.flag_st(0, 1+2*l, 0)], s.o('p3f', 146)+X))
        if l == 0: q += [At(s.o('p3h0', 172)-10+X), s.poll_ld(0, 1, 0), At(s.o('p3h0', 172)+X), lambda: s.poll_check(0, 1, 0)]
        al = [At(s.o('p3h', 138))] + sum([s.aload(l, n) for n in range(st['nA'])], [])
        k9 = [k for k, it in enumerate(q) if isinstance(it, At) and it.g == G4+1]
        if k9 and l == 1: q = q[:k9[0]] + al[:8] + q[k9[0]:] + al[8:]
        else: q += al
        def epi(sb):
            ac = ACC[sb%2]; p = PKD[sb%2]
            R = [f'ds_read_b32 v{NM+sb%2}, {vR4} offset:{1024+ST_NM+sb*64}']
            ng = '-' if l == 0 else ''
            B = [f'v_fma_f32 v{ac+i}, {ng}v{NM+sb%2}, v{CS+i}, {ng}v{ac+i}' for i in range(12)]
            B += [f'v_cvt_pk_bf16_f32 v{p+i}, v{ac+2*i}, v{ac+2*i+1}' for i in range(6)]
            B += [(f'v_pk_max_u16 v{p+i}, v{p+i}, {sNeg}' if l == 0 else f'v_pk_max_i16 v{p+i}, v{p+i}, 0') for i in range(6)]
            B += [f's_add_u32 {sV0}, {sHst}, {s.bH(l)+sb*HRT}', f's_add_u32 {sV1}, {sHst2}, {s.bH(l)+sb*HRT}',
                  f'buffer_store_dwordx4 {vr(p)}, {vL16}, {SWS}, {sV0} offen{s.sc}',
                  Nm(f'buffer_store_dwordx2 {vr(p+4,2)}, {vO8}, {SWS}, {sV1} offen{s.sc}', st, ('hs', sb))]
            return R, B
        for sb in range(3):
            R, B = epi(sb); b0 = gp[16*(sb+1)]
            if sb == 0:
                mem.append(Stream(R, G2)); valu.insert(0, Stream([At(G2+3)] + B[:18] + [By(95+X)] + B[18:], 0, deadline=104+X))
            else:
                mem.append(Stream(R, b0-3)); valu.insert(sb, Stream(B, b0+4, deadline=b0+40))
        mem.append(Stream(epi(3)[0], gp[64]-6))
        mq = Stream(q, 0, pace=s.o('pace3', 4)); mem.append(mq)
        for k_ in (10, 15, 21, 26, 31, 42, 47): pin.setdefault(gp[k_+1]-1, []).append(s.F('P3'))
        left = sched(a, mf, pin, mem, valu, keep=[mq]); s.lefts.append((left, len(mq.items)-mq.k))
        s.fs('P3')
        R, B = epi(3)
        s.barrier(w2[6] if l == 0 else None)()
        ngp = ' neg_lo:[0,1,1] neg_hi:[0,1,1]' if l == 0 else ''
        Bp = [f'v_pk_fma_f32 {vr(ACC[1]+i,2)}, {vr(CS+i,2)}, {vr(NM,2)}, {vr(ACC[1]+i,2)} op_sel:[0,1,0] op_sel_hi:[1,1,1]{ngp}' for i in range(0, 12, 2)]
        s.run(Bp + B[12:]); s.run(mq.items[mq.k:])
        s.stamp(9); s.fs('P3')
        return st

    def aload(s, l, n, sA0=sA0, sA1=sA1, force=False):
        AR=96; NA=6
        ps, i = divmod(n, 11); r = AR + 8*(n % NA)
        base, j = (sHe, i) if i <= 4 else ((sH5, 0) if i == 5 else ((sH6, 0) if i == 6 else (sHl, i-7)))
        L = []
        if j % 4 == 0 or force: L += [f's_add_u32 {sA0}, {base}, {s.bH(l)+ps*2*HRT+(j//4)*4096}', f's_add_u32 {sA1}, {sA0}, {sHd}']
        return L + [f'buffer_load_dwordx4 {vr(r)}, {vL16}, {SWS}, {sA0} offen offset:{(j%4)*1024}{s.lc} ; @h{l}_{n}',
                    f'buffer_load_dwordx4 {vr(r+4)}, {vL16}, {SWS}, {sA1} offen offset:{(j%4)*1024}{s.lc} ; @h{l}_{n}']

    def P4(s, l, st):
        a = s.a; nxt = {}; w2 = st['w2']
        ACC=[32,64]; AR=96; NA=6; BR=[144,160]; HELD=176
        def breg(n):
            ps, i = divmod(n, 11); return HELD if i == 0 else BR[(ps*10+i) % 2]
        def bread(n):
            ps, i = divmod(n, 11)
            if i == 0: return []
            L = []
            if ps == 0 and i in w2: L.append(lambda: a.wait(w2[i]))
            v, o = (vS0, (i-1)*4096) if i <= 4 else ((vS2, (i-5)*4096) if i <= 6 else (vS1, (i-7)*16384))
            return L + [f'ds_read_b128 {vr(breg(n)+4*c)}, {v} offset:{o+c*1024} ; @b{l}_{n}' for c in range(4)]
        s.fs('P4')
        a.e(f'''s_lshl_b32 {sT0}, {sW4}, 2
            s_add_u32 {sT0}, {sT0}, {RX(l)}
            v_add_u32 {vS0}, {sT0}, {vL16}
            s_add_u32 {sT0}, {sW4}, {RW(l)}
            v_add_u32 {vS1}, {sT0}, {vL16}
            v_add_u32 {vS2}, {sCb}, {vL16}''')
        nA = st['nA']
        for n in range(nA, 2): s.run(s.aload(l, n))
        nA = max(nA, 2)
        s.stamp(10); s.fs('P4')
        def xwrite(ps): return [f'ds_write_b128 {vS0}, {vr(ACC[ps]+8*t+4*sl)} offset:{ps*8192+t*2048+sl*1024}' for t in (1,2,3) for sl in (0,1)]
        def xread(ps, tmp, sx):
            return [f'v_xor_b32 v{tmp+t}, {t<<14}, {vS0}' for t in (1,2,3)] + [f's_and_b32 {sx}, {sW}, 2', f's_lshl_b32 {sx}, {sx}, 5', f'v_add_u32 v{tmp}, {sx}, {vR4}']
        def xread2(ps, tmp):
            L = [f'ds_read_b32 v{tmp}, v{tmp} offset:{1024+ST_RSTD+ps*128}']
            for t in (1,2): L += [f'ds_read_b128 {vr(ACC[ps]+8*t+4*sl)}, v{tmp+t} offset:{ps*8192+t*2048+sl*1024}' for sl in (0,1)]
            L += [f'ds_read_b128 {vr(ACC[ps]+24+4*sl)}, v{tmp+3} offset:{ps*8192+3*2048+sl*1024}' for sl in (0,1)]
            return L
        def xsum(ps, tmp):
            ac = ACC[ps]; L = []
            for i in range(8): L.append(f'v_add_f32 v{ac+i}, v{ac+i}, v{ac+8+i}')
            for i in range(8): L.append(f'v_add_f32 v{ac+16+i}, v{ac+16+i}, v{ac+24+i}')
            for i in range(8): L.append(f'v_add_f32 v{ac+i}, v{ac+i}, v{ac+16+i}')
            for i in range(8): L.append(f'v_fma_f32 v{RES+8*ps+i}, {"-" if l == 0 else ""}v{ac+i}, v{tmp}, v{RES+8*ps+i}')
            return L
        def publish(ps, dot, sx):
            ac = ACC[ps]
            if l == 0: return s.x_pub(0, 1, ps, ac+8, f'v{ac+12}', f'v{ac+13}', nxt, ('pub', ps), dot, sx)
            r = RES + 8*ps
            return [f'v_cvt_pk_bf16_f32 v{ac+8+i}, v{r+2*i}, v{r+2*i+1}' for i in range(4)] + [
                f'v_bfe_u32 v{ac+12}, {vL16}, 4, 4', f'v_lshrrev_b32 v{ac+13}, 8, {vL16}', f'v_lshlrev_b32 v{ac+12}, 10, v{ac+12}',
                f'v_lshl_add_u32 v{ac+12}, v{ac+13}, 4, v{ac+12}', f's_add_u32 {sx}, {sOutO}, {ps*32768}',
                f'buffer_store_dwordx4 {vr(ac+8)}, v{ac+12}, {SOUT}, {sx} offen' + (' sc1' if s.o('osc', 0) else '')]
        mf = []; pin = {}; q = []; rds = []
        for n in range(22):
            ps, i = divmod(n, 11); r = AR + 8*(n % NA); grp = []
            for c in range(4):
                for t2 in range(2):
                    ac = ACC[ps] + 16*t2 + 4*c
                    grp.append(f'{MF} {vr(ac)}, {vr(breg(n)+4*c)}, {vr(r+4*t2)}, {"0" if i==0 else vr(ac)} ; ?v{r+4*t2}=h{l}_{n} ?v{breg(n)+4*c}={"held"+str(l) if i == 0 else f"b{l}_{n}"}')
            if n == 21: grp = [grp[k] for k in (4, 5, 6, 7, 1, 3, 0, 2)]
            mf += grp
            if n+1 < 22: rds.append(Stream(bread(n+1), 8*n, deadline=8*(n+1)))
        hfl = l == 0 or s.o('hfl', 0); nt1 = s.o('nt1s', 2) if l == 1 else 0
        if hfl and l == 1: s.run([s.poll_ld(0, 3, 0)])
        def hchk(n):
            ps, i = divmod(n, 11); r = AR + 8*(n % NA)
            if l == 0:
                c = [f'v_bitop3_b32 {vP}, v{r}, v{r+2}, v{r+4} bitop3:0x80',
                     f'v_bitop3_b32 {vP}, {vP}, v{r+6}, {sM5} bitop3:0xea' if i == 5 else f'v_and_b32 {vP}, {vP}, v{r+6}',
                     f'v_cmp_le_i32 vcc, 0, {vP}']
            else:
                c = [f'v_or3_b32 {vP}, v{r}, v{r+2}, v{r+4}', f'v_or_b32 {vP}, {vP}, v{r+6}', f'v_cmp_gt_i32 vcc, 0, {vP}']
            def br():
                with a.rare(None, 's_cbranch_vccnz'):
                    lb = a.label('Lhv'); a.raw(f'{lb}:'); s.spin_guard()
                    s.run(s.aload(l, n, sT0, sT1, True)); a.waitall(lg=False); s.run(c)
                    a.raw(f's_cbranch_vccnz {lb}')
            return c, br
        for n in range(nA, 22):
            for i in (8, 9, 10):
                if n == i - 2 and i not in w2 and not (l == 1 and s.o('x_nos10', 0)): q += s.w2_dma(i, w2)
            if hfl and l == 1 and n == nA: q += [lambda: s.poll_check(0, 3, 0)]
            if hfl and n == 6: q += [lambda: a.wait(st[('hs',3)]), s.flag_st(0, 2+2*l, 0)]
            if hfl and n == 9: q.append(s.poll_ld(0, 2+2*l, 0))
            if hfl and n == 11+nt1: q.append(lambda: s.poll_check(0, 2+2*l, 0))
            if l == 0 and s.o('tq4', 0) and n in (12, 17): q += s.tq((n-12)//5)
            q.append(At(max(0, 8*(n-NA+1))))
            if not (l == 1 and s.o('x_nold', 0)): q += s.aload(l, n) + [By(max(0, 8*n - 10))]
        if l == 1: c, br = hchk(0); s.run(c); br()
        for n in range(1, 22):
            c, br = hchk(n)
            if l == 1 and s.o('x_nochk', 0): c = ['s_nop 0', 's_nop 0', 's_nop 0']; br = lambda: None
            if l == 1 and (not hfl or n < nA or 11 <= n < 11+nt1): pin.setdefault(8*n-5, []).extend(c[:2]); pin.setdefault(8*n-4, []).append(c[2]); pin.setdefault(8*n-s.o('brg', 2), []).insert(0, br)
            def wb(n, lo):
                def f():
                    regs = set(regs_of(vr(breg(n)+lo, 8)))
                    a.wait(*[e for e in a.q['lg'] if not e.done and (e.defs & regs)])
                f.pre = True
                return f
            br.pre = True
            pin.setdefault(8*n-1, []).insert(0, wb(n, 0)); pin.setdefault(8*n+2, []).insert(0, wb(n, 8))
        if l == 0 and s.o('tsm', 1): q += s.touch_kv1(1, 190) + (s.touch_kv2(1, 189) if s.o('tkv2', 0) else [])
        TM = HELD
        xw = xwrite(0); xw[-1] = Nm(xw[-1], nxt, 'xw')
        red = [At(8*12)] + xread(0, TM, sV0) + [At(8*13)] + xw[:2] + [At(8*14)] + xw[2:]
        GB = 8*14+7
        redS = Stream(red, 0, deadline=GB)
        pin.setdefault(GB, []).append(s.barrier(lambda: nxt['xw']) if not (l == 1 and s.o('x_nobar', 0)) else (lambda: None))
        red2 = Stream(xread2(0, TM), GB, deadline=8*16)
        red3 = Stream(xsum(0, TM) + publish(0, False, sV0) + xread(1, TM+4, sV0), 8*15+6)
        if l == 1 and s.o('wb', 0):
            def wbl():
                with a.skip_if(f's_lshr_b32 {sT0}, s2, 3\n s_or_b32 {sT0}, {sT0}, {sW}\n s_cmp_lg_u32 {sT0}, 0', 's_cbranch_scc1'): a.e('buffer_wbl2 sc1')
            pin.setdefault(s.o('wb', 0), []).append(wbl)
        for n in (0, 2, 5, 8, 11, 14, 17): pin.setdefault(8*n+7, []).append(s.F('P4'))
        left = sched(a, mf, pin, rds + [red2, Stream(q, 0, pace=s.o('pace4', 2))], [redS, red3]); s.lefts.append(left)
        s.stamp(11); s.fs('P4')
        xw1 = xwrite(1); s.run([xw1[k] for k in (0, 4, 1, 5, 2, 3)])
        a.waitall(vm=False); a.raw('s_barrier')
        s.fs('P4')
        s.run(xread2(1, TM+4))
        ac = ACC[1]
        tail = [f'v_pk_add_f32 {vr(ac+i,2)}, {vr(ac+i,2)}, {vr(ac+8+i,2)}' for i in range(0, 8, 2)]
        tail += [f'v_pk_add_f32 {vr(ac+16+i,2)}, {vr(ac+16+i,2)}, {vr(ac+24+i,2)}' for i in range(0, 8, 2)]
        tail += [f'v_pk_add_f32 {vr(ac+i,2)}, {vr(ac+i,2)}, {vr(ac+16+i,2)}' for i in range(0, 8, 2)]
        tail += [f'v_pk_fma_f32 {vr(RES+8+i,2)}, {vr(ac+i,2)}, {vr(TM+4,2)}, {vr(RES+8+i,2)} op_sel_hi:[1,0,1]' + (' neg_lo:[1,0,0] neg_hi:[1,0,0]' if l == 0 else '') for i in range(0, 8, 2)]
        tail += publish(1, True, sT0)
        if l == 0:
            d = Stream(s.tile_dma(s.bX2(), 0, nxt, sU0, LB, True) + s.stats_ld(0, 1, 0, 120, sU1) + s.tile_dma(s.bX2(), 1, nxt, sU0, LB, True)).items
            k = 0
            for n, it in enumerate(tail):
                if n % 4 == 0 and n < 24:
                    while k < len(d):
                        t = d[k].text if isinstance(d[k], Nm) else d[k]
                        s.run([d[k]]); k += 1
                        if t.startswith('buffer'): break
                s.run([it])
            s.run(d[k:])
            s.wql = 1; nxt['wqpre'] = s.o('wqpre', 4); s.run(s.wq_loads(0, nxt['wqpre']))
        else: s.run(tail)
        s.fs('P4')
        return nxt

    def main(s, fast):
        a = s.a; s.sc = '' if fast else ' sc1'; s.nfs = 0; s.pl = {}
        s.lc = '' if (fast and s.o('plainl', 0)) else ' sc1'; s.wc = '' if s.o('plainw', 0) else ' sc1'
        prev = {}
        s.l = 0
        s.kv_publish(0, 96, 88, 92)
        if not fast:
            for i in range(4): a.e(f'v_mov_b32 v{32+i}, 0')
            s.run(s.poison(32, ' sc1', 1)); a.waitall(); a.raw('s_barrier')
        for l in range(2):
            s.l = l
            if l == 1 and s.o('x_sc', 0): s.sc = ' sc1'
            st = s.P1(l, prev) if l else dict(s.st0)
            s.stamp(2)
            if s.stop == 'P1' + ('b' if l else ''): break
            st = s.Q(l, st)
            if s.stop == 'Q' + ('b' if l else ''): break
            st = s.P2(l, st)
            if s.stop == 'P2' + ('b' if l else ''): break
            st = s.P3(l, st)
            if s.stop == 'P3' + ('b' if l else ''): break
            prev = s.P4(l, st); s.stamp(12)
            if s.stop == 'P4' + ('b' if l else ''): break
        a.q = {'vm': [], 'lg': []}
        a.raw('s_branch Lfin')

    def build(s):
        a = s.a
        s.sc = ''; s.lc = ' sc1'; s.wc = ' sc1'; s.pl = {}
        s.startup()
        import copy
        q0 = {k: list(v) for k, v in a.q.items()}; tg0 = dict(a.tags)
        s.main(True)
        a.ins += a.cold; a.cold = []
        a.raw('Lslow:')
        a.q = {k: list(v) for k, v in q0.items()}; a.tags = tg0
        for k in a.q:
            for e in a.q[k]: e.done = False
        s.main(False)
        a.raw('Lfin:')
        a.e(f's_or_b32 {sT0}, s2, {sW}')
        with a.skip_if(f's_cmp_lg_u32 {sT0}, 0', 's_cbranch_scc1'):
            a.e(f'buffer_store_dword {vTag}, {vFlagOff}, {SWS}, 0 offen sc1')
        if s.prof:
            a.raw('s_waitcnt vmcnt(0)')
            a.raw(f's_memrealtime s[74:75]'); a.raw('s_waitcnt lgkmcnt(0)')
            if not s.kw.get('fine'):
                a.e(f's_mov_b32 s{sPR+25}, s74')
                a.raw(f's_memtime s[74:75]'); a.raw('s_waitcnt lgkmcnt(0)'); a.e(f's_sub_u32 s{sPR+13}, s74, s23')
            a.e(f's_lshl_b32 {sT0}, s2, 2\n s_add_u32 {sT0}, {sT0}, {sW}\n s_lshl_b32 {sT0}, {sT0}, 7\n s_add_u32 {sT0}, {sT0}, {PROF}')
            for i in range(26):
                a.e(f'v_mov_b32 v32, s{sPR+i}')
                a.e(f'buffer_store_dword v32, {vFlagOff}, {SWS}, {sT0} offen offset:{4*i}')
        a.raw('Lbail:'); a.raw('Lend:'); a.raw('s_endpgm'); a.ins += a.cold
        hdr = open('interleave_layers__linear_attn_block__dense_activation_relu__prompt.s.ref').read().split('\n')
        top = [l for l in hdr if l.startswith(';') and '@launch' not in l]
        txt = '\n'.join(top) + f'\n; @launch grid=(256,1,1) block=(256,1,1) lds={LDSZ}\n'
        txt += f'.amdgcn_target "amdgcn-amd-amdhsa--gfx950"\n.text\n.globl {KNAME}\n.p2align 8\n.type {KNAME},@function\n{KNAME}:\n'
        txt += a.text()
        txt += f'''.section .rodata,"a"
.p2align 6
.amdhsa_kernel {KNAME}
  .amdhsa_next_free_vgpr 512
  .amdhsa_next_free_sgpr 102
  .amdhsa_accum_offset 256
  .amdhsa_group_segment_fixed_size 0
  .amdhsa_kernarg_size 72
  .amdhsa_user_sgpr_count 2
  .amdhsa_user_sgpr_kernarg_segment_ptr 1
  .amdhsa_system_sgpr_workgroup_id_x 1
.end_amdhsa_kernel
'''
        return txt


if __name__ == '__main__':
    import argparse
    p = argparse.ArgumentParser(); p.add_argument('-o', default='k.s'); p.add_argument('--prof', action='store_true'); p.add_argument('--stop'); p.add_argument('--force'); p.add_argument('--opts', default='')
    x = p.parse_args()
    kw = dict(kv.split('=') for kv in x.opts.split(',') if kv)
    g = G(x.prof, x.stop, x.force, **kw)
    open(x.o, 'w').write(g.build())
    print('forced', getattr(g.a, 'forced', 0), 'left', g.lefts)
```

```python
import sys, math, struct
sys.path.insert(0, 'dev')
from asmlib import *
KNAME = "interleave_layers__linear_attn_block__dense_activation_relu__prompt_kernel"
EPOCH=0x0; XF=0x1000; PF=0x2000
KV1=0x200000; KV2=0x400000
WQF=0x500000; WOF=0x510000; W1F=0x600000; W2F=0x800000
W2S=43*4096
GA0=0x1000000; GAS=0x100000
A_O=0x00000; A_X1=0x20000; A_X2=0x40000; A_H=0x50000; A_HL=0x30000; A_ST=0xB0000; A_FL=0xB8000; A_JUNK=0xC0000
HRT=43*1024
PROF=0x4000000
LA=0; LB=0x10000; LC=0x20000; MISC=0x27000; LDSZ=0x28000
ST_RSTD=0; ST_NB=256; ST_RL=512; ST_NM=768
CSW1=2048; CSQ=2816
SWS='s[4:7]'; SOUT='s[8:11]'; SX='s[12:15]'; SQ='s[16:19]'; SP='s[20:23]'
sW,sM,sG,sXC,sJ,sT = 's24','s25','s26','s27','s28','s29'
sT0,sT1,sT2,sT3 = 's31','s3','s0','s1'
sU0,sU1 = 's30','s51'
sV0,sV1 = 's35','s36'
sGA='s32'; sFL='s33'; sFLme='s34'; sGW='s37'; sGO='s38'; sKV1='s39'; sKV2='s40'
sW4='s41'; sOW='s42'; sXme='s43'; sSTme='s44'
sOnes='s45'; sLo='s46'; sHi='s47'; sDelta='s48'; sLn2='s49'; sLog2e='s50'
sOdd='s[52:53]'; sAcc='s[54:55]'; sCm='s[56:57]'
sHst='s58'; sHst2='s59'; sHe='s60'; sHl='s61'; sW2e='s62'; sW2l='s63'
sA0='s64'; sA1='s65'; sSpin='s66'; sOme='s67'; sW2e2='s68'; sW2l2='s69'; sOutO='s70'; sWQ='s71'; sW1='s72'; sHd='s73'
sTch='s12'; sWQm='s13'; sW2m='s14'; sH5='s15'; sH6='s20'; sW26='s21'; sW262='s22'; sCb='s16'
sNeg='s17'; sM5='s18'; sSTw='s19'
sPdst='s64'; sPstr='s65'; sPmode='s35'; sPi='s36'; sPsrc='s58'; sPstep='s59'; sJ4='s33'; sGWr='s34'; sFm='s18'; sJr='s67'; sPF='s101'; sCs='s98'; sCl='s99'; sXt='s100'; sR='s79'; sXFa='s78'
def RX(l): return LA if l == 0 else LB
def RW(l): return LB if l == 0 else LA
sPR=76
vL16,vG16,vR4,vFl,vFlagOff,vTag,vStatLd,vStatSt,vStatW,vO8 = [f'v{i}' for i in range(0,10)]
vCsk,vCsv='v10','v11'; vT32='v6'; JUNK=MISC+3584
RES=12
vS0,vS1,vS2,vP='v28','v29','v30','v31'
WV=192; WK=192
XA=116
def vr(b,n=4): return f'v[{b}:{b+n-1}]'
def ar(b,n=4): return f'a[{b}:{b+n-1}]'
MF='v_mfma_f32_16x16x32_bf16'; MF16='v_mfma_f32_16x16x16_bf16'
def f2u(x): return struct.unpack('<I', struct.pack('<f', x))[0]
DPPF='row_mask:0xf bank_mask:0xf'

class G:
    def __init__(s, prof=False, stop=None, force=None, **kw):
        s.a = Asm(); s.prof = prof; s.stop = stop; s.force = force; s.kw = kw; s.nfs = 0; s.l = 0; s.lefts = []
        s.a.notags = bool(s.o('x_nold', 0))
        s.nt1 = ' nt' if s.o('nt1', 0) else ''; s.nt0 = ' nt' if s.o('nt0', 0) else ''
    def o(s, k, d): return int(s.kw.get(k, d))
    def bO(s, l): return A_O + (0 if s.o('alias', 1) else l*0x10000)
    def bX1(s, l): return A_X1 + (0 if s.o('alias', 1) else l*0x10000)
    def bX2(s): return A_X1 if s.o('alias', 1) else A_X2
    def bH(s, l): return A_H + (0 if s.o('alias', 1) else l*A_HL)
    def bST(s, l, kind): return A_ST + (0 if s.o('alias', 1) else kind*8192 + l*16384)
    def bKV1(s, l): return l*0x100000
    def fs(s, ph):
        if s.kw.get('fine') != ph or (ph != 'S' and s.l != s.o('fl', 1)): return
        k = s.nfs; s.nfs += 1
        assert k < 13
        if ph == 'S':
            s.a.raw('s_memrealtime s[74:75]' if s.o('rt', 0) else 's_memtime s[74:75]'); s.a.waitall(vm=False); s.a.e(f'v_writelane_b32 v30, s74, {2*k}'); return
        s.a.raw(f's_memtime s[{sPR+2*k}:{sPR+2*k+1}]')
    def F(s, ph): return lambda: s.fs(ph)
    def stamp(s, idx):
        if not s.prof or s.kw.get('fine'): return
        a = s.a
        if s.o('dbg', 0) and idx + 12*s.l in (18, 19): return
        if s.o('spins', 0):
            a.e(f's_mov_b32 s{sPR+idx+(12*s.l if idx >= 2 else 0)}, {sSpin}'); return
        a.raw(f's_memrealtime s[74:75]'); a.waitall(vm=False)
        if idx < 2:
            a.e(f's_mov_b32 s{sPR+idx}, s74')
            a.raw(f's_memtime s[74:75]'); a.waitall(vm=False); a.e('s_mov_b32 s23, s74')
        else: a.e(f's_mov_b32 s{sPR+idx+12*s.l}, s74')
    def spin_guard(s):
        s.a.e(f's_sub_u32 {sSpin}, {sSpin}, 1'); s.a.raw('s_cbranch_scc1 Lbail')
    def floff(s, l, hop, half): return l*1024 + hop*256 + half*128
    def poll_ld(s, l, hop, half): return Nm(f'buffer_load_dword {vP}, {vFl}, {SWS}, {sGW} offen offset:{hop*128} sc1', s.pl, (l,hop,half))
    def poll_check(s, l, hop, half):
        a = s.a
        assert list(s.pl)[-1] == (l,hop,half), (list(s.pl), l, hop, half)
        a.e(f'v_cmp_ne_u32 vcc, {sT}, {vP}')
        with a.rare(None, 's_cbranch_vccnz'):
            lb = a.label('Lpoll'); a.raw(f'{lb}:'); s.spin_guard()
            a.e(s.poll_ld(l, hop, half).text); a.waitall(lg=False)
            a.e(f'v_cmp_ne_u32 vcc, {sT}, {vP}'); a.raw(f's_cbranch_vccnz {lb}')
    def flag_st(s, l, hop, half): return f'buffer_store_dword {vTag}, {vFlagOff}, {SWS}, {sFm} offen offset:{hop*128}{s.sc}'
    def stats_fin(s, u, t0, t1, vaddr, off, d=None, key=None):
        last = f'ds_write_b32 {vaddr}, {t0} offset:{off+ST_RL}'
        return [f'v_mul_f32 {u}, 0x{f2u(-1/512):x}, {u}', f'v_mul_f32 {t0}, 0x{f2u(1/512):x}, {t0}',
                f'v_fma_f32 {t0}, -{u}, {u}, {t0}', f'ds_write_b32 {vaddr}, {u} offset:{off+ST_NM}', f'v_max_f32 {t0}, 0, {t0}', f'v_add_f32 {t0}, 0x{f2u(1e-5):x}, {t0}',
                f'v_rsq_f32 {t0}, {t0}', f'v_mul_f32 {t1}, {u}, {t0}',
                f'ds_write_b32 {vaddr}, {t0} offset:{off+ST_RSTD}', f'v_mul_f32 {t0}, {sLog2e}, {t0}',
                f'ds_write_b32 {vaddr}, {t1} offset:{off+ST_NB}', Nm(last, d, key) if d is not None else last]
    def stats_ld(s, l, kind, hf, b, st):
        return [f's_add_u32 {st}, {sSTw}, {s.bST(l,kind)+hf*4096}', f'buffer_load_dwordx4 {vr(b)}, {vL16}, {SWS}, {st} offen sc1']
    def stats_use(s, kind, hf, b, d, key):
        x, y, t = f'v{b}', f'v{b+1}', f'v{b+2}'
        L = [f'v_add_f32 {x}, v{b}, v{b+2}', f'v_add_f32 {y}, v{b+1}, v{b+3}', 's_nop 0']
        for m in ('quad_perm:[1,0,3,2]', 'quad_perm:[2,3,0,1]', 'row_half_mirror'):
            L += [f'v_add_f32_dpp {x}, {x}, {x} {m} {DPPF}', f'v_add_f32_dpp {y}, {y}, {y} {m} {DPPF}']
        return L + s.stats_fin(x, y, t, vStatW, (1-kind)*1024 + hf*128, d, key)
    def tile_dma(s, off, rt, d, st, reg, x2=False):
        L = [f's_add_u32 m0, {sW4}, {reg+rt*16384}', f's_add_u32 {st}, {sGWr}, {off+rt*16384}']
        if x2 and not s.o('rot1', 0): L = [L[0], f's_add_u32 {st}, {sGA}, m0', f's_add_u32 {st}, {st}, {(off-reg) & 0xffffffff}']
        L += [f'buffer_load_dwordx4 {vL16}, {SWS}, {st} offen offset:{i*1024}{s.lc} lds' for i in range(3)]
        L.append(Nm(f'buffer_load_dwordx4 {vL16}, {SWS}, {st} offen offset:3072{s.lc} lds', d, ('dma', rt)))
        return L
    def x_pub(s, l, kind, hf, pk, t0, t1, d, key, usedot, st):
        r = RES + 8*hf
        L = [f'v_cvt_pk_bf16_f32 v{pk+i}, v{r+2*i}, v{r+2*i+1}' for i in range(4)]
        b = 1 - kind
        tag = lambda v: f'v_or_b32 {v}, 1, {v}' if b else f'v_and_b32 {v}, -2, {v}'
        L += [tag(f'v{pk}'), tag(f'v{pk+2}')]
        L.append(f's_add_u32 {st}, {sXme}, {(s.bX2() if kind else s.bX1(l)) + hf*32768}')
        L.append(f'buffer_store_dwordx4 {vr(pk)}, {vL16}, {SWS}, {st} offen{s.sc}')
        if usedot:
            L += [f'v_dot2_f32_bf16 {t0}, v{pk}, {sOnes}, 0', f'v_dot2_f32_bf16 {t1}, v{pk}, v{pk}, 0']
            for i in range(1,4): L += [f'v_dot2_f32_bf16 {t0}, v{pk+i}, {sOnes}, {t0}', f'v_dot2_f32_bf16 {t1}, v{pk+i}, v{pk+i}, {t1}']
        else:
            L += [f'v_add_f32 {t0}, v{r}, v{r+1}', f'v_mul_f32 {t1}, v{r}, v{r}', f'v_fmac_f32 {t1}, v{r+1}, v{r+1}']
            for i in range(2,8): L += [f'v_add_f32 {t0}, {t0}, v{r+i}', f'v_fmac_f32 {t1}, v{r+i}, v{r+i}']
        L.append(f's_add_u32 {st}, {sSTme}, {s.bST(l,kind)+hf*4096}')
        L += [f'v_permlane16_swap_b32 {t0}, {t1}', f'v_add_f32 {t0}, {t0}, {t1}', f'v_mov_b32 {t1}, {t0}',
              f'v_permlane32_swap_b32 {t0}, {t1}', f'v_add_f32 {t0}, {t0}, {t1}', tag(t0),
              Nm(f'buffer_store_dword {t0}, {vStatSt}, {SWS}, {st} offen{s.sc}', d, key)]
        return L
    def comb8(s, R, t, b):
        op = '0x80' if b else '0xfe'
        return [f'v_bitop3_b32 {R[0]}, {R[0]}, {R[1]}, {R[2]} bitop3:{op}', f'v_bitop3_b32 {R[3]}, {R[3]}, {R[4]}, {R[5]} bitop3:{op}',
                f'v_bitop3_b32 {R[0]}, {R[0]}, {R[3]}, {R[6]} bitop3:{op}', f'v_bitop3_b32 {R[0]}, {R[0]}, {R[7]}, 1 bitop3:{"0x80" if b else "0xa8"}',
                f'v_cmp_ne_u32 {sCm}, {b}, {R[0]}']
    def ver(s, mode, VB, off, b):
        if mode == 'b128':
            rd = [f'ds_read_b128 {vr(VB+4*i)}, {vS0} offset:{off+i*1024}' for i in range(4)]
            R = [f'v{VB+4*i+k}' for i in range(4) for k in (0, 2)]
        else:
            o = off // 256
            rd = [f'ds_read2st64_b32 {vr(VB+2*i,2)}, {(vS0,vS1)[i%2]} offset0:{o+8*(i//2)} offset1:{o+8*(i//2)+4}' for i in range(4)]
            R = [f'v{VB+i}' for i in range(8)]
        return rd, s.comb8(R, None, b)
    def ver_branch(s, dma, mode, VB, off, b):
        a = s.a
        with a.rare(f's_cmp_lg_u64 {sCm}, 0', 's_cbranch_scc1'):
            a.e(f's_mov_b32 {sT3}, m0')
            lb = a.label('Lver'); a.raw(f'{lb}:'); s.spin_guard()
            for it in dma: a.e(it.text if isinstance(it, Nm) else it)
            a.waitall(lg=False)
            rd, va = s.ver(mode, VB, off, b)
            s.run(rd + va)
            a.e(f's_nop 1\n s_cmp_lg_u64 {sCm}, 0'); a.raw(f's_cbranch_scc1 {lb}')
            a.e(f's_mov_b32 m0, {sT3}')
    def stats_chk(s, l, kind, hf, b):
        a = s.a; t = 1 - kind; x = vP
        chk = [f'v_bitop3_b32 {x}, v{b}, v{b+1}, v{b+2} bitop3:{"0x80" if t else "0xfe"}', f'v_bitop3_b32 {x}, {x}, v{b+3}, 1 bitop3:{"0x80" if t else "0xa8"}']
        def br():
            a.e(f'v_cmp_ne_u32 vcc, {t}, {x}')
            with a.rare(None, 's_cbranch_vccnz'):
                lb = a.label('Lstc'); a.raw(f'{lb}:'); s.spin_guard()
                s.run(s.stats_ld(l, kind, hf, b, sT0)); a.waitall(lg=False); s.run(chk)
                a.e(f'v_cmp_ne_u32 vcc, {t}, {x}'); a.raw(f's_cbranch_vccnz {lb}')
        return chk + [br]
    def poison(s, z, sc, part=3, t0=sT0, t1=sT1):
        x = f'buffer_store_dwordx4 {vr(z)}, {vL16}, {SWS}, {t0} offen{sc}'
        L = []
        if part & 1:
            L += [f's_and_b32 {t1}, {sW}, 1', f's_lshl_b32 {t1}, {t1}, 15', f's_add_u32 {t0}, {sOme}, {t1}', x, f's_add_u32 {t0}, {t0}, 16384', x,
                  f's_add_u32 {t0}, {sXme}, {A_X1}', x, f's_add_u32 {t0}, {sXme}, {A_X1+32768}', x]
            for hf in range(2): L += [f's_add_u32 {t0}, {sSTme}, {A_ST+hf*4096}', f'buffer_store_dword v{z}, {vStatSt}, {SWS}, {t0} offen{sc}']
        if part & 2:
            for rt in range(4): L += [f's_add_u32 {t0}, {sHst}, {A_H+rt*HRT}', x]
            L += [f's_and_b32 {t1}, {sW}, 1', f's_mul_i32 {t1}, {t1}, {2*HRT}', f's_add_u32 {t0}, {sHst2}, {t1}', f's_add_u32 {t0}, {t0}, {A_H}', x, f's_add_u32 {t0}, {t0}, {HRT}', x]
        return L
    def run(s, L):
        for it in L:
            if isinstance(it, Nm): it.d[it.key] = s.a.e(it.text)
            elif isinstance(it, (At, By)): pass
            elif callable(it): it()
            else: s.a.e(it)
    def wq_loads(s, lo=0, hi=16):
        L = []
        for ks in range(lo, hi):
            if ks % 4 == 0 or ks == lo: L += ([f's_add_u32 {sU0}, {sJ4}, {(ks//4)*4096}', f's_and_b32 {sU0}, {sU0}, 0x3fff', f's_add_u32 {sU0}, {sU0}, {sWQ}'] if s.o('rot1', 0) else [f's_add_u32 {sU0}, {sWQ}, {(ks//4)*4096}'])
            L.append(f'buffer_load_dwordx4 {vr(128+4*ks)}, {vL16}, {SWS}, {sU0} offen offset:{(ks%4)*1024}{s.wc} ; @wq{s.wql}')
        return L
    def wo_dma(s, d, lo=0, hi=4):
        if s.l == 1 and s.o('x_nowo', 0): return [Nm('ds_read_b32 v31, v0', d, 'wo')]
        L = []
        for i in range(lo, hi):
            L += [f's_add_u32 {sU1}, {sJ4}, {i*4096}', f's_and_b32 {sU1}, {sU1}, 0x3fff', f's_lshl_b32 {sU0}, {sW4}, 2', f's_add_u32 {sU0}, {sU0}, {sU1}',
                  f's_add_u32 m0, {sU0}, {RW(s.wql)}', f's_add_u32 {sU0}, {sWQ}, {sU1}', f's_add_u32 {sU0}, {sU0}, {WOF-WQF}']
            L += [f'buffer_load_dwordx4 {vL16}, {SWS}, {sU0} offen offset:{k*1024}{s.wc} lds' for k in range(4)]
        if L: L[-1] = Nm(L[-1], d, 'wo')
        return L
    def w1_loads(s, lo, hi):
        L = []
        for n in range(lo, hi):
            kq, r = divmod(n, 12); slot, k4 = divmod(r, 4); ks = 4*kq + k4
            if ks % 4 == 0 or n == lo:
                L += [f's_add_u32 {sU1}, {sJ4}, {(ks//4)*4096}', f's_and_b32 {sU1}, {sU1}, 0x3fff', f's_lshl_b32 {sU0}, {sW4}, {3 if slot < 2 else 2}',
                      f's_add_u32 {sU0}, {sU0}, {sU1}', f's_add_u32 {sU0}, {sU0}, {sW1}', f's_add_u32 {sU0}, {sU0}, {(slot if slot < 2 else 8)*16384}']
            L.append(f'buffer_load_dwordx4 {ar(64*slot+4*ks)}, {vL16}, {SWS}, {sU0} offen offset:{(ks%4)*1024}{s.wc}{s.nt1} ; @w1')
        return L
    def w2_dma(s, i, d):
        if s.l == 1 and s.o('x_now2', 0): return [Nm('ds_read_b32 v31, v0', d, i)]
        if i <= 4:   m = [f's_lshl_b32 {sU0}, {sW4}, 2', f's_add_u32 m0, {sU0}, {RX(s.l)+(i-1)*4096}']
        elif i <= 6: m = [f's_add_u32 m0, {sCb}, {(i-5)*4096}']
        else:        m = [f's_add_u32 m0, {sW4}, {RW(s.l)+(i-7)*16384}']
        b1, b2, o = (sW2e, sW2e2, i*4096) if i <= 5 else ((sW26, sW262, 0) if i == 6 else (sW2l, sW2l2, (i-7)*4096))
        x = f'buffer_load_dwordx4 {vL16}, {SWS}, '
        return m + [f's_add_u32 {sU0}, {b1}, {o}', f's_add_u32 {sU1}, {b2}, {o}', x+f'{sU0} offen{s.wc} lds', x+f'{sU0} offen offset:1024{s.wc} lds',
                    x+f'{sU1} offen offset:2048{s.wc} lds', Nm(x+f'{sU1} offen offset:3072{s.wc} lds', d, i)]
    def touch(s, base_s, off, junk, lim=None, nt=''):
        L = [f's_add_u32 {sU0}, {sTch}, {base_s}', f's_add_u32 {sU0}, {sU0}, {off}']
        if lim is not None: L.append(f's_cmp_ge_u32 {sTch}, {lim*8192}\ns_cselect_b32 {sU0}, 0x40000000, {sU0}')
        L = [lambda L=L: s.run(L)]
        return L + [f'v_lshlrev_b32 v{junk}, 3, {vL16}', f'buffer_load_dword v{junk}, v{junk}, {SWS}, {sU0} offen{s.wc}{nt}']
    def t4(s, base_s, off, k, npieces):
        L = [f's_add_u32 {sU0}, {sTch}, {base_s}', f's_add_u32 {sU0}, {sU0}, {off + k*65536}', f's_mov_b32 m0, {JUNK}']
        if 16*k + 16 > npieces:
            L = [lambda L=L: s.run(L + [f's_cmp_ge_u32 {sTch}, {(npieces-16*k)*4096}', f's_cselect_b32 {sU0}, 0x40000000, {sU0}'])]
        return L + [f'buffer_load_dword {vT32}, {SWS}, {sU0} offen lds']
    def tq(s, k): return s.t4(sWQm, WQF, k, 32)
    def t1(s, k): return s.t4(sW1, 0, k, 48)
    def t2(s, k): return s.t4(sW2m, 0, k, 43)
    def touch_s(s, setup, junk):
        return [lambda: s.run(setup + [f's_mov_b32 m0, {JUNK}']), f'v_lshlrev_b32 {vP}, 3, {vL16}', f'buffer_load_dword {vP}, {SWS}, {sU0} offen lds']
    def touch_oxs(s, junk):
        return s.touch_s([f's_lshl_b32 {sU0}, {sM}, 13', f's_add_u32 {sU0}, {sU0}, {sGA}', f's_cmp_eq_u32 {sW}, 1', f's_cselect_b32 {sU1}, {A_X1}, 0',
                          f's_cmp_eq_u32 {sW}, 2', f's_cselect_b32 {sU1}, {A_ST}, {sU1}', f's_add_u32 {sU0}, {sU0}, {sU1}',
                          f's_cmp_ge_u32 {sM}, 2', f's_cselect_b32 {sU1}, 2, 9', f's_cmp_eq_u32 {sW}, {sU1}', f's_cselect_b32 {sU0}, 0x40000000, {sU0}',
                          f's_cmp_eq_u32 {sW}, 3', f's_cselect_b32 {sU0}, 0x40000000, {sU0}'], junk)
    def touch_h(s, junk):
        return s.touch_s([f's_lshl_b32 {sU0}, {sW}, 3', f's_add_u32 {sU0}, {sU0}, {sM}', f's_cmp_ge_u32 {sU0}, 22', f's_cselect_b32 {sU1}, 0x40000000, {sGA}',
                          f's_lshl_b32 {sU0}, {sU0}, 13', f's_add_u32 {sU0}, {sU0}, {sU1}', f's_add_u32 {sU0}, {sU0}, {A_H}'], junk)
    def touch_small(s, junk):
        return [f'v_lshlrev_b32 v{junk}, 5, {vFl}', f'v_cmp_gt_u32 vcc, 64, {vFl}', f's_lshl_b32 {sU0}, {sW}, 11', f's_add_u32 {sU0}, {sU0}, {A_ST-2048}',
                f'v_mov_b32 v{junk+1}, {sU0}', f'v_mov_b32 v{junk+2}, {A_FL}', f'v_cndmask_b32 v{junk+1}, v{junk+1}, v{junk+2}, vcc', f'v_add_u32 v{junk}, v{junk}, v{junk+1}',
                f'buffer_load_dword v{junk}, v{junk}, {SWS}, {sGA} offen sc1']
    def touch_kv2(s, l, junk):
        return s.touch_s([f's_add_u32 {sU0}, {sKV2}, {l*0x40000}'], junk)
    def touch_kv1(s, l, junk):
        return [lambda: s.run([f's_add_u32 {sU0}, {sKV1}, {l*0x100000}', f's_cmp_lg_u32 {sW}, {sJ}', f's_cselect_b32 {sU0}, 0x40000000, {sU0}', f's_mov_b32 m0, {JUNK}']),
                f'buffer_load_dword {vT32}, {SWS}, {sU0} offen lds']
    def held(s, HELD=176):
        return [f'buffer_load_dwordx4 {vr(HELD)}, {vL16}, {SWS}, {sW2e} offen{s.wc} ; @held{s.l}', f'buffer_load_dwordx4 {vr(HELD+4)}, {vL16}, {SWS}, {sW2e} offen offset:1024{s.wc} ; @held{s.l}',
                f'buffer_load_dwordx4 {vr(HELD+8)}, {vL16}, {SWS}, {sW2e2} offen offset:2048{s.wc} ; @held{s.l}', f'buffer_load_dwordx4 {vr(HELD+12)}, {vL16}, {SWS}, {sW2e2} offen offset:3072{s.wc} ; @held{s.l}']
    def colsum_w1(s, slot, CS, ONES):
        return [f'{MF} {vr(CS+4*slot)}, {ar(64*slot+4*ks)}, {vr(ONES)}, {"0" if ks==0 else vr(CS+4*slot)}' for ks in range(16)]

    def startup(s):
        a = s.a
        t2, t3 = 's54', 's55'
        a.e('s_cmp_ge_u32 s2, 256'); a.raw('s_cbranch_scc1 Lend')
        s.fs('S')
        a.raw('s_load_dwordx16 s[80:95], s[0:1], 0'); a.raw('s_load_dwordx2 s[96:97], s[0:1], 64')
        if s.prof: a.raw(f's_memrealtime s[74:75]')
        a.e(f's_getpc_b64 s[62:63]'); a.raw('Lpc0:')
        a.e(f"""s_lshr_b32 {sR}, s2, 3
            v_lshlrev_b32 v32, 4, v0
            s_lshl_b32 {sT1}, {sR}, 12
            s_and_b32 s62, s62, -16
            s_cmp_lt_u32 {sT1}, Lslow-Lpc0
            s_cselect_b32 {sT1}, {sT1}, 0
            v_add_u32 v32, {sT1}, v32
            global_load_dwordx4 v[144:147], v32, s[62:63]
            v_lshrrev_b32 v32, 6, v0
            v_and_b32 v33, 63, v0
            v_readfirstlane_b32 {sW}, v32
            s_and_b32 {sXC}, s2, 7
            s_lshr_b32 {sJ}, {sR}, 3
            s_and_b32 {sM}, {sR}, 7
            s_lshl_b32 {sG}, {sXC}, 2
            s_add_u32 {sG}, {sG}, {sJ}
            v_lshrrev_b32 v34, 4, v33
            v_and_b32 v35, 15, v33
            v_lshrrev_b32 v36, 3, v33
            v_and_b32 v37, 7, v33
            v_lshlrev_b32 v39, 7, v33
            v_min_u32 v38, 11, v35
            v_lshlrev_b32 v38, 7, v38
            v_and_b32 v42, 3, v33
            v_lshlrev_b32 v42, 7, v42
            v_xor_b32 v54, v34, v35
            v_lshlrev_b32 v54, 4, v54
            v_lshl_add_u32 v41, v34, 10, v54
            s_lshl_b32 s60, {sXC}, 18
            s_lshl_b32 s61, {sR}, 13
            s_add_u32 s60, s60, s61
            s_cmp_eq_u32 {sW}, 0
            s_cselect_b32 s60, s60, 0x40000000
            v_xor_b32 v45, 64, v41
            v_xor_b32 v46, 128, v41
            v_xor_b32 v47, 192, v41
            s_mov_b32 s63, 0
            s_lshl_b32 s61, s2, 2
            s_add_u32 s61, s61, {sW}
            s_lshr_b32 s62, s61, 1
            s_mul_i32 s62, s62, 3072
            s_lshl_b32 s59, s61, 9
            s_and_b32 s61, s61, 1
            s_mul_i32 s61, s61, 1536
            s_add_u32 s61, s62, s61
            s_mov_b32 s6, 0x10000000
            s_mov_b32 s7, 0x20000
            s_mov_b32 s22, 0x80000
            s_mov_b32 s23, 0x20000
            s_mov_b32 s18, 0x180000
            s_mov_b32 s19, 0x20000
            s_mov_b32 s14, 0x200000
            s_mov_b32 s15, 0x20000
            s_lshl_b32 s56, {sG}, 16
            s_lshl_b32 s57, {sW}, 14
            s_add_u32 s56, s56, s57
            s_mul_i32 {sCs}, {sW}, {8*3072}
            s_lshl_b32 {sT1}, {sM}, 7
            s_add_u32 {sCs}, {sCs}, {sT1}
            s_add_u32 {sCs}, {sCs}, 1024
            s_lshl_b32 {sCl}, {sW}, 10
            s_add_u32 {sCl}, {sCl}, {LB}
            v_bfe_u32 v40, v36, 1, 1
            s_and_b32 {sT1}, {sW}, 1
            s_lshl_b32 {sT0}, {sT1}, 1
            v_or_b32 v40, {sT0}, v40
            v_lshlrev_b32 v40, 1, v40
            v_xor_b32 v40, v40, v37
            v_lshlrev_b32 v40, 4, v40
            s_movk_i32 {sT0}, 3072
            v_mad_u32_u24 v40, v36, {sT0}, v40""")
        a.raw('s_waitcnt lgkmcnt(0)')
        if s.prof: a.e(f's_mov_b32 s{sPR}, s74')
        s.fs('S')
        D = {}
        def xq(q): return [[f's_add_u32 m0, s57, {q*4096+rq*1024}', f's_add_u32 {sU0}, s56, {rq*4096+q*256}',
                            f'buffer_load_dwordx4 {["v41","v45","v46","v47"][rq]}, {SX}, {sU0} offen lds'] for rq in range(4)]
        def chunk_dma(c):
            return [[f's_add_u32 m0, {sCl}, {(c%4)*16384 + t*4096}', f's_add_u32 {sU0}, {sCs}, {c*64*3072 + (t%2)*32*3072 + (t//2)*1024}',
                     Nm(f'buffer_load_dwordx4 v40, {SQ}, {sU0} offen lds', D, ('c', c))] for t in range(4)]
        a.e('s_mov_b32 s12, s80\n s_mov_b32 s13, s81\n s_mov_b32 s16, s82\n s_mov_b32 s17, s83')
        a.e(f'buffer_load_dword v141, v39, {SX}, s60 offen')
        a.e(f'buffer_load_dword v139, v38, {SQ}, s61 offen')
        a.e('s_mov_b32 s4, s96\n s_mov_b32 s5, s97\n s_mov_b32 s20, s84\n s_mov_b32 s21, s85')
        eE = a.e(f'buffer_load_dword v43, off, {SWS}, 0 sc1')
        s.run(sum(xq(0) + chunk_dma(0)[:s.o('s_c0', 2)], []))
        if s.o('s_two', 0): a.e(f'buffer_load_dword v138, v42, {SP}, s59 offen')
        s.fs('S')
        a.e(f"""s_mov_b32 s10, 0x200000
            s_mov_b32 s11, 0x20000
            v_lshlrev_b32 {vL16}, 4, v33
            s_lshl_b32 {sW4}, {sW}, 12
            s_lshl_b32 {sJ4}, {sJ}, 12
            v_mov_b32 v42, 0""")
        def groups(L):
            G = []; cur = []
            for x in Stream(L).items:
                cur.append(x); t = x.text if isinstance(x, Nm) else x
                if t.startswith('buffer'): G.append(cur); cur = []
            if cur: G[-1] += cur
            return G
        def mix(work, G, first=0):
            work = Stream(work).items; n = len(G); k = 0
            for idx, it in enumerate(work):
                while k < n and idx >= first + (len(work)-first)*k//n and not it.startswith('s_cselect'): s.run(G[k]); k += 1
                s.run([it])
            while k < n: s.run(G[k]); k += 1
        mix([f"""s_lshl_b32 {sGA}, {sG}, 20
            s_add_u32 {sGA}, {sGA}, {GA0}
            s_lshl_b32 {sT0}, {sM}, 2
            s_add_u32 {sT0}, {sT0}, {sW}
            s_lshl_b32 {sKV1}, {sXC}, 17
            s_lshl_b32 {sT1}, {sT0}, 12
            s_add_u32 {sKV1}, {sKV1}, {sT1}
            s_add_u32 {sKV1}, {sKV1}, {KV1}
            s_lshl_b32 {sKV2}, {sT0}, 13
            s_add_u32 {sKV2}, {sKV2}, {KV2}
            s_lshr_b32 {sT0}, {sW}, 1
            s_and_b32 {sT1}, {sW}, 1
            s_lshl_b32 {sOW}, {sT0}, 14
            s_lshl_b32 {t2}, {sM}, 1
            s_add_u32 {t2}, {t2}, {sT1}
            s_lshl_b32 {sXme}, {t2}, 10
            s_add_u32 {sXme}, {sXme}, {sOW}
            s_add_u32 {sXme}, {sXme}, {sGA}
            s_lshl_b32 {sSTme}, {sT0}, 11
            s_lshl_b32 {t3}, {t2}, 3
            s_add_u32 {sSTme}, {sSTme}, {t3}
            s_add_u32 {sSTme}, {sSTme}, {sGA}
            s_lshl_b32 {sOutO}, {sG}, 16
            s_add_u32 {sOutO}, {sOutO}, {sOW}
            s_lshl_b32 {t3}, {t2}, 6
            s_add_u32 {sOutO}, {sOutO}, {t3}
            v_lshl_add_u32 v{XA}, v35, 8, v54
            s_and_b32 {t3}, {t2}, 3
            s_lshl_b32 {t3}, {t3}, 6
            v_xor_b32 v55, {t3}, v{XA}
            s_lshr_b32 {t3}, {t2}, 2
            s_sub_u32 {t3}, {t3}, s63
            s_and_b32 {t3}, {t3}, 3
            s_lshl_b32 {t3}, {t3}, 12
            s_add_u32 {t3}, {t3}, {sOW}
            v_add_u32 v55, {t3}, v55
            s_lshl_b32 {t3}, {sT1}, 12
            s_add_u32 {sOW}, {sOW}, {t3}
            s_add_u32 {sGO}, {sGA}, {sOW}
            s_lshl_b32 {sOme}, {sM}, 1
            s_add_u32 {sOme}, {sOme}, {sT0}
            s_lshl_b32 {sOme}, {sOme}, 10
            s_add_u32 {sOme}, {sOme}, {sGA}
            v_mov_b32 v48, 0x40000000
            v_lshlrev_b32 v49, 2, v34
            v_lshl_add_u32 {vStatSt}, v35, 7, v49
            v_cmp_gt_u32 vcc, 32, v33
            v_cndmask_b32 {vStatSt}, v48, {vStatSt}, vcc
            v_cndmask_b32 {vT32}, v48, v39, vcc
            s_add_u32 {sGWr}, {sW4}, {sJ4}
            s_and_b32 {sGWr}, {sGWr}, 0x3fff
            s_add_u32 {sGWr}, {sGWr}, {sGA}
            s_mov_b32 s8, s92
            s_mov_b32 s9, s93
            v_xor_b32 v{XA+1}, 64, v{XA}
            v_xor_b32 v{XA+2}, 128, v{XA}
            v_xor_b32 v{XA+3}, 192, v{XA}
            s_and_b32 {sT1}, {sW}, 1
            v_lshlrev_b32 {vG16}, 4, v34
            v_add_u32 {vG16}, {MISC}, {vG16}
            v_lshlrev_b32 {vR4}, 2, v35
            v_add_u32 {vR4}, {MISC}, {vR4}
            v_and_b32 {vFl}, 31, v33
            v_lshlrev_b32 {vFl}, 2, {vFl}
            v_cmp_eq_u32 vcc, 0, v33
            s_lshl_b32 {sT0}, {sT1}, 3
            v_add_u32 {vO8}, {sT0}, {vL16}
            v_cndmask_b32 {vFlagOff}, v48, v42, vcc
            s_lshl_b32 {sT0}, {sW}, 3
            v_add_u32 {vStatW}, {sT0}, v36
            v_lshlrev_b32 {vStatW}, 2, {vStatW}
            v_add_u32 {vStatW}, {MISC}, {vStatW}
            v_lshrrev_b32 v50, 2, v35
            v_and_b32 v49, 3, v33
            v_lshl_add_u32 v51, v34, 3, v50
            v_lshlrev_b32 v51, 7, v51
            v_lshl_add_u32 v51, v49, 3, v51
            v_lshl_add_u32 v52, v34, 2, v50
            v_lshlrev_b32 v52, 7, v52
            v_lshl_add_u32 v52, v49, 4, v52
            s_add_u32 {sT0}, {sW4}, {LC}
            v_add_u32 v53, {sT0}, v51
            v_add_u32 v52, {sT0}, v52
            v_lshrrev_b32 v54, 1, v50
            v_and_b32 v56, 1, v34
            v_lshl_or_b32 v54, v56, 1, v54
            v_xor_b32 v54, {sW}, v54
            v_lshl_add_u32 v51, v54, 5, v51
            v_add_u32 v51, {LB}, v51
            s_mov_b32 {sOnes}, 0x3F803F80
            s_mov_b32 {sLo}, 0x00003F80
            s_mov_b32 {sHi}, 0x3F800000
            s_mov_b32 {sDelta}, 0x{f2u(1e-6*math.log2(math.e)):x}
            s_mov_b32 {sLn2}, 0x{f2u(math.log(2)):x}
            s_mov_b32 {sLog2e}, 0x{f2u(math.log2(math.e)):x}
            v_mov_b32 v112, {sOnes}
            v_mov_b32 v113, {sOnes}
            v_mov_b32 v114, {sOnes}
            v_mov_b32 v115, {sOnes}
            v_cmp_eq_u32 vcc, v34, v50
            s_lshl_b32 {sT0}, {sW}, 6
            v_add_u32 v54, {sT0}, {vR4}
            v_mov_b32 v56, {JUNK-768}
            v_cndmask_b32 v54, v56, v54, vcc"""], chunk_dma(0)[s.o('s_c0', 2):] + chunk_dma(1), 60)
        W = []
        a.e(f"""s_mul_i32 {sPi}, s2, 3
            s_add_u32 {sPi}, {sPi}, {sW}
            s_add_u32 {sPi}, {sPi}, 255
            s_cmp_eq_u32 {sW}, 0
            s_cselect_b32 {sPi}, s2, {sPi}
            s_and_b32 s63, {sPi}, 7
            s_lshr_b32 {sPi}, {sPi}, 3
            s_lshl_b32 s52, s63, 7""")
        la = [a.label('Lpp') for _ in range(4)]
        def arm(ptr, size, stride, body, dstride, mode):
            a.e(f's_mov_b32 s20, s{ptr}\n s_mov_b32 s21, s{ptr+1}\n s_mov_b32 s22, {size}\n s_movk_i32 s53, {stride}\n' + body + f'\n s_movk_i32 {sPstr}, {dstride}\n s_mov_b32 {sPmode}, {mode}')
        a.e(f's_cmp_lt_u32 {sPi}, 16'); a.raw(f's_cbranch_scc0 {la[0]}')
        arm(84, 0x80000, 1024, f's_mov_b32 s54, {sPi}\n s_lshl_b32 {sPdst}, s63, 17\n s_lshl_b32 s62, {sPi}, 12\n s_add_u32 {sPdst}, {sPdst}, s62\n s_add_u32 {sPdst}, {sPdst}, {WOF}', 1024, 1)
        a.raw(f's_branch {la[3]}'); a.raw(f'{la[0]}:')
        a.e(f's_cmp_lt_u32 {sPi}, 32'); a.raw(f's_cbranch_scc0 {la[1]}')
        arm(82, 0x180000, 3072, f's_sub_u32 s54, {sPi}, 16\n s_lshl_b32 {sPdst}, s63, 17\n s_lshl_b32 s62, s54, 10\n s_add_u32 {sPdst}, {sPdst}, s62\n s_add_u32 {sPdst}, {sPdst}, {WQF}', 16384, 0)
        a.raw(f's_branch {la[3]}'); a.raw(f'{la[1]}:')
        a.e(f's_cmp_lt_u32 {sPi}, 80'); a.raw(f's_cbranch_scc0 {la[2]}')
        arm(88, 512*1376*2, 2752, f"""s_sub_u32 s62, {sPi}, 32
            s_and_b32 s54, s62, 15
            s_lshr_b32 s62, s62, 4
            s_min_u32 s52, s63, 3
            s_mul_i32 s55, s63, 5
            s_add_u32 s52, s52, s55
            s_lshl_b32 s52, s52, 6
            s_lshl_b32 s55, s62, 7
            s_add_u32 s52, s52, s55
            s_mul_i32 {sPdst}, s63, {12*16384}
            s_lshl_b32 s62, s62, 16
            s_add_u32 {sPdst}, {sPdst}, s62
            s_lshl_b32 s62, s54, 10
            s_add_u32 {sPdst}, {sPdst}, s62
            s_add_u32 {sPdst}, {sPdst}, {W1F}""", 16384, 0)
        a.raw(f's_branch {la[3]}'); a.raw(f'{la[2]}:')
        arm(90, 512*1376*2, 1024, f's_sub_u32 s54, {sPi}, 80\n s_mul_i32 {sPdst}, s63, {W2S}\n s_lshl_b32 s62, s54, 12\n s_add_u32 {sPdst}, {sPdst}, s62\n s_add_u32 {sPdst}, {sPdst}, {W2F}', 1024, 1)
        a.raw(f'{la[3]}:')
        a.e(f"""v_mul_u32_u24 v44, s53, v36
            v_lshl_add_u32 v44, v37, 4, v44
            s_lshl_b32 s54, s54, 5
            s_mul_i32 {sPsrc}, s54, s53
            s_add_u32 {sPsrc}, {sPsrc}, s52
            s_lshl_b32 {sPstep}, s53, 3
            s_lshl_b32 {sPF}, s63, 9
            s_lshl_b32 {sT1}, {sPi}, 2
            s_add_u32 {sPF}, {sPF}, {sT1}
            s_add_u32 {sPF}, {sPF}, {PF}""")
        pld = [[f's_add_u32 m0, {sW4}, {LC+i*1024}', Nm(f'buffer_load_dwordx4 v44, {SP}, {sPsrc} offen nt lds', D, 'pld'), f's_add_u32 {sPsrc}, {sPsrc}, {sPstep}'] for i in range(4)]
        if s.o('s_pt', 0):
            a.e(f'v_mul_u32_u24 v46, s53, v33\n v_cmp_gt_u32 vcc, 32, v33\n v_mov_b32 v47, 0x40000000\n s_mov_b32 m0, {JUNK}\n v_cndmask_b32 v46, v47, v46, vcc')
            a.e(f'buffer_load_dword v46, {SP}, {sPsrc} offen lds')
        with a.skip_if(f's_cmp_lg_u32 {sW}, 0', 's_cbranch_scc1'):
            s.run(sum(pld, [])); eP = D['pld']
            a.e(f's_mov_b32 {sPsrc}, 0x40000000')
        mix([f"""s_lshr_b32 {sT1}, {sW}, 1
            s_mul_i32 {sT0}, {sW}, 11
            s_cmp_eq_u32 {sW}, 3
            s_cselect_b32 {sT2}, 6, 7
            s_add_u32 {sT2}, {sT2}, {sT0}
            s_mul_i32 {sT1}, {sT1}, {HRT}
            s_add_u32 {sT1}, {sT1}, {sGA}
            s_lshl_b32 {sHe}, {sT0}, 10
            s_add_u32 {sHe}, {sHe}, {sT1}
            s_lshl_b32 {sHl}, {sT2}, 10
            s_add_u32 {sHl}, {sHl}, {sT1}
            s_mul_i32 {sT1}, {sM}, {W2S}
            s_add_u32 {sT1}, {sT1}, {W2F}
            s_lshl_b32 {sW2e}, {sT0}, 12
            s_add_u32 {sW2e}, {sW2e}, {sT1}
            s_lshl_b32 {sW2l}, {sT2}, 12
            s_add_u32 {sW2l}, {sW2l}, {sT1}
            s_and_b32 {sT0}, {sW}, 1
            s_lshl_b32 {sT0}, {sT0}, 11
            s_sub_u32 {sW2e2}, {sW2e}, {sT0}
            s_add_u32 {sW2e}, {sW2e}, {sT0}
            s_sub_u32 {sW2l2}, {sW2l}, {sT0}
            s_add_u32 {sW2l}, {sW2l}, {sT0}
            s_lshl_b32 {sT0}, {sM}, 17
            s_lshl_b32 {sT1}, {sW}, 14
            s_add_u32 {sWQ}, {sT0}, {sT1}
            s_add_u32 {sWQ}, {sWQ}, {WQF}
            s_mul_i32 {sW1}, {sM}, {12*16384}
            s_add_u32 {sW1}, {sW1}, {W1F}
            s_lshl_b32 {sXFa}, {sXC}, 7
            s_add_u32 {sXFa}, {sXFa}, {XF}"""], xq(1)[:2])
        def prep(PB, stores=True, va='v53', vb='v52'):
            with a.skip_if(f's_cmp_eq_u32 {sPmode}, 1', 's_cbranch_scc1'):
                for c in range(4):
                    for hh in range(2): a.e(f'ds_read_b64_tr_b16 {ar(PB+4*c+2*hh,2)}, {va} offset:{hh*512+c*32}')
                a.waitall(vm=False)
            with a.skip_if(f's_cmp_eq_u32 {sPmode}, 1', 's_cbranch_scc0'):
                for c in range(4):
                    for hh in range(2): a.e(f'ds_read_b64_tr_b16 {ar(PB+4*c+2*hh,2)}, {vb} offset:{hh*2048+(c//2)*64+(c%2)*8}')
                a.waitall(vm=False)
            if not stores: return
            for c in range(4):
                e = a.e(f'buffer_store_dwordx4 {ar(PB+4*c)}, {vL16}, {SWS}, {sPdst} offen sc1')
                if c < 3: a.e(f's_add_u32 {sPdst}, {sPdst}, {sPstr}')
            return e
        OA = [28, 29, 31, 42]
        for q in range(4): a.e(f'v_add_u32 v{OA[q]}, s57, v{XA+q}')
        s.fs('S')
        pz = s.poison(100, '', 1, sU0, sU1); pz[-1] = Nm(pz[-1], D, 'pz')
        def tagpart():
            a.e(f"""v_readfirstlane_b32 {sT}, v43
            s_add_u32 {sT}, {sT}, 0x9E3779B0
            s_and_b32 {sT}, {sT}, -16
            s_getreg_b32 {sXt}, hwreg(HW_REG_XCC_ID, 0, 4)
            s_add_u32 {sXt}, {sXt}, {sT}
            v_mov_b32 {vTag}, {sT}
            v_mov_b32 v48, {sXt}""")
            with a.skip_if(f's_cmp_lg_u32 {sW}, 0', 's_cbranch_scc1'):
                a.e(f's_lshl_b32 {sT1}, {sR}, 2\n s_add_u32 {sT0}, {sXFa}, {sT1}')
                a.e(f'buffer_store_dword v48, {vFlagOff}, {SWS}, {sT0} offen sc1')
        late1 = [f's_lshl_b32 {sWQm}, {sM}, 17', f's_lshl_b32 {sTch}, {sJ}, 2', f's_add_u32 {sTch}, {sTch}, {sW}', f's_lshl_b32 {sTch}, {sTch}, 12',
                 f's_mul_i32 {sW2m}, {sM}, {W2S}', f's_add_u32 {sW2m}, {sW2m}, {W2F}',
                 lambda: a.e(f's_add_u32 {sH5}, {sHe}, 5120\n s_cmp_eq_u32 {sW}, 3\n s_cselect_b32 {sH5}, 0x40000000, {sH5}')]
        AK = 56; XB = [128, 160]; SS = 120; SQ2 = 124
        so = {0: [0,1], 1: [2,3], 2: [4,5,6], 3: [7], 4: [8,9,10,11], 5: [12,13,14,15]}
        def xo(ks): return vr(96 + 4*(ks % 4)) if ks < 12 or True else None
        def reads(c):
            L = []
            for t in range(2):
                ks = 2*c+t
                for hh in range(2):
                    L.append(f'ds_read_b64_tr_b16 {ar(WK+4*ks+2*hh,2)}, v51 offset:{(c%4)*16384+t*4096+hh*512}')
                    L.append(f'ds_read_b64_tr_b16 {vr(WV+4*ks+2*hh,2)}, v51 offset:{(c%4)*16384+8192+t*4096+hh*512}')
                L += [f'ds_read_b128 {vr(XB[c%2]+16*t+4*rt)}, v{XA+ks%4} offset:{rt*16384+(ks//4)*4096}' for rt in range(4)]
            L += [At(9)] + [f'ds_read_b128 {xo(ks)}, v{OA[ks%4]} offset:{(ks//4)*4096}' for ks in so.get(c, [])]
            return L
        def mfs(c):
            L = []
            for ks in so.get(c, []):
                L += [f'{MF} {vr(SS)}, {xo(ks)}, v[112:115], {"0" if ks == 0 else vr(SS)}', f'{MF} {vr(SQ2)}, {xo(ks)}, {xo(ks)}, {"0" if ks == 0 else vr(SQ2)}']
            def main(t, rt):
                ks = 2*c+t; z = ks == 0; x = vr(XB[c%2]+16*t+4*rt)
                return [f'{MF} {vr(AK+8*rt)}, {x}, {ar(WK+4*ks)}, {"0" if z else vr(AK+8*rt)}', f'{MF} {vr(AK+8*rt+4)}, {x}, {vr(WV+4*ks)}, {"0" if z else vr(AK+8*rt+4)}']
            def cs(t):
                ks = 2*c+t; z = ks == 0
                return [f'{MF} v[88:91], v[112:115], {ar(WK+4*ks)}, {"0" if z else "v[88:91]"}', f'{MF} v[92:95], v[112:115], {vr(WV+4*ks)}, {"0" if z else "v[92:95]"}']
            if c == 7: return cs(0) + cs(1) + sum([main(0, rt) + main(1, rt) for rt in range(4)], [])
            for t in range(2): L += sum([main(t, rt) for rt in range(4)], []) + cs(t)
            return L
        for c in range(9):
            if c == 8: a.waitall(vm=False); a.raw('s_barrier')
            if c < 8:
                a.wait(D[('c', c)]); a.waitall(vm=False)
                if not (s.o('x_kl', 0) & 4 and c > 0): a.raw('s_barrier')
            if c in [int(x) for x in s.kw.get('sc', '0.1.2.4.6.8').split('.')]: s.fs('S')
            rd = reads(c) if c < 8 else []
            if s.o('x_kl', 0) & 2 and c > 0: rd = [r for r in rd if ('tr' in r) == bool(s.o('x_kl', 0) & 8)][:(99 if s.o('x_kl', 0) & 16 else 0)]
            if c == 0:
                s.run(rd + sum(xq(1)[2:] + chunk_dma(2) + chunk_dma(3), [])); tagpart()
                continue
            vm = []; va = []; pin = {}; pace = 4
            if c+3 < 8: vm = sum((xq(c+1) if c in (1, 2) else []) + chunk_dma(c+3), [])
            if c+3 < 8 and s.o('x_kl', 0) & 1: vm = []; D[('c', c+3)] = None
            if c == s.o('s_ep', 1):
                a.e(f's_cmp_eq_u32 {sW}, 0\n s_cselect_b32 {sT2}, {sPdst}, 0x40000000\n s_cselect_b32 {sT3}, {sPF}, 0x40000000')
                with a.skip_if(f's_cmp_lg_u32 {sW}, 0', 's_cbranch_scc1'): a.wait(eP); prep(0, False)
                est = sum([[f'buffer_store_dwordx4 {ar(4*k)}, {vL16}, {SWS}, {sT2} offen sc1', f's_add_u32 {sT2}, {sT2}, {sPstr}'] for k in range(4)], [])
                est[-2] = Nm(est[-2], D, 'es')
            if c in (1, 2): pace = 3
            if c == s.o('s_ep', 1): vm = vm + est; pace = 3
            if c == s.o('s_ep', 1)+2: pin[12] = [lambda: (a.wait(D['es']), a.e(f'buffer_store_dword {vTag}, {vFlagOff}, {SWS}, {sT3} offen sc1'))]
            if c == 3: va = late1 + ['s_mov_b32 s52, 0xAAAAAAAA', 's_mov_b32 s53, 0xAAAAAAAA', f's_mov_b32 {sSpin}, 0x40000', f's_lshr_b32 {sHd}, {sW}, 1', f's_mul_i32 {sHd}, {sHd}, {2*HRT}', f's_sub_u32 {sHd}, {HRT}, {sHd}']
            if c == 4: vm += pld[0] + pld[1]; pace = 3
            if c == 5:
                s.run([f'v_mov_b32 v{32+i}, 0' for i in range(4)])
                pz = s.poison(32, '', 1, sU0, sU1); pz[-1] = Nm(pz[-1], D, 'pz'); pz = groups(pz)
                vm = pld[2] + pld[3] + sum(pz[:3], []); pace = 4
            if c == 6:
                a.e(f"""s_min_u32 {t2}, {sM}, 3
            s_mul_i32 {t3}, {sM}, 5
            s_add_u32 {t2}, {t2}, {t3}
            s_add_u32 {sHst}, {t2}, {sW}
            s_lshl_b32 {sHst}, {sHst}, 10
            s_add_u32 {sHst}, {sHst}, {sGA}
            s_lshr_b32 {sT1}, {sW}, 1
            s_add_u32 {sHst2}, {t2}, {sT1}
            s_add_u32 {sHst2}, {sHst2}, 4
            s_lshl_b32 {sHst2}, {sHst2}, 10
            s_cmp_ge_u32 {sM}, 3
            s_cselect_b32 {t2}, {sT1}, 0
            s_cmp_lg_u32 {t2}, 0
            s_cselect_b32 {sHst2}, 0x40000000, {sHst2}
            s_add_u32 {sHst2}, {sHst2}, {sGA}
                    s_lshl_b32 {sCb}, {sW4}, 1
                    s_cmp_eq_u32 {sW}, 3
                    s_cselect_b32 {sT0}, {LC-4096}, 0
                    s_cselect_b32 {sT1}, 0, {LC}
                    s_add_u32 {sCb}, {sCb}, {sT0}
                    s_add_u32 {sCb}, {sCb}, {sT1}
                    s_mov_b32 {sNeg}, 0x80008000
                    s_lshr_b32 {sSTw}, {sW4}, 2
                    s_add_u32 {sSTw}, {sSTw}, {sGA}
                    s_sub_u32 {sW26}, {sW2l}, 4096
                    s_sub_u32 {sW262}, {sW2l2}, 4096
                    s_sub_u32 {sH6}, {sHl}, 1024
                    s_sub_u32 {sT0}, {sPi}, 32
                    s_cmp_ge_u32 {sT0}, 91
                    s_cselect_b32 {sPdst}, 0x40000000, {sPdst}
                    s_cselect_b32 {sPF}, 0x40000000, {sPF}""")
            if c == 6:
                vm = [f'buffer_load_dword v36, {vFl}, {SWS}, {sXFa} offen sc1'] + s.touch_kv1(0, 0) + sum(pz[3:], []); pace = 4
            if c == 7 and s.o('s_pfe', 1): vm = vm + [At(10), f's_lshl_b32 {sU0}, {sM}, 9', f's_add_u32 {sU0}, {sU0}, {PF}', f'buffer_load_dword v38, {vFl}, {SWS}, {sU0} offen sc1']
            if c == 8: va0 = [f's_lshl_b32 {sFm}, {sM}, 2', f's_add_u32 {sFm}, {sFm}, {sW}', f's_lshl_b32 {sFm}, {sFm}, 2', f's_add_u32 {sGW}, {sGA}, {A_FL}', f's_add_u32 {sFm}, {sFm}, {sGW}']
            if c == 7 and s.o('s_lpk', 0):
                a.wait(D['pld']); prep(16, False)
                pst = sum([[f'buffer_store_dwordx4 {ar(16+4*k)}, {vL16}, {SWS}, {sPdst} offen sc1', f's_add_u32 {sPdst}, {sPdst}, {sPstr}'] for k in range(4)], [])
                pst[-2] = Nm(pst[-2], D, 'pl')
                vm = pst[:6]; pace = 6
            if c == 8 and s.o('s_lpk', 0): vm = pst[6:]; pace = 6
            if c == 6: rd = rd + ['ds_read_b128 v[104:107], v55', 'ds_read_b128 v[108:111], v55 offset:32768']
            if c == 7:
                def sel(d, b): return [f'v_cndmask_b32 {d}, v{b}, v{b+1}, s[54:55]', f'v_cndmask_b32 v{b+2}, v{b+2}, v{b+3}, s[54:55]', f'v_cndmask_b32 {d}, {d}, v{b+2}, s[56:57]']
                a.e('s_mov_b32 s54, 0xAAAAAAAA\n s_mov_b32 s55, 0xAAAAAAAA\n s_mov_b32 s56, 0xCCCCCCCC\n s_mov_b32 s57, 0xCCCCCCCC')
                va = sel('v48', SS) + sel('v49', SQ2) + s.stats_fin('v48', 'v49', 'v50', 'v54', 0)
            if c == 8:
                def chk():
                    a.e(f'v_subrev_u32 v37, {sT}, v36\n v_cmp_le_u32 vcc, 16, v37\n s_nop 3')
                    with a.rare(None, 's_cbranch_vccnz'):
                        l = a.label('Lxf'); a.raw(f'{l}:'); s.spin_guard()
                        a.e(f'buffer_load_dword v36, {vFl}, {SWS}, {sXFa} offen sc1'); a.waitall(lg=False)
                        a.e(f'v_subrev_u32 v37, {sT}, v36\n v_cmp_le_u32 vcc, 16, v37'); a.raw(f's_cbranch_vccnz {l}')
                    if s.o('s_pfe', 1):
                        a.e(f'v_cmp_ne_u32 vcc, {sT}, v38\n s_nop 3')
                        with a.rare(None, 's_cbranch_vccnz'): s.pf_check(38, False)
                        s.run(s.tq(0))
                    a.e(f'v_cmp_ne_u32 vcc, {sXt}, v36')
                va = va0 + [chk] + [f'ds_read_b128 {vr(32+4*i)}, {vG16} offset:{o}' for i, o in enumerate((ST_RL, ST_RSTD, ST_NB))] + [At(8), f'v_mul_f32 {vCsk}, {sLog2e}, v88', f'v_mov_b32 {vCsv}, v92'] + sum([[f'v_lshlrev_b32 v{RES+2*i}, 16, v{104+i}', f'v_and_b32 v{RES+2*i+1}, 0xffff0000, v{104+i}'] for i in range(8)], []) + ['v_mov_b32 v108, v53', 'v_mov_b32 v109, v52']
            sched(a, mfs(c-1), pin, ([Stream(vm, 0, pace=pace), Stream(rd, 0, one=True)] if s.o('s_one', 1) else [Stream(rd, 0), Stream(vm, 0, pace=pace)]), [Stream(va, 4 if c < 8 else 0)])
        s.fs('S')
        TMP=96; PK=120; VP=124; KVA=88; ZA=92
        W = []
        for sb in range(4):
            ac = AK+8*sb; S = 32+12*(sb%2); RL, R, NB = S, S+4, S+8; o = 2*(sb%2)
            if sb < 3:
                S2 = 32+12*((sb+1)%2)
                W += [f'ds_read_b128 {vr(S2+4*i)}, {vG16} offset:{oo+(sb+1)*64}' for i, oo in enumerate((ST_RL, ST_RSTD, ST_NB))]
            W += s.kv_tail(ac, RL, R, NB, TMP, PK+o, VP+o)
            if sb % 2 == 1:
                c = "0" if sb == 1 else None
                W += [f'{MF} {vr(ZA)}, {vr(PK)}, v[112:115], {c or vr(ZA)}', f'{MF} {vr(KVA)}, {vr(PK)}, {vr(VP)}, {c or vr(KVA)}']
        s.wql = 0; nwq = s.o('wq0', 0)
        mix(W, ([s.tq(1)] if s.o('s_pfe', 1) else []) + (groups(s.wq_loads(0, nwq)) if nwq else []), 30)
        s.st0 = {'nwq': nwq, 'won': 0, 'pz': D['pz'], 'pl': D.get('pl'), 'pld': D['pld']}; s.prep = prep
        s.fs('S')
        if s.kw.get('fine') == 'S':
            a.waitall()
            for k in range(13): a.e(f'v_readlane_b32 s{sPR+2*k}, v30, {2*k}')
            a.raw('s_nop 4'); a.raw('s_branch Lfin')
        s.stamp(1)
        if s.force == 'slow': a.raw('s_branch Lslow')
        elif s.force != 'fast': a.raw('s_cbranch_vccnz Lslow')

    def pf_check(s, vp, late):
        a = s.a
        l = a.label('Lpf'); a.raw(f'{l}:'); s.spin_guard()
        a.e(f'v_lshrrev_b32 v{vp+2}, 2, {vL16}\n s_lshl_b32 {sT0}, {sM}, 9\n s_add_u32 {sT0}, {sT0}, {PF}')
        if late:
            a.e(f'buffer_load_dword v{vp}, v{vp+2}, {SWS}, {sT0} offen offset:128 sc1')
            a.e(f'buffer_load_dword v{vp+1}, {vFl}, {SWS}, {sT0} offen offset:364 sc1')
            a.waitall(lg=False)
            a.e(f'v_cmp_ne_u32 vcc, {sT}, v{vp}\n v_cmp_ne_u32 {sCm}, {sT}, v{vp+1}\n s_or_b64 vcc, vcc, {sCm}')
        else:
            a.e(f'buffer_load_dword v{vp}, {vFl}, {SWS}, {sT0} offen sc1'); a.waitall(lg=False)
            a.e(f'v_cmp_ne_u32 vcc, {sT}, v{vp}')
        a.raw(f's_cbranch_vccnz {l}')

    def barrier(s, *ents):
        def f():
            s.a.wait(*[e() if callable(e) else e for e in ents]); s.a.raw('s_barrier')
        return f

    def arrivals(s, st, pin, mem, valu, buf, b, VB, reg, L):
        a = s.a
        for rt, gv, G, extra in L:
            rdv, vv = s.ver('b128', VB, rt*16384, b)
            mem.insert(0, Stream([lambda rt=rt: a.wait(st[('dma', rt)])] + rdv, gv, deadline=G-4))
            valu.insert(0, Stream(vv, gv+8, deadline=G-1))
            def f(rt=rt, extra=extra):
                s.ver_branch(s.tile_dma(buf, rt, {}, sT0, reg, b == 0), 'b128', VB, rt*16384, b)
                s.barrier(*[st[k] for k in extra])()
            pin.setdefault(G, []).insert(0, f)
    def P1(s, l, prev):
        a = s.a; st = prev; s.wql = l
        RING=32; NR=6; ACC=[56,64]; STR=72; TMP=84; PK=96; VP=100; KVA=104; ZA=108; ONES=112; SL=120; VB=176
        def rd(n): return f'ds_read_b128 {vr(RING+4*(n%NR))}, v{XA+n%4} offset:{(n//16)*16384+((n%16)//4)*4096}'
        mf = []; pin = {}
        for n in range(64):
            sb, ks = divmod(n, 16); ac = ACC[sb%2]
            mf.append(f'{MF} {vr(ac)}, {vr(RING+4*(n%NR))}, {ar(WK+4*ks)}, {"0" if ks==0 else vr(ac)}')
            mf.append(f'{MF} {vr(ac+4)}, {vr(RING+4*(n%NR))}, {vr(WV+4*ks)}, {"0" if ks==0 else vr(ac+4)}')
        def epi(sb):
            ac = ACC[sb%2]; RL, R, NB = STR, STR+4, STR+8
            L = [f'ds_read_b128 {vr(NB)}, {vG16} offset:{ST_NB+sb*64}', f'ds_read_b128 {vr(RL)}, {vG16} offset:{ST_RL+sb*64}',
                 f'ds_read_b128 {vr(R)}, {vG16} offset:{ST_RSTD+sb*64}']
            o = 2*(sb%2)
            B = [f'v_fma_f32 v{TMP+r}, v{NB+r}, {vCsk}, {sDelta}' for r in range(4)]
            B += [f'v_fma_f32 v{TMP+r}, v{ac+r}, v{RL+r}, v{TMP+r}' for r in range(4)]
            for r in range(4): B += [f'v_exp_f32 v{TMP+4+r}, v{TMP+r} clamp', f'v_max_f32 v{TMP+r}, {sDelta}, v{TMP+r}']
            B += [f'v_fma_f32 v{TMP+r}, v{TMP+r}, {sLn2}, v{TMP+4+r}' for r in range(4)]
            B += [f'v_cvt_pk_bf16_f32 v{PK+o}, v{TMP}, v{TMP+1}', f'v_cvt_pk_bf16_f32 v{PK+o+1}, v{TMP+2}, v{TMP+3}']
            V = [f'v_mul_f32 v{TMP+8+r}, v{NB+r}, {vCsv}' for r in range(4)]
            V += [f'v_fma_f32 v{TMP+8+r}, v{ac+4+r}, v{R+r}, v{TMP+8+r}' for r in range(4)]
            V += [f'v_cvt_pk_bf16_f32 v{VP+o}, v{TMP+8}, v{TMP+9}', f'v_cvt_pk_bf16_f32 v{VP+o+1}, v{TMP+10}, v{TMP+11}']
            B = (B, V)
            T = []
            if sb % 2 == 1:
                c = "0" if sb == 1 else None
                T = [f'{MF} {vr(ZA)}, {vr(PK)}, {vr(ONES)}, {c or vr(ZA)}', f'{MF} {vr(KVA)}, {vr(PK)}, {vr(VP)}, {c or vr(KVA)}']
            return L, B, T
        s.fs('P1')
        mem = []; valu = []
        if l == 1:
            for i in range(4): a.e(f'v_mov_b32 v{ONES+i}, {sOnes}')
            for q in range(4): a.e(f'v_add_u32 v{XA+q}, {LB+1024*q}, {vL16}')
            a.e(f's_add_u32 {sT0}, {sW4}, {LB}\n v_add_u32 {vS0}, {sT0}, {vL16}')
            s.fs('P1')
            rdv, vv = s.ver('b128', VB, 0, 0)
            a.wait(st[('dma',0)]); s.run(rdv + vv); a.raw('s_nop 1')
            s.ver_branch(s.tile_dma(s.bX2(), 0, {}, sT0, LB, True), 'b128', VB, 0, 0)
            s.barrier()()
        s.fs('P1')
        for n in range(NR-1): a.e(rd(n))
        for n in range(64-NR+1): pin.setdefault(2*n+1, []).append(rd(n+NR-1))
        G1, G2, G3 = [2*(16*sb-NR+1) for sb in (1,2,3)]
        if l == 1:
            s.arrivals(st, pin, mem, valu, s.bX2(), 0, VB, LB, [(1, s.o('p1v1', 2), G1, []), (2, s.o('p1v2', 36), G2, []), (3, s.o('p1v3', 60), G3, ['sw1'])])
            GS = s.o('p1gs', 28)
            valu.insert(0, Stream(s.stats_chk(0, 1, 0, SL) + s.stats_use(1, 0, SL, st, 'sw0'), s.o('p1s0', 4), deadline=GS-2))
            pin.setdefault(GS, []).insert(0, s.barrier(lambda: st['sw0']))
            nwq = s.o('wq1', 16); w0 = st.get('wqpre', 0)
            q = [At(s.o('p1d2', 6))] + s.tile_dma(s.bX2(), 2, st, sU0, LB, True) + s.stats_ld(0, 1, 1, SL+4, sU0) + s.tile_dma(s.bX2(), 3, st, sU0, LB, True) + (s.t2(0) if s.o('tw2', 0) else []) + s.wq_loads(w0, 12) + (s.t2(1) if s.o('tw2', 0) else []) + s.wo_dma(st, 0, s.o('wo1', 1)) + [At(G3+1)] + s.wq_loads(12, nwq)
            mem.append(Stream(q, 0, pace=s.o('pace1', 3)))
            valu.append(Stream(s.stats_chk(0, 1, 1, SL+4) + s.stats_use(1, 1, SL+4, st, 'sw1'), s.o('p1s1', 44), deadline=G3))
        st['nwq'] = nwq
        for k in (19, 31, 51, 63, 83, 95): pin.setdefault(k, []).append(s.F('P1'))
        for sb in range(3):
            L, B, T = epi(sb); b0 = 32*(sb+1)
            mem.insert(0, Stream([At(b0-4 if sb == 0 else b0-1)] + L, 0))
            B, V = B
            valu.append(Stream([At(b0+1)] + B[:4] + [At(b0+3)] + B[4:], 0, deadline=b0+30))
            valu.append(Stream([At(b0+1)] + V[:4] + [At(b0+4)] + V[4:], 0, deadline=b0+30))
            pin.setdefault(b0+30, []).extend(T)
        L3, B3, T3 = epi(3)
        pin.setdefault(126, []).extend(L3[:2]); pin.setdefault(127, []).extend(L3[2:])
        left = sched(a, mf, pin, mem, valu); s.lefts.append(left)
        s.fs('P1')
        B3, V3 = B3
        s.run(s.kv_tail(ACC[1], STR, STR+4, STR+8, TMP, PK+2, VP+2) + T3)
        s.kv_publish(l, 84, KVA, ZA)
        s.fs('P1')
        st['won'] = s.o('wo1', 1)
        return st

    def kv_tail(s, ac, RL, R, NB, TMP, PK, VP):
        p = lambda r: vr(r, 2)
        L = [f'v_pk_fma_f32 {p(TMP+r)}, {p(NB+r)}, v[10:11], s[48:49] op_sel_hi:[1,0,0]' for r in (0, 2)]
        L += [f'v_pk_mul_f32 {p(TMP+8+r)}, {p(NB+r)}, v[10:11] op_sel:[0,1] op_sel_hi:[1,1]' for r in (0, 2)]
        L += [f'v_pk_fma_f32 {p(TMP+r)}, {p(ac+r)}, {p(RL+r)}, {p(TMP+r)}' for r in (0, 2)]
        for r in range(4): L += [f'v_exp_f32 v{TMP+4+r}, v{TMP+r} clamp', f'v_max_f32 v{TMP+r}, {sDelta}, v{TMP+r}']
        L += [f'v_pk_fma_f32 {p(TMP+8+r)}, {p(ac+4+r)}, {p(R+r)}, {p(TMP+8+r)}' for r in (0, 2)]
        L += [f'v_pk_fma_f32 {p(TMP+r)}, {p(TMP+r)}, s[48:49], {p(TMP+4+r)} op_sel:[0,1,0] op_sel_hi:[1,1,1]' for r in (0, 2)]
        L += [f'v_cvt_pk_bf16_f32 v{VP}, v{TMP+8}, v{TMP+9}', f'v_cvt_pk_bf16_f32 v{VP+1}, v{TMP+10}, v{TMP+11}',
              f'v_cvt_pk_bf16_f32 v{PK}, v{TMP}, v{TMP+1}', f'v_cvt_pk_bf16_f32 v{PK+1}, v{TMP+2}, v{TMP+3}']
        return L
    def kv_publish(s, l, G0, KVA, ZA):
        a = s.a
        a.e(f'''v_mov_b32 v{G0+3}, {vTag}
            s_lshl_b32 {sT0}, {sJ}, 10
            s_add_u32 {sT0}, {sT0}, {sKV1}
            s_add_u32 {sT0}, {sT0}, {l*0x100000}
            v_cvt_pk_bf16_f32 v{G0+4}, v{ZA}, v{ZA+1}
            v_cvt_pk_bf16_f32 v{G0+5}, v{ZA+2}, v{ZA+3}
            v_cvt_pk_bf16_f32 v{G0}, v{KVA}, v{KVA+1}
            v_cvt_pk_bf16_f32 v{G0+1}, v{KVA+2}, v{KVA+3}
            v_cndmask_b32 v{G0+2}, v{G0+4}, v{G0+5}, {sOdd}''')
        a.e(f'buffer_store_dwordx4 {vr(G0)}, {vL16}, {SWS}, {sT0} offen{s.sc}')

    def kv_tags(s, base, n):
        a = s.a
        for i in range(n):
            if i == 0: a.e(f'v_cmp_ne_u32 {sAcc}, {sT}, v{base+3}')
            else: a.e(f'v_cmp_ne_u32 {sCm}, {sT}, v{base+4*i+3}\n s_or_b64 {sAcc}, {sAcc}, {sCm}')
    def kv_add(s, base, n, acc):
        a = s.a
        for i in range(n):
            g = base + 4*i
            for k in range(3):
                if i == 0: a.e(f'v_lshlrev_b32 {acc[2*k]}, 16, v{g+k}\n v_and_b32 {acc[2*k+1]}, 0xffff0000, v{g+k}')
                else: a.e(f'v_dot2_f32_bf16 {acc[2*k]}, v{g+k}, {sLo}, {acc[2*k]}\n v_dot2_f32_bf16 {acc[2*k+1]}, v{g+k}, {sHi}, {acc[2*k+1]}')
    def kv_sum(s, base, n, acc):
        a = s.a
        for i in range(n):
            g = base + 4*i
            for k, (src, sel) in enumerate([(0,sLo),(0,sHi),(1,sLo),(1,sHi),(2,sLo),(2,sHi)]):
                a.e(f'v_dot2_f32_bf16 v{acc+k}, v{g+src}, {sel}, {"0" if i == 0 else f"v{acc+k}"}')
            if i == 0: a.e(f'v_cmp_ne_u32 {sAcc}, {sT}, v{g+3}')
            else: a.e(f'v_cmp_ne_u32 {sCm}, {sT}, v{g+3}\n s_or_b64 {sAcc}, {sAcc}, {sCm}')

    def woreg(s, ks, sl):
        if ks % 4 == 3: return 64 + 8*(ks//4) + 4*sl
        return 96 + 8*((ks//4)*3 + ks%4) + 4*sl
    def Q(s, l, st):
        a = s.a; s.wql = l
        RING=32; NR=8; QA=96; CS=92; T=120; PQ=64; ONES=112; EPS=72; SUM=76; KT=82; ZT=84; NBR=88; OUT=88
        s.fs('Q')
        R1 = 68; RA = ['v84', 'v85', 'v86', 'v87', vS0, vS1]
        def red_ld():
            a.e(f's_add_u32 {sT0}, {sKV1}, {l*0x100000}')
            for i in range(4): a.e(f'buffer_load_dwordx4 {vr(R1+4*i)}, {vL16}, {SWS}, {sT0} offen offset:{i*1024} sc1')
        def red1():
            with a.skip_if(f's_cmp_lg_u32 {sW}, {sJ}', 's_cbranch_scc1'): red_ld()
        def red2():
            with a.skip_if(f's_cmp_lg_u32 {sW}, {sJ}', 's_cbranch_scc1'):
                s.kv_tags(R1, 4)
                with a.rare(f's_cmp_lg_u64 {sAcc}, 0', 's_cbranch_scc1'):
                    lb = a.label('Lred'); a.raw(f'{lb}:'); s.spin_guard()
                    red_ld(); s.kv_tags(R1, 4)
                    a.e(f's_cmp_lg_u64 {sAcc}, 0'); a.raw(f's_cbranch_scc1 {lb}')
                s.kv_add(R1, 4, RA)
                a.e(f'''s_lshl_b32 {sT0}, {sXC}, 10
                    s_add_u32 {sT0}, {sT0}, {sKV2}
                    s_add_u32 {sT0}, {sT0}, {l*0x40000}
                    v_cvt_pk_bf16_f32 v{R1}, {RA[0]}, {RA[1]}
                    v_cvt_pk_bf16_f32 v{R1+1}, {RA[2]}, {RA[3]}
                    v_cvt_pk_bf16_f32 v{R1+2}, {RA[4]}, {RA[5]}''')
                a.e(f'buffer_store_dwordx4 {vr(R1)}, {vL16}, {SWS}, {sT0} offen sc1')
            s.fs('Q')
        order = [(rt, ks) for rt in range(4) for ks in range(16)]
        def rd(n): rt, ks = order[n]; return f'ds_read_b128 {vr(RING+4*(n%NR))}, v{XA+ks%4} offset:{rt*16384+(ks//4)*4096}'
        mf = []; pin = {}; gend = {}
        for n, (rt, ks) in enumerate(order):
            mf.append(f'{MF} {vr(QA+4*rt)}, {vr(128+4*ks)}, {vr(RING+4*(n%NR))}, {"0" if ks==0 else vr(QA+4*rt)} ; ?v{128+4*ks}=wq{l}')
            if n+NR-1 < 64: pin.setdefault(len(mf)-1, []).append(rd(n+NR-1))
            if l == 0 and n < 16: mf.append(f'{MF} {vr(CS)}, {vr(128+4*ks)}, {vr(ONES)}, {"0" if ks==0 else vr(CS)}')
            gend[rt] = len(mf)
        wql = Stream(s.wq_loads(st['nwq'], 16)).items
        if l == 0:
            if s.o('r0s', 2): a.raw(f"s_sleep {s.o('r0s', 2)}")
            red1()
            if not s.o('s_pfe', 1): s.pf_check(124, False)
            else: a.wait(st['pz'], st['pld'], st['pl'])
            if st['pl']: a.e(f'buffer_store_dword {vTag}, {vFlagOff}, {SWS}, {sPF} offen sc1')
            a.e(s.flag_st(0, 0, 0))
            red2()
        s.run(wql[:len(wql)//2])
        if l == 0 and not st['pl']: st['pl2'] = s.prep(16, True, 'v108', 'v109')
        s.run(wql[len(wql)//2:])
        a.e(f's_lshl_b32 {sT0}, {sW}, 6\n v_add_u32 {vS2}, {sT0}, {vG16}')
        if l == 1: a.e(f'ds_read_b128 {vr(CS)}, {vS2} offset:{CSQ}')
        for n in range(NR-1): a.e(rd(n))
        def epi(rt):
            nb, rl = f'v{NBR+2*(rt%2)}', f'v{NBR+1+2*(rt%2)}'
            R = [f'ds_read_b32 {nb}, {vR4} offset:{ST_NB+rt*64}', f'ds_read_b32 {rl}, {vR4} offset:{ST_RL+rt*64}']
            L = [f'v_fma_f32 v{T+r}, {nb}, v{CS+r}, {sDelta}' for r in range(4)]
            L += [f'v_fma_f32 v{T+r}, v{QA+4*rt+r}, {rl}, v{T+r}' for r in range(4)]
            for r in range(4): L += [f'v_exp_f32 v{T+4+r}, v{T+r} clamp', f'v_max_f32 v{T+r}, {sDelta}, v{T+r}']
            L += [f'v_fma_f32 v{T+r}, v{T+r}, {sLn2}, v{T+4+r}' for r in range(4)]
            L += [f'v_cvt_pk_bf16_f32 v{PQ+2*rt}, v{T}, v{T+1}', f'v_cvt_pk_bf16_f32 v{PQ+2*rt+1}, v{T+2}, v{T+3}']
            return R, L
        s.run(epi(0)[0] + epi(1)[0])
        S2 = 32
        def st2_loads():
            for i in range(8):
                if i % 4 == 0: a.e(f's_add_u32 {sT0}, {sKV2}, {l*0x40000+i*1024}')
                a.e(f'buffer_load_dwordx4 {vr(S2+4*i)}, {vL16}, {SWS}, {sT0} offen offset:{(i%4)*1024} sc1')
        valu = []
        for rt in range(3):
            pre = []
            if rt == 0 and l == 0: pre = [f'v_mul_f32 v{CS+r}, {sLog2e}, v{CS+r}' for r in range(4)] + [f'ds_write_b128 {vS2}, {vr(CS)} offset:{CSQ}']
            R, L = epi(rt)
            post = epi(rt+2)[0] if rt < 2 else []
            valu.append(Stream(pre + L + post, gend[rt]+3, deadline=(gend[rt+1]+2 if rt < 2 else None)))
        n0 = 0
        wo = [s.wo_dma(st, i, i+1) for i in range(st['won'], 4)]
        if l == 0: q = wo[0] + wo[1] + ([lambda: (a.wait(st['pl2']), a.e(f'buffer_store_dword {vTag}, {vFlagOff}, {SWS}, {sPF} offen sc1'))] if 'pl2' in st else []) + wo[2] + wo[3] + (s.touch_oxs(127) if s.o('tch', 1) else [])
        else: q = (s.touch_oxs(0) if s.o('tch1', 1) else []) + sum(wo, []) + (s.t2(2) if s.o('tw2', 0) else [])
        q = Stream(q).items
        g = 0 if l == 0 else 1
        for it in q:
            pin.setdefault(g, []).insert(len([x for x in pin.get(g, []) if not (isinstance(x, str) and x.startswith('ds_read'))]), it)
            t = it.text if isinstance(it, Nm) else it
            if isinstance(t, str) and t.startswith('buffer'): g += (3 if l == 0 or not st['won'] else 4)
        assert g < len(mf) + 4, g
        ga, gb = s.o('rga', 4), s.o('rgb', 22)
        assert gb < gend[2]

        if l == 1: pin.setdefault(ga, []).insert(0, red1); pin.setdefault(gb, []).insert(0, red2)
        for k in (gend[2]-1,): pin.setdefault(k, []).append(s.F('Q'))
        s.lefts.append(sched(a, mf, pin, [], valu, over=True))
        p2 = lambda r: vr(r, 2)
        L3 = [f'v_pk_fma_f32 {p2(T+r)}, {p2(CS+r)}, {p2(NBR+2)}, s[48:49] op_sel_hi:[1,0,0]' for r in (0, 2)]
        L3 += [f'v_pk_fma_f32 {p2(T+r)}, {p2(QA+12+r)}, {p2(NBR+2)}, {p2(T+r)} op_sel:[0,1,0] op_sel_hi:[1,1,1]' for r in (0, 2)]
        L3 += epi(3)[1][8:16]
        L3 += [f'v_pk_fma_f32 {p2(T+r)}, {p2(T+r)}, s[48:49], {p2(T+4+r)} op_sel:[0,1,0] op_sel_hi:[1,1,1]' for r in (0, 2)] + epi(3)[1][20:]
        s.run(L3 + [f'v_mov_b32 v{EPS+r}, 0x{f2u(1e-6):x}' for r in range(4)])
        a.e(f's_and_b32 {sT0}, {sW}, 1\n s_lshl_b32 {sT0}, {sT0}, 11\n s_add_u32 {sT0}, {sT0}, {RW(l)}\n v_add_u32 {vS2}, {sT0}, {vL16}')
        def wo_rd(ks): return [f'ds_read_b128 {vr(s.woreg(ks, sl))}, {vS2} offset:{ks*4096+sl*1024} ; @wo{l}' for sl in range(2)]
        early = [ks for ks in range(16) if not (64 <= s.woreg(ks, 0) < 96 or S2 <= s.woreg(ks, 0) < S2+32)]
        late = [ks for ks in range(16) if ks not in early]
        s.fs('Q')
        a.wait(st['wo'])
        s.barrier()()
        if s.o('qsleep', 0): a.raw(f"s_sleep {s.o('qsleep', 0)}")
        s.fs('Q')
        if l == 0 and s.o('w1a', 0) + s.o('w2q0', 0): s.pf_check(124, True)
        st2_loads()
        for ks in early: s.run(wo_rd(ks))
        st['w2'] = {}
        if l == 0: s.run([s.poll_ld(0, 0, 0)])
        for i in range(1, 1+(s.o('w2q', 3) if l else s.o('w2q0', 0))): s.run(s.w2_dma(i, st['w2']))
        n1 = s.o('w1a', 0)
        if l == 0:
            s.run(s.w1_loads(0, n1))
        st['w1n'] = n1
        s.stamp(3); s.fs('Q')
        s.kv_sum(S2, 8, SUM)
        a.e(f's_cmp_lg_u64 {sAcc}, 0')
        s.fs('Q')
        with a.rare(None, 's_cbranch_scc1'):
            lo = a.label('Lst2o'); a.raw(f'{lo}:'); s.spin_guard()
            for i in range(8):
                a.e(f'v_cmp_ne_u32 vcc, {sT}, v{S2+4*i+3}\n s_nop 1')
                with a.skip_if(None, 's_cbranch_vccz'):
                    a.e(f's_add_u32 {sT0}, {sKV2}, {l*0x40000+i*1024}')
                    a.e(f'buffer_load_dwordx4 {vr(S2+4*i)}, {vL16}, {SWS}, {sT0} offen sc1')
            a.waitall(lg=False)
            s.kv_tags(S2, 8)
            a.e(f's_cmp_lg_u64 {sAcc}, 0'); a.raw(f's_cbranch_scc1 {lo}')
            s.kv_sum(S2, 8, SUM)
        s.stamp(4); s.fs('Q')
        a.e(f'''v_cvt_pk_bf16_f32 v86, v{SUM+4}, v{SUM+5}
            v_cvt_pk_bf16_f32 v{KT}, v{SUM}, v{SUM+1}
            v_cvt_pk_bf16_f32 v{KT+1}, v{SUM+2}, v{SUM+3}
            v_mov_b32_dpp v{ZT}, v86 quad_perm:[0,0,2,2] {DPPF}
            v_mov_b32_dpp v{ZT+1}, v86 quad_perm:[1,1,3,3] {DPPF}
            s_add_u32 {sT0}, {sOme}, {s.bO(l)}''')
        for rt in range(4):
            a.e(f'{MF16} {vr(32+4*rt)}, {vr(ZT,2)}, {vr(PQ+2*rt,2)}, {vr(EPS)}')
            a.e(f'{MF16} {vr(48+4*rt)}, {vr(KT,2)}, {vr(PQ+2*rt,2)}, 0')
        a.e('v_rcp_f32 v32, v32')
        for rt in range(4):
            if rt < 3: a.e(f'v_rcp_f32 v{36+4*rt}, v{36+4*rt}')
            for r in (0, 2): a.e(f'v_pk_mul_f32 {vr(48+4*rt+r,2)}, {vr(48+4*rt+r,2)}, {vr(32+4*rt,2)} op_sel_hi:[1,0]')
            a.e(f'v_cvt_pk_bf16_f32 v{OUT+2*rt}, v{48+4*rt}, v{49+4*rt}\n v_cvt_pk_bf16_f32 v{OUT+1+2*rt}, v{50+4*rt}, v{51+4*rt}')
            a.e(f'v_or_b32 v{OUT+2*rt}, 1, v{OUT+2*rt}' if l == 0 else f'v_and_b32 v{OUT+2*rt}, -2, v{OUT+2*rt}')
            e = a.e(f'buffer_store_dwordx2 {vr(OUT+2*rt,2)}, {vO8}, {SWS}, {sT0} offen{s.sc}')
            if rt < 3: a.e(f's_add_u32 {sT0}, {sT0}, 16384')
        s.fs('Q')
        for ks in late: s.run(wo_rd(ks))
        if l == 0:
            s.poll_check(0, 0, 0)
        s.fs('Q')
        if l == 0 and not s.o('w1a', 0) + s.o('w2q0', 0): s.pf_check(32, True)
        if l == 0 and s.o('t1l', 0): s.run(s.t1(1) + s.t1(2))
        if l == 0: s.run(s.w1_loads(n1, n1 + s.o('w1b', 16))); st['w1n'] = n1 + s.o('w1b', 16)
        s.stamp(5); s.fs('Q')
        return st

    def P2(s, l, st):
        a = s.a
        RING=32; NR=6; VB=56; PKO=96; b = 1 - l
        s.fs('P2')
        n2 = st['w1n']; n3 = min(48, n2 + s.o('w1c', 10))
        def chunk(c, t, d):
            hf, kh = divmod(c, 2)
            L = [f's_add_u32 m0, {sOW}, {RW(l)+hf*32768+kh*8192}', f's_add_u32 {t}, {sGO}, {s.bO(l)+hf*32768+kh*8192}']
            L += [f'buffer_load_dwordx4 {vL16}, {SWS}, {t} offen offset:{i*1024}{s.lc} lds' for i in range(4)]
            L[-1] = Nm(L[-1], d, ('c', c))
            return L
        coff = lambda c: (c//2)*32768 + (c%2)*8192
        a.waitall(vm=False); a.raw('s_barrier')
        if s.kw.get('fine') == 'X' and l == s.o('fl', 1):
            a.waitall()
            for rep_ in range(2):
                for i in (1, 2, 3, 4):
                    s.fs('X'); d = {}; s.run(s.w2_dma(i, d)); a.waitall()
            s.fs('X')
            s.run(s.wq_loads(0, 4)); a.waitall(); s.fs('X')
            s.run(s.wq_loads(0, 4)); a.waitall(); s.fs('X')
            a.raw('s_branch Lfin')
        if s.o('opoll', 1):
            a.e(f'v_lshlrev_b32 {vS0}, 7, {vFl}\n v_and_b32 {vS0}, 0x3c00, {vS0}\n v_and_b32 {vS1}, 4, {vFl}\n v_lshl_add_u32 {vS0}, {vS1}, 1, {vS0}\n s_add_u32 {sT0}, {sGA}, {s.bO(l)+3*16384}')
            lb = a.label('Lop'); a.raw(f'{lb}:'); s.spin_guard()
            a.e(f'buffer_load_dword {vP}, {vS0}, {SWS}, {sT0} offen offset:1008 sc1'); a.waitall(lg=False)
            a.e(f'v_and_b32 {vP}, 1, {vP}\n v_cmp_ne_u32 vcc, {b}, {vP}'); a.raw(f's_cbranch_vccnz {lb}')
        s.fs('P2')
        if s.kw.get('fine') == 'Y' and l == s.o('fl', 1):
            for rep_ in range(2):
                d = {}
                s.fs('Y')
                s.run(sum([chunk(c, sT0, d) for c in range(4)], [])); s.fs('Y')
                for c in range(4): a.wait(d[('c', c)]); s.fs('Y')
                a.raw('s_barrier')
            a.raw('s_branch Lfin')
        s.run(sum([chunk(c, sT0, st) for c in range(4)], []))
        s.stamp(6); s.fs('P2')
        a.e(f's_and_b32 {sT0}, {sOW}, 0x4000\n s_add_u32 {sT0}, {sT0}, {RW(l)}\n v_add_u32 {vS2}, {sT0}, {vL16}\n s_add_u32 {sT0}, {sOW}, {RW(l)}\n v_add_u32 {vS0}, {sT0}, {vL16}\n v_add_u32 {vS1}, 8, {vS0}')
        def rd(n): hf, ks = divmod(n, 16); return f'ds_read_b128 {vr(RING+4*(n%NR))}, {vS2} offset:{hf*32768+ks*1024}'
        mf = []; pin = {}; mem = []; valu = []
        for n in range(32):
            hf, ks = divmod(n, 16)
            for sl in range(2):
                ac = RES+8*hf+4*sl
                mf.append(f'{MF} {vr(ac)}, {vr(s.woreg(ks, sl))}, {vr(RING+4*(n%NR))}, {vr(ac)} ; ?v{s.woreg(ks, sl)}=wo{l}')
        r0, v0 = s.ver('b128', 32, coff(0), b); r1, v1 = s.ver('b128', 48, coff(1), b)
        a.wait(st[('c',0)]); s.run(r0); a.wait(st[('c',1)]); s.fs('P2'); s.run(r1 + v0); a.raw('s_nop 1')
        s.ver_branch(chunk(0, sT0, {}), 'b128', 32, coff(0), b)
        s.run(v1); a.raw('s_nop 1')
        s.ver_branch(chunk(1, sT0, {}), 'b128', 48, coff(1), b)
        a.raw('s_barrier')
        s.fs('P2')
        for n in range(NR-1): a.e(rd(n))
        for n in range(32-NR+1): pin.setdefault(2*n+1, []).append(rd(n+NR-1))
        G = 2*(16-NR+1)
        for c, g0, g1 in ((2, 0, 10), (3, 10, G)):
            rdv, vv = s.ver('r2', VB, coff(c), b)
            mem.append(Stream([lambda c=c: a.wait(st[('c', c)])] + rdv, g0, deadline=g1-5))
            valu.append(Stream(vv, g1-5, deadline=g1-2))
            def f(c=c):
                s.ver_branch(chunk(c, sT0, {}), 'r2', VB, coff(c), b)
                if c == 3: a.raw('s_barrier')
            pin.setdefault(g1, []).insert(0, f)
        pin.setdefault(40, []).insert(0, s.barrier())
        extra = (s.touch_h(0) if s.o('tchh', 1) else []) + (s.w1_loads(n2, n3) if l == 0 else [])
        xp = s.x_pub(l, 0, 0, PKO, 'v104', 'v105', st, 'p0', False, sV0)
        mem.append(Stream(xp[:8], 35, deadline=44))
        mem.append(Stream(extra, s.o('p2x', 20), pace=s.o('pace2', 4)))
        valu.append(Stream(xp[8:], 44))
        for k in (5, 15, 31, 47): pin.setdefault(k, []).append(s.F('P2'))
        s.lefts.append(sched(a, mf, pin, mem, valu))
        s.fs('P2')
        s.run(s.x_pub(l, 0, 1, PKO+4, vS0, vS1, st, 'p1', True, sT0))
        s.fs('P2')
        st['w1n'] = n3
        s.stamp(7)
        return st

    def P3(s, l, st):
        a = s.a; w2 = st['w2']
        RING=32; NR=6; ACC=[56,68]; CS=80; NM=92; PKD=[144,150]; SL=156; ONES=164; HELD=176
        VB = 128
        s.fs('P3')
        s.run(s.tile_dma(s.bX1(l), 0, st, sT0, RW(l)) + s.tile_dma(s.bX1(l), 1, st, sT0, RW(l)))
        n4 = min(48, st['w1n'] + s.o('w1d', 10))
        if l == 0: s.run(s.w1_loads(st['w1n'], n4))
        else: s.run(s.held()); st['held'] = 1
        s.fs('P3')
        a.e(f's_mul_i32 {sT0}, {sW}, 192\n v_add_u32 {vS2}, {sT0}, {vG16}\n s_add_u32 {sT0}, {sW4}, {RW(l)}\n v_add_u32 {vS0}, {sT0}, {vL16}\n v_add_u32 v94, {RW(l)}, {vL16}')
        if l == 1:
            for sl in range(3): a.e(f'ds_read_b128 {vr(CS+4*sl)}, {vS2} offset:{CSW1+sl*64}')
        rdv, vv = s.ver('b128', VB, 0, 1)
        a.wait(st[('dma',0)]); s.run(rdv + vv); a.raw('s_nop 1')
        s.ver_branch(s.tile_dma(s.bX1(l), 0, {}, sT0, RW(l)), 'b128', VB, 0, 1)
        if l == 0:
            for i in range(4): a.e(f'v_mov_b32 v{ONES+i}, {sOnes}')
        s.stamp(8); s.fs('P3')
        def rd(n): return f'ds_read_b128 {vr(RING+4*(n%NR))}, v94 offset:{n*1024}'
        mf = []; pin = {}; gp = {}
        for n in range(64):
            sb, ks = divmod(n, 16)
            gp[n] = len(mf)
            for sl in range(3):
                ac = ACC[sb%2]+4*sl
                mf.append(f'{MF} {vr(ac)}, {ar(64*sl+4*ks)}, {vr(RING+4*(n%NR))}, {"0" if ks==0 else vr(ac)} ; ?a{64*sl+4*ks}=w1')
            if l == 0 and sb == 0: mf += [s.colsum_w1(sl, CS, ONES)[ks] for sl in range(3)]
        gp[64] = len(mf); X = gp[16] - 48
        s.barrier()()
        s.fs('P3')
        for n in range(NR-1): a.e(rd(n))
        for n in range(64-NR+1): pin.setdefault(gp[n]+2, []).append(rd(n+NR-1))
        G1, G2, G3 = [gp[16*sb-NR+1] for sb in (1,2,3)]
        G4 = gp[51]
        mem = []; valu = []
        s.arrivals(st, pin, mem, valu, s.bX1(l), 1, VB, RW(l), [(1, 6, G1, []), (2, 54+X, G2, ['sw0']), (3, 100+X, G3, ['sw1'])])
        pin.setdefault(G4, []).insert(0, s.barrier())
        valu.append(Stream(s.stats_chk(l, 0, 0, SL) + s.stats_use(0, 0, SL, st, 'sw0') + s.stats_chk(l, 0, 1, SL+4) + [By(G2-2)] + s.stats_use(0, 1, SL+4, st, 'sw1'), 36+X, deadline=G3-2))
        if l == 0: valu.append(Stream([f'ds_write_b128 {vS2}, {vr(CS+4*sl)} offset:{CSW1+sl*64}' for sl in range(3)], gp[16]+6))
        todo = [i for i in range(1, 5) if i not in w2]
        q = []
        if l == 0:
            for n in range(n4, 48, 2): q += s.w1_loads(n, n+2) + [By(max(0, gp[4*(n//12)] - 1))]
        q += s.stats_ld(l, 0, 0, SL, sU0) + s.tile_dma(s.bX1(l), 2, st, sU0, RW(l)) + s.stats_ld(l, 0, 1, SL+4, sU0) + s.tile_dma(s.bX1(l), 3, st, sU0, RW(l))
        for i in todo: q += s.w2_dma(i, w2)
        if 'held' not in st: q += s.held()
        if l == 0:
            def five():
                with a.skip_if(f's_cmp_eq_u32 {sW}, 3', 's_cbranch_scc1'): s.run(s.w2_dma(5, w2))
            q += [five] + s.w2_dma(6, w2)
        q += [At(G2+1)] + s.w2_dma(7, w2)
        nl = s.o('late0', 10) if l == 0 else 10
        if nl > 8: q += [At(G3+1)] + s.w2_dma(8, w2)
        if nl > 9: q += [At(G4+1)] + s.w2_dma(9, w2)
        st['nA'] = s.o('p3a', 5) if l == 1 else s.o('p3a0', 4)
        hfl = l == 0 or s.o('hfl', 0)
        if hfl: mem.append(Stream([lambda: a.wait(st[('hs',1)]), s.flag_st(0, 1+2*l, 0)], s.o('p3f', 146)+X))
        if l == 0: q += [At(s.o('p3h0', 172)-10+X), s.poll_ld(0, 1, 0), At(s.o('p3h0', 172)+X), lambda: s.poll_check(0, 1, 0)]
        al = [At(s.o('p3h', 138))] + sum([s.aload(l, n) for n in range(st['nA'])], [])
        k9 = [k for k, it in enumerate(q) if isinstance(it, At) and it.g == G4+1]
        if k9 and l == 1: q = q[:k9[0]] + al[:8] + q[k9[0]:] + al[8:]
        else: q += al
        def epi(sb):
            ac = ACC[sb%2]; p = PKD[sb%2]
            R = [f'ds_read_b32 v{NM+sb%2}, {vR4} offset:{1024+ST_NM+sb*64}']
            ng = '-' if l == 0 else ''
            B = [f'v_fma_f32 v{ac+i}, {ng}v{NM+sb%2}, v{CS+i}, {ng}v{ac+i}' for i in range(12)]
            B += [f'v_cvt_pk_bf16_f32 v{p+i}, v{ac+2*i}, v{ac+2*i+1}' for i in range(6)]
            B += [(f'v_pk_max_u16 v{p+i}, v{p+i}, {sNeg}' if l == 0 else f'v_pk_max_i16 v{p+i}, v{p+i}, 0') for i in range(6)]
            B += [f's_add_u32 {sV0}, {sHst}, {s.bH(l)+sb*HRT}', f's_add_u32 {sV1}, {sHst2}, {s.bH(l)+sb*HRT}',
                  f'buffer_store_dwordx4 {vr(p)}, {vL16}, {SWS}, {sV0} offen{s.sc}',
                  Nm(f'buffer_store_dwordx2 {vr(p+4,2)}, {vO8}, {SWS}, {sV1} offen{s.sc}', st, ('hs', sb))]
            return R, B
        for sb in range(3):
            R, B = epi(sb); b0 = gp[16*(sb+1)]
            if sb == 0:
                mem.append(Stream(R, G2)); valu.insert(0, Stream([At(G2+3)] + B[:18] + [By(95+X)] + B[18:], 0, deadline=104+X))
            else:
                mem.append(Stream(R, b0-3)); valu.insert(sb, Stream(B, b0+4, deadline=b0+40))
        mem.append(Stream(epi(3)[0], gp[64]-6))
        mq = Stream(q, 0, pace=s.o('pace3', 4)); mem.append(mq)
        for k_ in (10, 15, 21, 26, 31, 42, 47): pin.setdefault(gp[k_+1]-1, []).append(s.F('P3'))
        left = sched(a, mf, pin, mem, valu, keep=[mq]); s.lefts.append((left, len(mq.items)-mq.k))
        s.fs('P3')
        R, B = epi(3)
        s.barrier(w2[6] if l == 0 else None)()
        ngp = ' neg_lo:[0,1,1] neg_hi:[0,1,1]' if l == 0 else ''
        Bp = [f'v_pk_fma_f32 {vr(ACC[1]+i,2)}, {vr(CS+i,2)}, {vr(NM,2)}, {vr(ACC[1]+i,2)} op_sel:[0,1,0] op_sel_hi:[1,1,1]{ngp}' for i in range(0, 12, 2)]
        s.run(Bp + B[12:]); s.run(mq.items[mq.k:])
        s.stamp(9); s.fs('P3')
        return st

    def aload(s, l, n, sA0=sA0, sA1=sA1, force=False):
        AR=96; NA=6
        ps, i = divmod(n, 11); r = AR + 8*(n % NA)
        base, j = (sHe, i) if i <= 4 else ((sH5, 0) if i == 5 else ((sH6, 0) if i == 6 else (sHl, i-7)))
        L = []
        if j % 4 == 0 or force: L += [f's_add_u32 {sA0}, {base}, {s.bH(l)+ps*2*HRT+(j//4)*4096}', f's_add_u32 {sA1}, {sA0}, {sHd}']
        return L + [f'buffer_load_dwordx4 {vr(r)}, {vL16}, {SWS}, {sA0} offen offset:{(j%4)*1024}{s.lc} ; @h{l}_{n}',
                    f'buffer_load_dwordx4 {vr(r+4)}, {vL16}, {SWS}, {sA1} offen offset:{(j%4)*1024}{s.lc} ; @h{l}_{n}']

    def P4(s, l, st):
        a = s.a; nxt = {}; w2 = st['w2']
        ACC=[32,64]; AR=96; NA=6; BR=[144,160]; HELD=176
        def breg(n):
            ps, i = divmod(n, 11); return HELD if i == 0 else BR[(ps*10+i) % 2]
        def bread(n):
            ps, i = divmod(n, 11)
            if i == 0: return []
            L = []
            if ps == 0 and i in w2: L.append(lambda: a.wait(w2[i]))
            v, o = (vS0, (i-1)*4096) if i <= 4 else ((vS2, (i-5)*4096) if i <= 6 else (vS1, (i-7)*16384))
            return L + [f'ds_read_b128 {vr(breg(n)+4*c)}, {v} offset:{o+c*1024} ; @b{l}_{n}' for c in range(4)]
        s.fs('P4')
        a.e(f'''s_lshl_b32 {sT0}, {sW4}, 2
            s_add_u32 {sT0}, {sT0}, {RX(l)}
            v_add_u32 {vS0}, {sT0}, {vL16}
            s_add_u32 {sT0}, {sW4}, {RW(l)}
            v_add_u32 {vS1}, {sT0}, {vL16}
            v_add_u32 {vS2}, {sCb}, {vL16}''')
        nA = st['nA']
        for n in range(nA, 2): s.run(s.aload(l, n))
        nA = max(nA, 2)
        s.stamp(10); s.fs('P4')
        def xwrite(ps): return [f'ds_write_b128 {vS0}, {vr(ACC[ps]+8*t+4*sl)} offset:{ps*8192+t*2048+sl*1024}' for t in (1,2,3) for sl in (0,1)]
        def xread(ps, tmp, sx):
            return [f'v_xor_b32 v{tmp+t}, {t<<14}, {vS0}' for t in (1,2,3)] + [f's_and_b32 {sx}, {sW}, 2', f's_lshl_b32 {sx}, {sx}, 5', f'v_add_u32 v{tmp}, {sx}, {vR4}']
        def xread2(ps, tmp):
            L = [f'ds_read_b32 v{tmp}, v{tmp} offset:{1024+ST_RSTD+ps*128}']
            for t in (1,2): L += [f'ds_read_b128 {vr(ACC[ps]+8*t+4*sl)}, v{tmp+t} offset:{ps*8192+t*2048+sl*1024}' for sl in (0,1)]
            L += [f'ds_read_b128 {vr(ACC[ps]+24+4*sl)}, v{tmp+3} offset:{ps*8192+3*2048+sl*1024}' for sl in (0,1)]
            return L
        def xsum(ps, tmp):
            ac = ACC[ps]; L = []
            for i in range(8): L.append(f'v_add_f32 v{ac+i}, v{ac+i}, v{ac+8+i}')
            for i in range(8): L.append(f'v_add_f32 v{ac+16+i}, v{ac+16+i}, v{ac+24+i}')
            for i in range(8): L.append(f'v_add_f32 v{ac+i}, v{ac+i}, v{ac+16+i}')
            for i in range(8): L.append(f'v_fma_f32 v{RES+8*ps+i}, {"-" if l == 0 else ""}v{ac+i}, v{tmp}, v{RES+8*ps+i}')
            return L
        def publish(ps, dot, sx):
            ac = ACC[ps]
            if l == 0: return s.x_pub(0, 1, ps, ac+8, f'v{ac+12}', f'v{ac+13}', nxt, ('pub', ps), dot, sx)
            r = RES + 8*ps
            return [f'v_cvt_pk_bf16_f32 v{ac+8+i}, v{r+2*i}, v{r+2*i+1}' for i in range(4)] + [
                f'v_bfe_u32 v{ac+12}, {vL16}, 4, 4', f'v_lshrrev_b32 v{ac+13}, 8, {vL16}', f'v_lshlrev_b32 v{ac+12}, 10, v{ac+12}',
                f'v_lshl_add_u32 v{ac+12}, v{ac+13}, 4, v{ac+12}', f's_add_u32 {sx}, {sOutO}, {ps*32768}',
                f'buffer_store_dwordx4 {vr(ac+8)}, v{ac+12}, {SOUT}, {sx} offen' + (' sc1' if s.o('osc', 0) else '')]
        mf = []; pin = {}; q = []; rds = []
        for n in range(22):
            ps, i = divmod(n, 11); r = AR + 8*(n % NA); grp = []
            for c in range(4):
                for t2 in range(2):
                    ac = ACC[ps] + 16*t2 + 4*c
                    grp.append(f'{MF} {vr(ac)}, {vr(breg(n)+4*c)}, {vr(r+4*t2)}, {"0" if i==0 else vr(ac)} ; ?v{r+4*t2}=h{l}_{n} ?v{breg(n)+4*c}={"held"+str(l) if i == 0 else f"b{l}_{n}"}')
            if n == 21: grp = [grp[k] for k in (4, 5, 6, 7, 1, 3, 0, 2)]
            mf += grp
            if n+1 < 22: rds.append(Stream(bread(n+1), 8*n, deadline=8*(n+1)))
        hfl = l == 0 or s.o('hfl', 0); nt1 = s.o('nt1s', 2) if l == 1 else 0
        if hfl and l == 1: s.run([s.poll_ld(0, 3, 0)])
        def hchk(n):
            ps, i = divmod(n, 11); r = AR + 8*(n % NA)
            if l == 0:
                c = [f'v_bitop3_b32 {vP}, v{r}, v{r+2}, v{r+4} bitop3:0x80',
                     f'v_bitop3_b32 {vP}, {vP}, v{r+6}, {sM5} bitop3:0xea' if i == 5 else f'v_and_b32 {vP}, {vP}, v{r+6}',
                     f'v_cmp_le_i32 vcc, 0, {vP}']
            else:
                c = [f'v_or3_b32 {vP}, v{r}, v{r+2}, v{r+4}', f'v_or_b32 {vP}, {vP}, v{r+6}', f'v_cmp_gt_i32 vcc, 0, {vP}']
            def br():
                with a.rare(None, 's_cbranch_vccnz'):
                    lb = a.label('Lhv'); a.raw(f'{lb}:'); s.spin_guard()
                    s.run(s.aload(l, n, sT0, sT1, True)); a.waitall(lg=False); s.run(c)
                    a.raw(f's_cbranch_vccnz {lb}')
            return c, br
        for n in range(nA, 22):
            for i in (8, 9, 10):
                if n == i - 2 and i not in w2 and not (l == 1 and s.o('x_nos10', 0)): q += s.w2_dma(i, w2)
            if hfl and l == 1 and n == nA: q += [lambda: s.poll_check(0, 3, 0)]
            if hfl and n == 6: q += [lambda: a.wait(st[('hs',3)]), s.flag_st(0, 2+2*l, 0)]
            if hfl and n == 9: q.append(s.poll_ld(0, 2+2*l, 0))
            if hfl and n == 11+nt1: q.append(lambda: s.poll_check(0, 2+2*l, 0))
            if l == 0 and s.o('tq4', 0) and n in (12, 17): q += s.tq((n-12)//5)
            q.append(At(max(0, 8*(n-NA+1))))
            if not (l == 1 and s.o('x_nold', 0)): q += s.aload(l, n) + [By(max(0, 8*n - 10))]
        if l == 1: c, br = hchk(0); s.run(c); br()
        for n in range(1, 22):
            c, br = hchk(n)
            if l == 1 and s.o('x_nochk', 0): c = ['s_nop 0', 's_nop 0', 's_nop 0']; br = lambda: None
            if l == 1 and (not hfl or n < nA or 11 <= n < 11+nt1): pin.setdefault(8*n-5, []).extend(c[:2]); pin.setdefault(8*n-4, []).append(c[2]); pin.setdefault(8*n-s.o('brg', 2), []).insert(0, br)
            def wb(n, lo):
                def f():
                    regs = set(regs_of(vr(breg(n)+lo, 8)))
                    a.wait(*[e for e in a.q['lg'] if not e.done and (e.defs & regs)])
                f.pre = True
                return f
            br.pre = True
            pin.setdefault(8*n-1, []).insert(0, wb(n, 0)); pin.setdefault(8*n+2, []).insert(0, wb(n, 8))
        if l == 0 and s.o('tsm', 1): q += s.touch_kv1(1, 190) + (s.touch_kv2(1, 189) if s.o('tkv2', 0) else [])
        TM = HELD
        xw = xwrite(0); xw[-1] = Nm(xw[-1], nxt, 'xw')
        red = [At(8*12)] + xread(0, TM, sV0) + [At(8*13)] + xw[:2] + [At(8*14)] + xw[2:]
        GB = 8*14+7
        redS = Stream(red, 0, deadline=GB)
        pin.setdefault(GB, []).append(s.barrier(lambda: nxt['xw']) if not (l == 1 and s.o('x_nobar', 0)) else (lambda: None))
        red2 = Stream(xread2(0, TM), GB, deadline=8*16)
        red3 = Stream(xsum(0, TM) + publish(0, False, sV0) + xread(1, TM+4, sV0), 8*15+6)
        if l == 1 and s.o('wb', 0):
            def wbl():
                with a.skip_if(f's_lshr_b32 {sT0}, s2, 3\n s_or_b32 {sT0}, {sT0}, {sW}\n s_cmp_lg_u32 {sT0}, 0', 's_cbranch_scc1'): a.e('buffer_wbl2 sc1')
            pin.setdefault(s.o('wb', 0), []).append(wbl)
        for n in (0, 2, 5, 8, 11, 14, 17): pin.setdefault(8*n+7, []).append(s.F('P4'))
        left = sched(a, mf, pin, rds + [red2, Stream(q, 0, pace=s.o('pace4', 2))], [redS, red3]); s.lefts.append(left)
        s.stamp(11); s.fs('P4')
        xw1 = xwrite(1); s.run([xw1[k] for k in (0, 4, 1, 5, 2, 3)])
        a.waitall(vm=False); a.raw('s_barrier')
        s.fs('P4')
        s.run(xread2(1, TM+4))
        ac = ACC[1]
        tail = [f'v_pk_add_f32 {vr(ac+i,2)}, {vr(ac+i,2)}, {vr(ac+8+i,2)}' for i in range(0, 8, 2)]
        tail += [f'v_pk_add_f32 {vr(ac+16+i,2)}, {vr(ac+16+i,2)}, {vr(ac+24+i,2)}' for i in range(0, 8, 2)]
        tail += [f'v_pk_add_f32 {vr(ac+i,2)}, {vr(ac+i,2)}, {vr(ac+16+i,2)}' for i in range(0, 8, 2)]
        tail += [f'v_pk_fma_f32 {vr(RES+8+i,2)}, {vr(ac+i,2)}, {vr(TM+4,2)}, {vr(RES+8+i,2)} op_sel_hi:[1,0,1]' + (' neg_lo:[1,0,0] neg_hi:[1,0,0]' if l == 0 else '') for i in range(0, 8, 2)]
        tail += publish(1, True, sT0)
        if l == 0:
            d = Stream(s.tile_dma(s.bX2(), 0, nxt, sU0, LB, True) + s.stats_ld(0, 1, 0, 120, sU1) + s.tile_dma(s.bX2(), 1, nxt, sU0, LB, True)).items
            k = 0
            for n, it in enumerate(tail):
                if n % 4 == 0 and n < 24:
                    while k < len(d):
                        t = d[k].text if isinstance(d[k], Nm) else d[k]
                        s.run([d[k]]); k += 1
                        if t.startswith('buffer'): break
                s.run([it])
            s.run(d[k:])
            s.wql = 1; nxt['wqpre'] = s.o('wqpre', 4); s.run(s.wq_loads(0, nxt['wqpre']))
        else: s.run(tail)
        s.fs('P4')
        return nxt

    def main(s, fast):
        a = s.a; s.sc = '' if fast else ' sc1'; s.nfs = 0; s.pl = {}
        s.lc = '' if (fast and s.o('plainl', 0)) else ' sc1'; s.wc = '' if s.o('plainw', 0) else ' sc1'
        prev = {}
        s.l = 0
        s.kv_publish(0, 96, 88, 92)
        if not fast:
            for i in range(4): a.e(f'v_mov_b32 v{32+i}, 0')
            s.run(s.poison(32, ' sc1', 1)); a.waitall(); a.raw('s_barrier')
        for l in range(2):
            s.l = l
            if l == 1 and s.o('x_sc', 0): s.sc = ' sc1'
            st = s.P1(l, prev) if l else dict(s.st0)
            s.stamp(2)
            if s.stop == 'P1' + ('b' if l else ''): break
            st = s.Q(l, st)
            if s.stop == 'Q' + ('b' if l else ''): break
            st = s.P2(l, st)
            if s.stop == 'P2' + ('b' if l else ''): break
            st = s.P3(l, st)
            if s.stop == 'P3' + ('b' if l else ''): break
            prev = s.P4(l, st); s.stamp(12)
            if s.stop == 'P4' + ('b' if l else ''): break
        a.q = {'vm': [], 'lg': []}
        a.raw('s_branch Lfin')

    def build(s):
        a = s.a
        s.sc = ''; s.lc = ' sc1'; s.wc = ' sc1'; s.pl = {}
        s.startup()
        import copy
        q0 = {k: list(v) for k, v in a.q.items()}; tg0 = dict(a.tags)
        s.main(True)
        a.ins += a.cold; a.cold = []
        a.raw('Lslow:')
        a.q = {k: list(v) for k, v in q0.items()}; a.tags = tg0
        for k in a.q:
            for e in a.q[k]: e.done = False
        s.main(False)
        a.raw('Lfin:')
        a.e(f's_or_b32 {sT0}, s2, {sW}')
        with a.skip_if(f's_cmp_lg_u32 {sT0}, 0', 's_cbranch_scc1'):
            a.e(f'buffer_store_dword {vTag}, {vFlagOff}, {SWS}, 0 offen sc1')
        if s.prof:
            a.raw('s_waitcnt vmcnt(0)')
            a.raw(f's_memrealtime s[74:75]'); a.raw('s_waitcnt lgkmcnt(0)')
            if not s.kw.get('fine'):
                a.e(f's_mov_b32 s{sPR+25}, s74')
                a.raw(f's_memtime s[74:75]'); a.raw('s_waitcnt lgkmcnt(0)'); a.e(f's_sub_u32 s{sPR+13}, s74, s23')
            if s.o('dbg', 0):
                a.e(f's_not_b32 s74, s{sPR}\n v_mov_b32 v32, 0')
                a.e('v_writelane_b32 v32, s74, 0')
                for k, i in enumerate((0, 2, 4, 6, 7, 8, 9, 12, 14, 16, 20, 21, 24, 25)): a.e(f'v_writelane_b32 v32, s{sPR+i}, {k+1}')
                a.e(f's_mov_b32 s12, s94\n s_mov_b32 s13, s95\n s_mov_b32 s14, 60\n s_mov_b32 s15, 0x20000\n v_lshrrev_b32 v33, 2, {vL16}\n s_nop 4')
                a.e('buffer_atomic_umax v32, v33, s[12:15], 0 offen')
                a.raw('s_endpgm')
            a.e(f's_lshl_b32 {sT0}, s2, 2\n s_add_u32 {sT0}, {sT0}, {sW}\n s_lshl_b32 {sT0}, {sT0}, 7\n s_add_u32 {sT0}, {sT0}, {PROF}')
            for i in range(26):
                a.e(f'v_mov_b32 v32, s{sPR+i}')
                a.e(f'buffer_store_dword v32, {vFlagOff}, {SWS}, {sT0} offen offset:{4*i}')
        a.raw('Lbail:'); a.raw('Lend:'); a.raw('s_endpgm'); a.ins += a.cold
        hdr = open('interleave_layers__linear_attn_block__dense_activation_relu__prompt.s.ref').read().split('\n')
        top = [l for l in hdr if l.startswith(';') and '@launch' not in l]
        txt = '\n'.join(top) + f'\n; @launch grid=(256,1,1) block=(256,1,1) lds={LDSZ}\n'
        txt += f'.amdgcn_target "amdgcn-amd-amdhsa--gfx950"\n.text\n.globl {KNAME}\n.p2align 8\n.type {KNAME},@function\n{KNAME}:\n'
        txt += a.text()
        txt += f'''.section .rodata,"a"
.p2align 6
.amdhsa_kernel {KNAME}
  .amdhsa_next_free_vgpr 512
  .amdhsa_next_free_sgpr 102
  .amdhsa_accum_offset 256
  .amdhsa_group_segment_fixed_size 0
  .amdhsa_kernarg_size 72
  .amdhsa_user_sgpr_count 2
  .amdhsa_user_sgpr_kernarg_segment_ptr 1
  .amdhsa_system_sgpr_workgroup_id_x 1
.end_amdhsa_kernel
'''
        return txt


if __name__ == '__main__':
    import argparse
    p = argparse.ArgumentParser(); p.add_argument('-o', default='k.s'); p.add_argument('--prof', action='store_true'); p.add_argument('--stop'); p.add_argument('--force'); p.add_argument('--opts', default='')
    x = p.parse_args()
    kw = dict(kv.split('=') for kv in x.opts.split(',') if kv)
    g = G(x.prof, x.stop, x.force, **kw)
    open(x.o, 'w').write(g.build())
    print('forced', getattr(g.a, 'forced', 0), 'left', g.lefts)
```
